```python
import torch

def _softmax(x, axis=-1):
    return torch.softmax(x, dim=axis)
def _gelu(x):
    return torch.nn.functional.gelu(x, approximate="tanh")
def _silu(x):
    return torch.nn.functional.silu(x)
def _sigmoid(x):
    return torch.sigmoid(x)
def _layernorm(x, axis=-1, eps=1e-5):
    m = x.mean(dim=axis, keepdim=True)
    v = x.var(dim=axis, keepdim=True, unbiased=False)
    return (x - m) / torch.sqrt(v + eps)
def _scatter_add(tgt, idx, src, axis=0):
    return tgt.clone().index_add_(axis, idx, src)
def _segment_sum(src, seg, n):
    out = torch.zeros((n,) + src.shape[1:], dtype=src.dtype)
    return out.index_add_(0, seg, src)
def _pad(x, pw):
    flat = tuple(v for pair in reversed(pw) for v in pair)
    return torch.nn.functional.pad(x, flat)

kernel_name = 'parallel_sum__sliding_block__glu_gated_bilinear__prompt'

def setup_inputs():

    _w = (lambda a: (lambda t: t.to(torch.bfloat16) if t.is_floating_point() else t)(torch.as_tensor(a)))
    def _A_setup():
        B, S, D = 1, 2048, 576
        return {
            "x": _w((lambda *s: torch.randn(*s, dtype=torch.bfloat16) * 0.05)(B, S, D)),
            "wqkv": _w((lambda *s: torch.randn(*s, dtype=torch.bfloat16) * 0.05)(D, 3 * D)),
            "wo": _w((lambda *s: torch.randn(*s, dtype=torch.bfloat16) * 0.05)(D, D)),
        }
    _A_in = _A_setup()

    def _B_setup():
        B, S, D, F = 1, 2048, 576, 4608
        return {
            "x": _w((lambda *s: torch.randn(*s, dtype=torch.bfloat16) * 0.05)(B, S, D)),
            "w_gate": _w((lambda *s: torch.randn(*s, dtype=torch.bfloat16) * 0.8)(D, F) * (D ** -0.5)),
            "w_up": _w((lambda *s: torch.randn(*s, dtype=torch.bfloat16) * 0.8)(D, F) * (D ** -0.5)),
            "w_down": _w((lambda *s: torch.randn(*s, dtype=torch.bfloat16) * 0.8)(F, D) * (F ** -0.5)),
        }
    _B_in = _B_setup()

    return {
        "A_x": _A_in["x"],
        "A_wqkv": _A_in["wqkv"],
        "A_wo": _A_in["wo"],
        "B_x": _B_in["x"],
        "B_w_gate": _B_in["w_gate"],
        "B_w_up": _B_in["w_up"],
        "B_w_down": _B_in["w_down"],
    }

def reference(A_x, A_wqkv, A_wo, B_x, B_w_gate, B_w_up, B_w_down):
    def _A_ref(x, wqkv, wo):
        B, S, D = x.shape
        H = 32; Dh = D // H; W = 256
        qkv = (lambda x, *d: x.permute(*d))((x @ wqkv).reshape(B, S, 3, H, Dh), 2, 0, 3, 1, 4)
        q, k, v = qkv[0], qkv[1], qkv[2]
        scores = torch.einsum("bhqd,bhkd->bhqk", q, k) * (Dh ** -0.5)
        idx = torch.arange(S)
        mask = (idx[:, None] - idx[None, :] >= 0) & (idx[:, None] - idx[None, :] < W)
        scores = torch.where(mask[None, None], scores, -1e9)
        p = _softmax(scores, axis=-1)
        o = torch.einsum("bhqk,bhkd->bhqd", p, v)
        return (lambda x, *d: x.permute(*d))(o, 0, 2, 1, 3).reshape(B, S, D) @ wo

    def _B_ref(x, w_gate, w_up, w_down):
        g = torch.einsum("bsd,df->bsf", x, w_gate)
        u = torch.einsum("bsd,df->bsf", x, w_up)
        h = g * u
        return torch.einsum("bsf,fd->bsd", h, w_down)

    x = A_x
    xn = _layernorm(x, axis=-1)
    return x + _A_ref(xn, A_wqkv, A_wo) + _B_ref(xn, B_w_gate, B_w_up, B_w_down)
```

```python
class Asm:
    def __init__(self):
        self.lines = []
        self.uid = 0
    def __call__(self, s):
        self.lines.append("    " + s)
    def label(self, l):
        self.lines.append(l + ":")
    def comment(self, c):
        self.lines.append("    ; " + c)
    def raw(self, s):
        self.lines.append(s)
    def newlabel(self, p):
        self.uid += 1
        return "L_%s_%d" % (p, self.uid)
    def text(self):
        return "\n".join(self.lines) + "\n"

def v(a, n=1):
    return "v%d" % a if n == 1 else "v[%d:%d]" % (a, a + n - 1)
def s(a, n=1):
    return "s%d" % a if n == 1 else "s[%d:%d]" % (a, a + n - 1)

S, D, F, H, DH, W = 2048, 576, 4608, 32, 18, 256
KA_X, KA_WQKV, KA_WO, KA_BX, KA_WG, KA_WU, KA_WD, KA_OUT, KA_DBG, KA_WS = [8 * i for i in range(10)]
NKS = 162
H_BASE = 0
H_BYTES = 32 * NKS * 4096
QKV_BASE = H_BYTES
QKV_BYTES = 64 * 108 * 1024
WS_BYTES = QKV_BASE + QKV_BYTES

def srd(a, dst, base, nbytes):
    a("s_mov_b32 %s, %s" % (s(dst), s(base)))
    a("s_mov_b32 %s, %s" % (s(dst + 1), s(base + 1)))
    a("s_mov_b32 %s, %d" % (s(dst + 2), nbytes))
    a("s_mov_b32 %s, 0x00020000" % s(dst + 3))

def kdesc(name, nv, ns):
    acc = (nv + 3) // 4 * 4
    return """.section .rodata,"a"
.p2align 6
.amdhsa_kernel %s
  .amdhsa_next_free_vgpr %d
  .amdhsa_next_free_sgpr %d
  .amdhsa_accum_offset %d
  .amdhsa_group_segment_fixed_size 0
  .amdhsa_kernarg_size 80
  .amdhsa_user_sgpr_count 2
  .amdhsa_user_sgpr_kernarg_segment_ptr 1
  .amdhsa_system_sgpr_workgroup_id_x 1
.end_amdhsa_kernel
""" % (name, nv, ns, acc)

def khead(name):
    return """.text
.globl %s
.p2align 8
.type %s,@function
%s:
""" % (name, name, name)
```

```python
from common import *

K1_NAME = "g1_kernel"
K1_LDS = 147456
REG = 36864
NCHUNK = 171
NQKV = 27
CPW = 11

def gen_k1(opt):
    a = Asm()
    a.raw(khead(K1_NAME))
    st_flag = opt.get("k1_store_flag", "")
    sX, sWQ, sWG, sWU, sWS = 4, 6, 8, 10, 12
    rX, rWQ, rWG, rWU, rWS = 16, 20, 24, 28, 32
    sWAVE, sRB, sCG, sC0, sNCH = 36, 37, 38, 39, 40
    sT0, sT1, sT2, sT3 = 41, 42, 43, 44
    sONES = 45
    sI, sC, sEP, sHB, sQB = 46, 47, 48, 49, 50
    sIC, sIG, sLB, sLEND, sLBEG, sG, sLAST, sO0, sO1 = 52, 53, 54, 55, 56, 57, 58, 59, 60
    vLANE = 1
    vRB = [2, 3, 4, 5]
    vHOFF, vQOFF = 6, 7
    vT = [8, 9, 10, 11, 12, 13, 14, 15]
    X0 = 16
    ACC = [160, 192]
    WF0 = 224
    D = 3
    NB = D + 1
    def X(ks): return X0 + 4 * ks
    def WF(ks, t): return WF0 + 8 * (ks % NB) + 4 * t

    a("s_cmp_ge_u32 s2, 256")
    a("s_cbranch_scc1 L_k1_end")
    a("s_load_dwordx4 %s, s[0:1], %d" % (s(4, 4), KA_X))
    a("s_load_dwordx4 %s, s[0:1], %d" % (s(8, 4), KA_WG))
    a("s_load_dwordx2 %s, s[0:1], %d" % (s(12, 2), KA_WS))
    a("v_and_b32 %s, 63, v0" % v(vLANE))
    a("v_lshrrev_b32 %s, 6, v0" % v(vT[0]))
    a("s_and_b32 %s, s2, 7" % s(sT0))
    a("s_lshr_b32 %s, s2, 3" % s(sT1))
    a("v_readfirstlane_b32 %s, %s" % (s(sWAVE), v(vT[0])))
    a("s_and_b32 %s, %s, 15" % (s(sRB), s(sT1)))
    a("s_lshr_b32 %s, %s, 4" % (s(sT1), s(sT1)))
    a("s_lshl_b32 %s, %s, 1" % (s(sCG), s(sT0)))
    a("s_add_u32 %s, %s, %s" % (s(sCG), s(sCG), s(sT1)))
    a("s_mul_i32 %s, %s, %d" % (s(sC0), s(sCG), CPW))
    a("s_sub_u32 %s, %d, %s" % (s(sNCH), NCHUNK, s(sC0)))
    a("s_min_u32 %s, %s, %d" % (s(sNCH), s(sNCH), CPW))
    a("s_waitcnt lgkmcnt(0)")
    srd(a, rX, sX, S * D * 0 + 2048 * 576 * 2)
    srd(a, rWQ, sWQ, 576 * 1728 * 2)
    srd(a, rWG, sWG, 576 * 4608 * 2)
    srd(a, rWU, sWU, 576 * 4608 * 2)
    srd(a, rWS, sWS, WS_BYTES)
    a("s_cmp_ge_u32 %s, 4" % s(sWAVE))
    a("s_cbranch_scc1 L_k1_loader")

    a("v_lshrrev_b32 %s, 3, %s" % (v(vT[0]), v(vLANE)))
    a("v_mul_u32_u24 %s, 1152, %s" % (v(vT[0]), v(vT[0])))
    a("v_and_b32 %s, 7, %s" % (v(vT[1]), v(vLANE)))
    a("v_lshrrev_b32 %s, 4, %s" % (v(vT[2]), v(vLANE)))
    a("v_xor_b32 %s, %s, %s" % (v(vT[1]), v(vT[1]), v(vT[2])))
    a("v_xor_b32 %s, 4, %s" % (v(vT[2]), v(vT[1])))
    a("v_lshl_add_u32 %s, %s, 4, %s" % (v(vT[4]), v(vT[1]), v(vT[0])))
    a("v_lshl_add_u32 %s, %s, 4, %s" % (v(vT[5]), v(vT[2]), v(vT[0])))
    a("s_lshl_b32 %s, %s, 7" % (s(sT0), s(sRB)))
    a("s_lshl_b32 %s, %s, 5" % (s(sT1), s(sWAVE)))
    a("s_add_u32 %s, %s, %s" % (s(sT0), s(sT0), s(sT1)))
    a("s_mul_i32 %s, %s, 1152" % (s(sT0), s(sT0)))
    a("s_mul_i32 %s, %s, %d" % (s(sT1), s(sWAVE), REG))
    for b in range(9):
        for rq in range(4):
            a("s_add_u32 m0, %s, %d" % (s(sT1), b * 4096 + rq * 1024))
            a("s_add_u32 %s, %s, %d" % (s(sT2), s(sT0), rq * 8 * 1152 + b * 128))
            a("buffer_load_dwordx4 %s, %s, %s offen lds" % (v(vT[4 + (rq & 1)]), s(rX, 4), s(sT2)))
    a("v_and_b32 %s, 31, %s" % (v(vT[0]), v(vLANE)))
    a("v_lshrrev_b32 %s, 5, %s" % (v(vT[1]), v(vLANE)))
    a("v_bfe_u32 %s, %s, 1, 3" % (v(vT[2]), v(vLANE)))
    a("v_xor_b32 %s, %s, %s" % (v(vT[2]), v(vT[2]), v(vT[1])))
    a("v_lshlrev_b32 %s, 7, %s" % (v(vT[3]), v(vT[0])))
    a("v_add_u32 %s, %s, %s" % (v(vT[3]), s(sT1), v(vT[3])))
    for t in range(4):
        a("v_xor_b32 %s, %d, %s" % (v(vRB[t]), 2 * t, v(vT[2])))
        a("v_lshl_add_u32 %s, %s, 4, %s" % (v(vRB[t]), v(vRB[t]), v(vT[3])))
    a("v_lshlrev_b32 %s, 4, %s" % (v(vQOFF), v(vLANE)))
    a("v_bfe_u32 %s, %s, 4, 1" % (v(vT[4]), v(vLANE)))
    a("v_lshlrev_b32 %s, 10, %s" % (v(vT[4]), v(vT[4])))
    a("v_lshl_add_u32 %s, %s, 8, %s" % (v(vT[4]), v(vT[1]), v(vT[4])))
    a("v_and_b32 %s, 15, %s" % (v(vT[5]), v(vLANE)))
    a("v_lshl_add_u32 %s, %s, 4, %s" % (v(vHOFF), v(vT[5]), v(vT[4])))
    a("s_lshl_b32 %s, %s, 1" % (s(sT2), s(sRB)))
    a("s_lshr_b32 %s, %s, 1" % (s(sT3), s(sWAVE)))
    a("s_add_u32 %s, %s, %s" % (s(sT2), s(sT2), s(sT3)))
    a("s_mul_i32 %s, %s, %d" % (s(sHB), s(sT2), NKS * 4096))
    a("s_and_b32 %s, %s, 1" % (s(sT3), s(sWAVE)))
    a("s_lshl_b32 %s, %s, 11" % (s(sT3), s(sT3)))
    a("s_add_u32 %s, %s, %s" % (s(sHB), s(sHB), s(sT3)))
    a("s_add_u32 %s, %s, %d" % (s(sHB), s(sHB), H_BASE))
    a("s_lshl_b32 %s, %s, 2" % (s(sT2), s(sRB)))
    a("s_add_u32 %s, %s, %s" % (s(sT2), s(sT2), s(sWAVE)))
    a("s_mul_i32 %s, %s, %d" % (s(sQB), s(sT2), 108 * 1024))
    a("s_add_u32 %s, %s, %d" % (s(sQB), s(sQB), QKV_BASE))
    a("s_mov_b32 %s, 0x3f803f80" % s(sONES))
    SUM = [ACC[1] + 0, ACC[1] + 1]
    SQ = [ACC[1] + 2, ACC[1] + 3]
    for r in SUM + SQ:
        a("v_mov_b32 %s, 0" % v(r))
    def stats(b):
        for t in range(4):
            for d in range(4):
                r = X(4 * b + t) + d
                a("v_dot2_f32_bf16 %s, %s, %s, %s" % (v(SUM[d & 1]), v(r), s(sONES), v(SUM[d & 1])))
                a("v_dot2_f32_bf16 %s, %s, %s, %s" % (v(SQ[d & 1]), v(r), v(r), v(SQ[d & 1])))
    for b in range(9):
        a("s_waitcnt vmcnt(%d)" % (32 - 4 * b))
        for t in range(4):
            a("ds_read_b128 %s, %s offset:%d" % (v(X(4 * b + t), 4), v(vRB[t]), b * 4096))
        if b > 0:
            a("s_waitcnt lgkmcnt(4)")
            stats(b - 1)
    a("s_waitcnt lgkmcnt(0)")
    a("s_barrier")
    stats(8)
    a("v_lshlrev_b32 %s, 9, %s" % (v(vT[2]), v(vT[1])))
    a("v_bfe_u32 %s, %s, 2, 2" % (v(vT[3]), v(vLANE)))
    a("v_lshl_add_u32 %s, %s, 6, %s" % (v(vT[2]), v(vT[3]), v(vT[2])))
    a("v_bfe_u32 %s, %s, 4, 1" % (v(vT[3]), v(vLANE)))
    a("v_lshl_add_u32 %s, %s, 5, %s" % (v(vT[2]), v(vT[3]), v(vT[2])))
    a("v_and_b32 %s, 3, %s" % (v(vT[3]), v(vLANE)))
    a("v_lshl_add_u32 %s, %s, 3, %s" % (v(vRB[0]), v(vT[3]), v(vT[2])))
    for w in range(1, 4):
        a("v_add_u32 %s, %d, %s" % (v(vRB[w]), w * REG, v(vRB[0])))
    A1 = ACC[1]
    a("v_add_f32 %s, %s, %s" % (v(A1 + 0), v(SUM[0]), v(SUM[1])))
    a("v_add_f32 %s, %s, %s" % (v(A1 + 2), v(SQ[0]), v(SQ[1])))
    a("s_nop 0")
    a("v_mov_b32 %s, %s" % (v(A1 + 1), v(A1 + 0)))
    a("v_mov_b32 %s, %s" % (v(A1 + 3), v(A1 + 2)))
    a("s_nop 1")
    a("v_permlane32_swap_b32 %s, %s" % (v(A1 + 0), v(A1 + 1)))
    a("v_permlane32_swap_b32 %s, %s" % (v(A1 + 2), v(A1 + 3)))
    a("s_nop 1")
    a("v_add_f32 %s, %s, %s" % (v(A1 + 0), v(A1 + 0), v(A1 + 1)))
    a("v_add_f32 %s, %s, %s" % (v(A1 + 2), v(A1 + 2), v(A1 + 3)))
    inv = 0x3ae38e39
    a("v_mul_f32 %s, 0x%x, %s" % (v(A1 + 0), inv, v(A1 + 0)))
    a("v_mul_f32 %s, 0x%x, %s" % (v(A1 + 2), inv, v(A1 + 2)))
    a("v_fma_f32 %s, -%s, %s, %s" % (v(A1 + 2), v(A1 + 0), v(A1 + 0), v(A1 + 2)))
    a("v_max_f32 %s, 0, %s" % (v(A1 + 2), v(A1 + 2)))
    a("v_cvt_pk_bf16_f32 %s, %s, %s" % (v(A1 + 4), v(A1 + 0), v(A1 + 2)))
    a("v_lshlrev_b32 %s, 16, %s" % (v(A1 + 0), v(A1 + 4)))
    a("v_and_b32 %s, 0xffff0000, %s" % (v(A1 + 2), v(A1 + 4)))
    a("v_add_f32 %s, 0x3727c5ac, %s" % (v(A1 + 2), v(A1 + 2)))
    a("v_cvt_pk_bf16_f32 %s, %s, %s" % (v(A1 + 2), v(A1 + 2), v(A1 + 2)))
    a("v_and_b32 %s, 0xffff0000, %s" % (v(A1 + 2), v(A1 + 2)))
    a("v_sqrt_f32 %s, %s" % (v(A1 + 2), v(A1 + 2)))
    a("s_nop 0")
    a("v_cvt_pk_bf16_f32 %s, %s, %s" % (v(A1 + 2), v(A1 + 2), v(A1 + 2)))
    a("v_and_b32 %s, 0xffff0000, %s" % (v(A1 + 2), v(A1 + 2)))
    a("v_rcp_f32 %s, %s" % (v(A1 + 2), v(A1 + 2)))
    a("s_nop 0")
    a("v_mul_f32 %s, %s, %s" % (v(A1 + 0), v(A1 + 0), v(A1 + 2)))
    a("v_sub_f32 %s, 0, %s" % (v(A1 + 0), v(A1 + 0)))
    RR, NBV = A1 + 2, A1 + 0
    TT = A1 + 8
    for ks in range(36):
        tb = TT + 8 * (ks & 1)
        for d in range(4):
            a("v_lshlrev_b32 %s, 16, %s" % (v(tb + 2 * d), v(X(ks) + d)))
            a("v_and_b32 %s, 0xffff0000, %s" % (v(tb + 2 * d + 1), v(X(ks) + d)))
        for d in range(4):
            a("v_pk_fma_f32 %s, %s, %s, %s op_sel_hi:[1,0,0]" % (v(tb + 2 * d, 2), v(tb + 2 * d, 2), v(RR, 2), v(NBV, 2)))
        for d in range(4):
            a("v_cvt_pk_bf16_f32 %s, %s, %s" % (v(X(ks) + d), v(tb + 2 * d), v(tb + 2 * d + 1)))

    def rd(ks, t, bf):
        off = bf * 18432 + (ks >> 2) * 2048 + t * 1024
        return ["ds_read_b64_tr_b16 %s, %s offset:%d" % (v(WF(ks, t), 2), v(vRB[ks & 3]), off),
                "ds_read_b64_tr_b16 %s, %s offset:%d" % (v(WF(ks, t) + 2, 2), v(vRB[ks & 3]), off + 256)]

    def epi_ops(A, typ):
        ops = []
        if typ == "g":
            for i in range(16):
                ops.append("v_mul_f32 %s, %s, %s" % (v(A + i), v(A + i), v(A + 16 + i)))
            for j in range(8):
                ops.append("v_cvt_pk_bf16_f32 %s, %s, %s" % (v(A + j), v(A + 2 * j), v(A + 2 * j + 1)))
            ops.append("buffer_store_dwordx4 %s, %s, %s, %s offen %s" % (v(A, 4), v(vHOFF), s(rWS, 4), s(sEP), st_flag))
            ops.append("buffer_store_dwordx4 %s, %s, %s, %s offen offset:512 %s" % (v(A + 4, 4), v(vHOFF), s(rWS, 4), s(sEP), st_flag))
        else:
            for t in range(2):
                B = A + 16 * t
                for j in range(8):
                    ops.append("v_cvt_pk_bf16_f32 %s, %s, %s" % (v(B + j), v(B + 2 * j), v(B + 2 * j + 1)))
                ops.append("buffer_store_dwordx4 %s, %s, %s, %s offen offset:%d %s" % (v(B, 4), v(vQOFF), s(rWS, 4), s(sEP), 2048 * t, st_flag))
                ops.append("buffer_store_dwordx4 %s, %s, %s, %s offen offset:%d %s" % (v(B + 4, 4), v(vQOFF), s(rWS, 4), s(sEP), 2048 * t + 1024, st_flag))
        return ops

    def body(bf, ptyp):
        A = ACC[bf]
        ep = epi_ops(ACC[1 - bf], ptyp)
        for ks in range(36):
            nk = ks + D
            nbf = bf if nk < 36 else 1 - bf
            nk %= 36
            if nk % 12 == 0:
                a("s_barrier")
            a("s_waitcnt lgkmcnt(%d)" % (4 * D - 4))
            for t in range(2):
                c = "0" if ks == 0 else v(A + 16 * t, 16)
                a("v_mfma_f32_32x32x16_bf16 %s, %s, %s, %s" % (v(A + 16 * t, 16), v(WF(ks, t), 4), v(X(ks), 4), c))
                for l in rd(nk, t, nbf):
                    a(l)
                if ks >= 2 and ep:
                    a(ep.pop(0))
        assert not ep

    def set_ep():
        a("s_lshl_b32 %s, %s, 12" % (s(sT0), s(sC)))
        a("s_add_u32 %s, %s, %s" % (s(sT1), s(sT0), s(sQB)))
        a("s_add_u32 %s, %s, %s" % (s(sT0), s(sT0), s(sHB)))
        a("s_sub_u32 %s, %s, %d" % (s(sT0), s(sT0), NQKV * 4096))
        a("s_cmp_lt_u32 %s, %d" % (s(sC), NQKV))
        a("s_cselect_b32 %s, %s, %s" % (s(sEP), s(sT1), s(sT0)))

    a("s_mov_b32 %s, %s" % (s(sI), s(sNCH)))
    a("s_mov_b32 %s, %s" % (s(sC), s(sC0)))
    a("s_mov_b32 %s, %d" % (s(sEP), WS_BYTES))
    a("s_barrier")
    for ks in range(D):
        for t in range(2):
            for l in rd(ks, t, 0):
                a(l)
    a("s_branch L_k1_b0g")
    for bf in range(2):
        a.label("L_k1_b%dq" % bf)
        body(bf, "q")
        a("s_branch L_k1_after%d" % bf)
        a.label("L_k1_b%dg" % bf)
        body(bf, "g")
        a.label("L_k1_after%d" % bf)
        a("s_sub_u32 %s, %s, 1" % (s(sI), s(sI)))
        a("s_cmp_eq_u32 %s, 0" % s(sI))
        a("s_cbranch_scc1 L_k1_fin%d" % bf)
        set_ep()
        a("s_add_u32 %s, %s, 1" % (s(sC), s(sC)))
        a("s_cmp_le_u32 %s, %d" % (s(sC), NQKV))
        a("s_cbranch_scc1 L_k1_b%dq" % (1 - bf))
        a("s_branch L_k1_b%dg" % (1 - bf))
    for bf in range(2):
        a.label("L_k1_fin%d" % bf)
        set_ep()
        a("s_nop 7")
        a("s_nop 3")
        a("s_cbranch_scc1 L_k1_fin%dq" % bf)
        for l in epi_ops(ACC[bf], "g"):
            a(l)
        a("s_endpgm")
        a.label("L_k1_fin%dq" % bf)
        for l in epi_ops(ACC[bf], "q"):
            a(l)
        a("s_endpgm")

    a.label("L_k1_loader")
    a("s_sub_u32 %s, %s, 4" % (s(sWAVE), s(sWAVE)))
    a("v_lshrrev_b32 %s, 2, %s" % (v(vT[0]), v(vLANE)))
    a("v_and_b32 %s, 3, %s" % (v(vT[1]), v(vLANE)))
    a("v_lshlrev_b32 %s, 4, %s" % (v(vT[1]), v(vT[1])))
    a("v_mul_u32_u24 %s, 3456, %s" % (v(2), v(vT[0])))
    a("v_add_u32 %s, %s, %s" % (v(2), v(2), v(vT[1])))
    a("v_mul_u32_u24 %s, 9216, %s" % (v(3), v(vT[0])))
    a("v_add_u32 %s, %s, %s" % (v(3), v(3), v(vT[1])))
    a("s_mov_b32 %s, %s" % (s(sIC), s(sC0)))
    a("s_mov_b32 %s, 0" % s(sIG))
    a("s_mul_i32 %s, %s, %d" % (s(sLBEG), s(sWAVE), REG))
    a("s_add_u32 %s, %s, %d" % (s(sLEND), s(sLBEG), REG))
    a("s_mov_b32 %s, %s" % (s(sLB), s(sLBEG)))
    a("s_mul_i32 %s, %s, 3" % (s(sLAST), s(sNCH)))
    def issue_group():
        lq = a.newlabel("k1_iq"); le = a.newlabel("k1_ie")
        a("s_mul_i32 %s, %s, 12" % (s(sT0), s(sIG)))
        a("s_add_u32 %s, %s, %s" % (s(sT0), s(sT0), s(sWAVE)))
        a("s_cmp_lt_u32 %s, %d" % (s(sIC), NQKV))
        a("s_cbranch_scc1 %s" % lq)
        a("s_mul_i32 %s, %s, %d" % (s(sO0), s(sT0), 16 * 9216))
        a("s_lshl_b32 %s, %s, 6" % (s(sT1), s(sIC)))
        a("s_add_u32 %s, %s, %s" % (s(sO0), s(sO0), s(sT1)))
        a("s_sub_u32 %s, %s, %d" % (s(sO0), s(sO0), NQKV * 64))
        for st in range(3):
            a("s_add_u32 m0, %s, %d" % (s(sLB), st * 2048))
            a("s_nop 0")
            a("buffer_load_dwordx4 v3, %s, %s offen lds" % (s(rWG, 4), s(sO0)))
            a("s_add_u32 m0, %s, %d" % (s(sLB), st * 2048 + 1024))
            a("s_nop 0")
            a("buffer_load_dwordx4 v3, %s, %s offen lds" % (s(rWU, 4), s(sO0)))
            if st < 2:
                a("s_add_u32 %s, %s, %d" % (s(sO0), s(sO0), 64 * 9216))
        a("s_branch %s" % le)
        a.label(lq)
        a("s_mul_i32 %s, %s, %d" % (s(sO0), s(sT0), 16 * 3456))
        a("s_lshl_b32 %s, %s, 7" % (s(sT1), s(sIC)))
        a("s_add_u32 %s, %s, %s" % (s(sO0), s(sO0), s(sT1)))
        for st in range(3):
            a("s_add_u32 m0, %s, %d" % (s(sLB), st * 2048))
            a("s_add_u32 %s, %s, 64" % (s(sO1), s(sO0)))
            a("buffer_load_dwordx4 v2, %s, %s offen lds" % (s(rWQ, 4), s(sO0)))
            a("s_add_u32 m0, %s, %d" % (s(sLB), st * 2048 + 1024))
            a("s_nop 0")
            a("buffer_load_dwordx4 v2, %s, %s offen lds" % (s(rWQ, 4), s(sO1)))
            if st < 2:
                a("s_add_u32 %s, %s, %d" % (s(sO0), s(sO0), 64 * 3456))
        a.label(le)
        a("s_add_u32 %s, %s, 6144" % (s(sLB), s(sLB)))
        a("s_cmp_eq_u32 %s, %s" % (s(sLB), s(sLEND)))
        a("s_cselect_b32 %s, %s, %s" % (s(sLB), s(sLBEG), s(sLB)))
        a("s_add_u32 %s, %s, 1" % (s(sIG), s(sIG)))
        a("s_cmp_eq_u32 %s, 3" % s(sIG))
        a("s_cselect_b32 %s, 0, %s" % (s(sIG), s(sIG)))
        a("s_addc_u32 %s, %s, 0" % (s(sIC), s(sIC)))
    a("s_barrier")
    a("s_mov_b32 %s, 0" % s(sG))
    a.label("L_k1_l0")
    issue_group()
    a("s_add_u32 %s, %s, 1" % (s(sG), s(sG)))
    a("s_cmp_lt_u32 %s, 6" % s(sG))
    a("s_cbranch_scc1 L_k1_l0")
    a("s_waitcnt vmcnt(30)")
    a("s_barrier")
    a("s_waitcnt vmcnt(24)")
    a("s_barrier")
    a.label("L_k1_l1")
    a("s_waitcnt vmcnt(18)")
    a("s_barrier")
    issue_group()
    a("s_add_u32 %s, %s, 1" % (s(sG), s(sG)))
    a("s_cmp_lt_u32 %s, %s" % (s(sG), s(sLAST)))
    a("s_cbranch_scc1 L_k1_l1")
    for n in (18, 12, 6, 0):
        a("s_waitcnt vmcnt(%d)" % n)
        a("s_barrier")
    a.label("L_k1_end")
    a("s_endpgm")
    return a.text(), kdesc(K1_NAME, 256, 64)
```

```python
from common import *
import math, struct

K2_NAME = "g2_kernel"
RING = 21504
AB = 4 * RING
LCNT = AB + 65536
K2_LDS = LCNT + 64

def fbits(x):
    return struct.unpack("<I", struct.pack("<f", x))[0]

def gen_k2(opt):
    a = Asm()
    a.raw(khead(K2_NAME))
    sX, sWO, sWD, sOUT, sDBG, sWS = 4, 6, 8, 10, 12, 14
    rX, rWO, rWD, rOUT, rWS = 16, 20, 24, 28, 32
    sWAVE, sXC, sSLOT = 36, 37, 38
    sT0, sT1, sT2, sT3 = 39, 40, 41, 42
    vLANE = 1
    vT = [8, 9, 10, 11, 12, 13, 14, 15]

    a("s_cmp_ge_u32 s2, 256")
    a("s_cbranch_scc1 L_k2_end")
    a("s_load_dwordx2 %s, s[0:1], %d" % (s(sX, 2), KA_X))
    a("s_load_dwordx2 %s, s[0:1], %d" % (s(sWO, 2), KA_WO))
    a("s_load_dwordx4 %s, s[0:1], %d" % (s(sWD, 4), KA_WD))
    a("s_load_dwordx4 %s, s[0:1], %d" % (s(sDBG, 4), KA_DBG))
    a("v_and_b32 %s, 63, v0" % v(vLANE))
    a("v_lshrrev_b32 %s, 6, v0" % v(vT[0]))
    a("s_and_b32 %s, s2, 7" % s(sXC))
    a("s_lshr_b32 %s, s2, 3" % s(sSLOT))
    a("v_readfirstlane_b32 %s, %s" % (s(sWAVE), v(vT[0])))
    a("s_waitcnt lgkmcnt(0)")
    srd(a, rX, sX, 2048 * 576 * 2)
    srd(a, rWO, sWO, 576 * 576 * 2)
    srd(a, rWD, sWD, 4608 * 576 * 2)
    srd(a, rOUT, sOUT, 2048 * 576 * 2)
    srd(a, rWS, sWS, WS_BYTES)
    a("s_cmp_ge_u32 %s, 4" % s(sWAVE))
    a("s_cbranch_scc1 L_k2_attn")

    sRB64, sCT, sN0, sHO, sWOFF, sRING, sCNT, sSPIN = 44, 45, 46, 47, 48, 49, 50, 51
    vDO = [2, 3, 4, 5, 6]
    vTR, vH = 7, 8
    vPOLL, vPOFF = 9, 10
    T = [11, 12, 13, 14, 15]
    ACC0, HF0, WF0 = 16, 96, 160
    def ACC(rt, nt): return ACC0 + rt * 20 + nt * 4
    def HF(i, rt): return HF0 + (i % 4) * 16 + rt * 4
    def WF(i, nt): return WF0 + (i & 1) * 20 + nt * 4
    a("s_and_b32 %s, %s, 3" % (s(sT0), s(sSLOT)))
    a("s_lshl_b32 %s, %s, 2" % (s(sRB64), s(sXC)))
    a("s_add_u32 %s, %s, %s" % (s(sRB64), s(sRB64), s(sT0)))
    a("s_lshr_b32 %s, %s, 2" % (s(sCT), s(sSLOT)))
    a("s_mul_i32 %s, %s, 72" % (s(sN0), s(sCT)))
    a("s_min_u32 %s, %s, 496" % (s(sN0), s(sN0)))
    a("s_mul_i32 %s, %s, %d" % (s(sHO), s(sRB64), NKS))
    a("s_add_u32 %s, %s, %s" % (s(sHO), s(sHO), s(sWAVE)))
    a("s_lshl_b32 %s, %s, 12" % (s(sHO), s(sHO)))
    a("s_add_u32 %s, %s, %d" % (s(sHO), s(sHO), H_BASE))
    a("s_mul_i32 %s, %s, %d" % (s(sWOFF), s(sWAVE), 32 * 1152))
    a("s_lshl_b32 %s, %s, 1" % (s(sT0), s(sN0)))
    a("s_add_u32 %s, %s, %s" % (s(sWOFF), s(sWOFF), s(sT0)))
    a("s_mul_i32 %s, %s, %d" % (s(sRING), s(sWAVE), RING))
    a("v_lshlrev_b32 %s, 4, %s" % (v(vH), v(vLANE)))
    for q in range(5):
        a("v_add_u32 %s, %d, %s" % (v(T[0]), 64 * q, v(vLANE)))
        a("v_mul_u32_u24 %s, 6554, %s" % (v(T[1]), v(T[0])))
        a("v_lshrrev_b32 %s, 16, %s" % (v(T[1]), v(T[1])))
        a("v_mul_u32_u24 %s, 992, %s" % (v(T[1]), v(T[1])))
        a("v_lshl_add_u32 %s, %s, 4, %s" % (v(vDO[q]), v(T[0]), v(T[1])))

    def dma(i, q, part):
        r = rWD if part == 0 else rWO
        return ["s_add_u32 m0, %s, %d" % (s(sRING), (i % 4) * 5120 + q * 1024),
                "s_nop 0",
                "buffer_load_dwordx4 %s, %s, %s offen lds" % (v(vDO[q]), s(r, 4), s(sWOFF))]
    def hld(i, rt, part):
        return "buffer_load_dwordx4 %s, %s, %s, %s offen offset:%d%s" % (v(HF(i, rt), 4), v(vH), s(rWS, 4), s(sHO), rt * 1024, " sc1" if part else "")
    def adv():
        return ["s_add_u32 %s, %s, %d" % (s(sHO), s(sHO), 4 * 4096),
                "s_add_u32 %s, %s, %d" % (s(sWOFF), s(sWOFF), 4 * 32 * 1152)]
    def trd(i, nt, hf):
        return "ds_read_b64_tr_b16 %s, %s offset:%d" % (v(WF(i, nt) + 2 * hf, 2), v(vTR), (i % 4) * 5120 + nt * 32 + hf * 1280)

    for i in range(4):
        for q in range(5):
            for l in dma(i, q, 0): a(l)
        for rt in range(4):
            a(hld(i, rt, 0))
        for l in adv(): a(l)
    a("v_lshrrev_b32 %s, 5, %s" % (v(T[0]), v(vLANE)))
    a("v_lshlrev_b32 %s, 4, %s" % (v(T[0]), v(T[0])))
    a("v_bfe_u32 %s, %s, 2, 3" % (v(T[1]), v(vLANE)))
    a("v_add_u32 %s, %s, %s" % (v(T[0]), v(T[0]), v(T[1])))
    a("v_mul_u32_u24 %s, 160, %s" % (v(T[0]), v(T[0])))
    a("v_and_b32 %s, 3, %s" % (v(T[1]), v(vLANE)))
    a("v_lshl_add_u32 %s, %s, 3, %s" % (v(T[0]), v(T[1]), v(T[0])))
    a("v_add_u32 %s, %s, %s" % (v(vTR), s(sRING), v(T[0])))
    a("s_lshl_b32 %s, %s, 5" % (s(sT0), s(sXC)))
    a("v_mov_b32 %s, %s" % (v(vPOFF), s(sT0)))
    a("v_mov_b32 %s, 0" % v(vPOLL))
    a("s_barrier")
    a("s_waitcnt vmcnt(31)")
    for nt in range(5):
        for hf in range(2):
            a(trd(0, nt, hf))

    def iteration(i, first, pf, part, vm, reads=True, extra=None):
        a("s_waitcnt vmcnt(%d) lgkmcnt(0)" % vm)
        if extra: extra()
        rds = [trd(i + 1, nt, hf) for nt in range(5) for hf in range(2)] if reads else []
        n = 0
        for rt in range(4):
            for nt in range(5):
                c = "0" if first else v(ACC(rt, nt), 4)
                a("v_mfma_f32_16x16x32_bf16 %s, %s, %s, %s" % (v(ACC(rt, nt), 4), v(WF(i, nt), 4), v(HF(i, rt), 4), c))
                if rt == 0 and pf:
                    for l in dma(i, nt, part): a(l)
                if rt >= 1 and rds:
                    a(rds.pop(0))
            if pf:
                a(hld(i, rt, part))
        if pf:
            for l in adv(): a(l)
        assert not rds

    for i in range(4):
        iteration(i, i == 0, True, 0, 22)
    a("s_mov_b32 %s, 7" % s(sCNT))
    a.label("L_k2_loop")
    a("s_cmp_lg_u32 %s, 1" % s(sCNT))
    a("s_cbranch_scc1 L_k2_nopoll")
    a("global_load_dword %s, %s, %s sc1" % (v(vPOLL), v(vPOFF), s(sDBG, 2)))
    a.label("L_k2_nopoll")
    for i in range(4):
        iteration(i, False, True, 0, 22)
    a("s_sub_u32 %s, %s, 1" % (s(sCNT), s(sCNT)))
    a("s_cmp_lg_u32 %s, 0" % s(sCNT))
    a("s_cbranch_scc1 L_k2_loop")
    def check_flag():
        a("v_readfirstlane_b32 %s, %s" % (s(sT0), v(vPOLL)))
        a("s_mov_b32 %s, 400000" % s(sSPIN))
        a("s_cmp_ge_u32 %s, 32" % s(sT0))
        a("s_cbranch_scc1 L_k2_ready")
        a.label("L_k2_spin")
        a("s_sleep 4")
        a("global_load_dword %s, %s, %s sc1" % (v(vPOLL), v(vPOFF), s(sDBG, 2)))
        a("s_waitcnt vmcnt(0)")
        a("v_readfirstlane_b32 %s, %s" % (s(sT0), v(vPOLL)))
        a("s_sub_u32 %s, %s, 1" % (s(sSPIN), s(sSPIN)))
        a("s_cmp_eq_u32 %s, 0" % s(sSPIN))
        a("s_cbranch_scc1 L_k2_ready")
        a("s_cmp_lt_u32 %s, 32" % s(sT0))
        a("s_cbranch_scc1 L_k2_spin")
        a.label("L_k2_ready")
        a("s_sub_u32 %s, %s, %d" % (s(sWOFF), s(sWOFF), 144 * 32 * 1152))
    iteration(32, False, True, 1, 22, extra=check_flag)
    for i in (33, 34, 35):
        iteration(i, False, True, 1, 22)
    def last_fix():
        a("s_cmp_ge_u32 %s, 2" % s(sWAVE))
        a("s_cselect_b32 %s, %d, %s" % (s(sHO), WS_BYTES, s(sHO)))
    iteration(36, False, True, 1, 22, extra=last_fix)
    iteration(37, False, False, 0, 22)
    iteration(38, False, False, 0, 13)
    iteration(39, False, False, 0, 4)
    XR = WF0 + 20
    vLA = [2, 3, 4]
    vGO = [5, 6, 7]
    vGO = [5, 6, 9]
    def epi_addr():
        a("s_mul_i32 %s, %s, 72" % (s(sT0), s(sCT)))
        a("s_sub_u32 %s, %s, %s" % (s(sT1), s(sT0), s(sN0)))
        a("s_lshl_b32 %s, %s, 2" % (s(sT1), s(sT1)))
        a("s_mul_i32 %s, %s, %d" % (s(sT2), s(sRB64), 64 * 1152))
        a("s_lshl_b32 %s, %s, 1" % (s(sT0), s(sT0)))
        a("s_add_u32 %s, %s, %s" % (s(sT2), s(sT2), s(sT0)))
        for r in range(3):
            a("v_add_u32 %s, %d, v0" % (v(T[0]), 256 * r))
            a("v_mul_u32_u24 %s, 7282, %s" % (v(T[1]), v(T[0])))
            a("v_lshrrev_b32 %s, 16, %s" % (v(T[1]), v(T[1])))
            a("v_mul_u32_u24 %s, 9, %s" % (v(T[2]), v(T[1])))
            a("v_sub_u32 %s, %s, %s" % (v(T[2]), v(T[0]), v(T[2])))
            a("v_mul_u32_u24 %s, 336, %s" % (v(T[3]), v(T[1])))
            a("v_lshl_add_u32 %s, %s, 5, %s" % (v(T[3]), v(T[2]), v(T[3])))
            a("v_add_u32 %s, %s, %s" % (v(vLA[r]), s(sT1), v(T[3])))
            a("v_mul_u32_u24 %s, 1152, %s" % (v(T[3]), v(T[1])))
            a("v_lshl_add_u32 %s, %s, 4, %s" % (v(T[3]), v(T[2]), v(T[3])))
            a("v_add_u32 %s, %s, %s" % (v(vGO[r]), s(sT2), v(T[3])))
        for r in range(3):
            a("buffer_load_dwordx4 %s, %s, %s, 0 offen" % (v(XR + 4 * r, 4), v(vGO[r]), s(rX, 4)))
    iteration(40, False, False, 0, 0, reads=False, extra=epi_addr)
    a("v_and_b32 %s, 15, %s" % (v(T[0]), v(vLANE)))
    a("v_mul_u32_u24 %s, 336, %s" % (v(T[0]), v(T[0])))
    a("v_lshrrev_b32 %s, 4, %s" % (v(T[1]), v(vLANE)))
    a("v_lshl_add_u32 %s, %s, 4, %s" % (v(T[0]), v(T[1]), v(T[0])))
    a("v_add_u32 %s, %s, %s" % (v(T[0]), s(sRING), v(T[0])))
    a("s_nop 3")
    for rt in range(4):
        for nt in range(5):
            a("ds_write_b128 %s, %s offset:%d" % (v(T[0]), v(ACC(rt, nt), 4), rt * 16 * 336 + nt * 64))
    a("s_waitcnt lgkmcnt(0)")
    a("s_barrier")
    for r in range(3):
        if r == 2:
            a("s_cmp_lg_u32 %s, 0" % s(sWAVE))
            a("s_cbranch_scc1 L_k2_end")
        B = 16 + 32 * r
        for w in range(4):
            a("ds_read_b128 %s, %s offset:%d" % (v(B + 8 * w, 4), v(vLA[r]), w * RING))
            a("ds_read_b128 %s, %s offset:%d" % (v(B + 8 * w + 4, 4), v(vLA[r]), w * RING + 16))
        a("s_waitcnt vmcnt(%d)" % (2 - r + r))
        xr = XR + 4 * r
        U = 112
        for d in range(4):
            a("v_lshlrev_b32 %s, 16, %s" % (v(U + 2 * d), v(xr + d)))
            a("v_and_b32 %s, 0xffff0000, %s" % (v(U + 2 * d + 1), v(xr + d)))
        a("s_waitcnt lgkmcnt(0)")
        for e in range(8):
            a("v_add_f32 %s, %s, %s" % (v(B + e), v(B + e), v(B + 8 + e)))
            a("v_add_f32 %s, %s, %s" % (v(B + 16 + e), v(B + 16 + e), v(B + 24 + e)))
        for e in range(8):
            a("v_add_f32 %s, %s, %s" % (v(B + e), v(B + e), v(B + 16 + e)))
        for e in range(8):
            a("v_add_f32 %s, %s, %s" % (v(B + e), v(B + e), v(U + e)))
        for d in range(4):
            a("v_cvt_pk_bf16_f32 %s, %s, %s" % (v(B + d), v(B + 2 * d), v(B + 2 * d + 1)))
        a("buffer_store_dwordx4 %s, %s, %s, 0 offen" % (v(B, 4), v(vGO[r]), s(rOUT, 4)))
    a("s_endpgm")

    a.label("L_k2_attn")
    sA, sCG0, sSFT, sMIN, sOB, sC, sEX = 44, 45, 46, 47, 48, 49, 50
    sM = [52 + 2 * r for r in range(16)]
    sK = [84 + 2 * i for i in range(8)]
    vL16, vKB, vVB, vOOFF, vNINF, vMX, vMX2 = 2, 3, 4, 5, 6, 7, 8
    T = [9, 10, 11, 12, 13, 14, 15]
    S0, O0, Q0, KF0, VF0 = 16, 160, 176, 192, 208
    def SR(t): return S0 + 16 * t
    a("s_sub_u32 %s, %s, 4" % (s(sA), s(sWAVE)))
    a("s_mul_i32 %s, %s, 18" % (s(sT0), s(sSLOT)))
    a("s_lshr_b32 %s, %s, 4" % (s(sCG0), s(sT0)))
    a("s_and_b32 %s, %s, 15" % (s(sSFT), s(sT0)))
    a("v_lshlrev_b32 %s, 4, %s" % (v(vL16), v(vLANE)))
    for j in range(4):
        a("s_lshl_b32 %s, %s, 3" % (s(sT0), s(sXC)))
        a("s_lshl_b32 %s, %s, 2" % (s(sT1), s(sA)))
        a("s_add_u32 %s, %s, %d" % (s(sT1), s(sT1), j))
        a("s_add_u32 %s, %s, %s" % (s(sT0), s(sT0), s(sT1)))
        a("s_sub_i32 %s, %s, 8" % (s(sT0), s(sT0)))
        a("s_max_i32 %s, %s, 0" % (s(sT0), s(sT0)))
        a("s_mul_i32 %s, %s, 108" % (s(sT0), s(sT0)))
        a("s_add_u32 %s, %s, %s" % (s(sT0), s(sT0), s(sCG0)))
        a("s_lshl_b32 %s, %s, 10" % (s(sT0), s(sT0)))
        a("s_add_u32 %s, %s, %d" % (s(sT2), s(sT0), QKV_BASE + 36 * 1024))
        a("s_add_u32 %s, %s, %d" % (s(sT3), s(sT0), QKV_BASE + 72 * 1024))
        a("s_lshl_b32 %s, %s, 12" % (s(sT1), s(sT1)))
        a("s_add_u32 m0, %s, %d" % (s(sT1), AB))
        a("s_nop 0")
        a("buffer_load_dwordx4 %s, %s, %s offen lds" % (v(vL16), s(rWS, 4), s(sT2)))
        a("buffer_load_dwordx4 %s, %s, %s offen offset:1024 lds" % (v(vL16), s(rWS, 4), s(sT2)))
        a("s_add_u32 m0, %s, %d" % (s(sT1), AB + 2048))
        a("s_nop 0")
        a("buffer_load_dwordx4 %s, %s, %s offen lds" % (v(vL16), s(rWS, 4), s(sT3)))
        a("buffer_load_dwordx4 %s, %s, %s offen offset:1024 lds" % (v(vL16), s(rWS, 4), s(sT3)))
    a("s_lshl_b32 %s, %s, 3" % (s(sT0), s(sXC)))
    a("s_lshl_b32 %s, %s, 1" % (s(sT1), s(sA)))
    a("s_add_u32 %s, %s, %s" % (s(sT0), s(sT0), s(sT1)))
    a("s_mul_i32 %s, %s, 108" % (s(sT0), s(sT0)))
    a("s_add_u32 %s, %s, %s" % (s(sT0), s(sT0), s(sCG0)))
    a("s_lshl_b32 %s, %s, 10" % (s(sT0), s(sT0)))
    a("s_add_u32 %s, %s, %d" % (s(sT0), s(sT0), QKV_BASE))
    a("s_add_u32 %s, %s, %d" % (s(sT1), s(sT0), 108 * 1024))
    for qt in range(2):
        for p in range(2):
            a("buffer_load_dwordx4 %s, %s, %s, %s offen offset:%d" % (v(Q0 + 8 * qt + 4 * p, 4), v(vL16), s(rWS, 4), s(sT0 + qt), 1024 * p))
    a("v_lshrrev_b32 %s, 5, %s" % (v(T[0]), v(vLANE)))
    a("v_lshlrev_b32 %s, 2, %s" % (v(T[0]), v(T[0])))
    a("v_and_b32 %s, 31, %s" % (v(T[1]), v(vLANE)))
    a("v_sub_u32 %s, %s, %s" % (v(T[2]), v(T[1]), v(T[0])))
    for r in range(16):
        a("v_cmp_le_i32 %s, %d, %s" % (s(sM[r], 2), (r & 3) + 8 * (r >> 2), v(T[2])))
    a("v_subrev_u32 %s, %s, %s" % (v(T[2]), s(sSFT), v(T[0])))
    for p in range(2):
        for dw in range(4):
            a("v_add_u32 %s, %d, %s" % (v(T[3]), 16 * p + 2 * (dw & 1) + 8 * (dw >> 1), v(T[2])))
            a("v_cmp_gt_u32 %s, 18, %s" % (s(sK[4 * p + dw], 2), v(T[3])))
    a("s_lshl_b32 %s, %s, 13" % (s(sT2), s(sA)))
    a("s_add_u32 %s, %s, %d" % (s(sT2), s(sT2), AB))
    a("v_add_u32 %s, %s, %s" % (v(vKB), s(sT2), v(vL16)))
    a("v_bfe_u32 %s, %s, 4, 1" % (v(T[3]), v(vLANE)))
    a("v_lshlrev_b32 %s, 10, %s" % (v(T[3]), v(T[3])))
    a("v_and_b32 %s, 1, %s" % (v(T[4]), v(vLANE)))
    a("v_lshl_add_u32 %s, %s, 9, %s" % (v(T[3]), v(T[4]), v(T[3])))
    a("v_bfe_u32 %s, %s, 2, 2" % (v(T[4]), v(vLANE)))
    a("v_add_u32 %s, %s, %s" % (v(T[4]), v(T[4]), v(T[0])))
    a("v_lshl_add_u32 %s, %s, 4, %s" % (v(T[3]), v(T[4]), v(T[3])))
    a("v_bfe_u32 %s, %s, 1, 1" % (v(T[4]), v(vLANE)))
    a("v_lshl_add_u32 %s, %s, 3, %s" % (v(T[3]), v(T[4]), v(T[3])))
    a("v_add_u32 %s, %s, %s" % (v(vVB), s(sT2), v(T[3])))
    a("v_bfe_u32 %s, %s, 4, 1" % (v(T[3]), v(vLANE)))
    a("v_lshlrev_b32 %s, 10, %s" % (v(T[3]), v(T[3])))
    a("v_lshl_add_u32 %s, %s, 6, %s" % (v(T[3]), v(T[0]), v(T[3])))
    a("v_and_b32 %s, 15, %s" % (v(T[4]), v(vLANE)))
    a("v_lshl_add_u32 %s, %s, 4, %s" % (v(vOOFF), v(T[4]), v(T[3])))
    a("s_lshl_b32 %s, %s, 2" % (s(sOB), s(sXC)))
    a("s_add_u32 %s, %s, %s" % (s(sOB), s(sOB), s(sA)))
    a("s_mul_i32 %s, %s, %d" % (s(sOB), s(sOB), NKS * 4096))
    a("s_add_u32 %s, %s, %d" % (s(sOB), s(sOB), H_BASE + 144 * 4096))
    a("v_mov_b32 %s, 0xff800000" % v(vNINF))
    a("s_mov_b32 %s, 0x%x" % (s(sC), fbits(18 ** -0.5 * math.log2(math.e))))
    a("s_cmp_ge_u32 %s, 6" % s(sSFT))
    a("s_cselect_b32 %s, 0, 1032" % s(sT0))
    a("s_lshl_b32 %s, %s, 14" % (s(sT1), s(sA)))
    a("s_add_u32 %s, %s, %s" % (s(sT0), s(sT0), s(sT1)))
    a("s_add_u32 %s, %s, %d" % (s(sT0), s(sT0), AB + 2048))
    a("v_add_u32 %s, %s, %s" % (v(T[3]), s(sT0), v(vL16)))
    a("v_mov_b32 %s, 0x3f803f80" % v(T[4]))
    a("v_mov_b32 %s, %d" % (v(T[5]), LCNT))
    a("v_mov_b32 %s, 0" % v(T[6]))
    a("s_waitcnt vmcnt(0)")
    for j in range(4):
        a("ds_write_b32 %s, %s offset:%d" % (v(T[3]), v(T[4]), j * 4096))
    a("ds_write_b32 %s, %s" % (v(T[5]), v(T[6])))
    for qt in range(2):
        for i in range(8):
            a("v_cndmask_b32 %s, 0, %s, %s" % (v(Q0 + 8 * qt + i), v(Q0 + 8 * qt + i), s(sK[i], 2)))
    a("s_waitcnt lgkmcnt(0)")
    a("s_barrier")
    for qt in range(2):
        Q = Q0 + 8 * qt
        def krd(t):
            for p in range(2):
                a("ds_read_b128 %s, %s offset:%d" % (v(KF0 + 8 * (t & 1) + 4 * p, 4), v(vKB), (qt + t) * 4096 + 1024 * p))
        def vrd(t):
            for hf in range(2):
                for aa in range(2):
                    a("ds_read_b64_tr_b16 %s, %s offset:%d" % (v(VF0 + 8 * (t & 1) + 4 * hf + 2 * aa, 2), v(vVB), (qt + t) * 4096 + 2048 + hf * 256 + aa * 128))
        krd(0)
        for t in range(9):
            if t < 8:
                krd(t + 1)
                a("s_waitcnt lgkmcnt(2)")
            else:
                a("s_waitcnt lgkmcnt(0)")
            kf = KF0 + 8 * (t & 1)
            a("v_mfma_f32_32x32x16_bf16 %s, %s, %s, 0" % (v(SR(t), 16), v(kf, 4), v(Q, 4)))
            a("v_mfma_f32_32x32x16_bf16 %s, %s, %s, %s" % (v(SR(t), 16), v(kf + 4, 4), v(Q + 4, 4), v(SR(t), 16)))
        vrd(0)
        vrd(1)
        for r in range(16):
            a("v_cndmask_b32 %s, %s, %s, %s" % (v(SR(0) + r), v(SR(0) + r), v(vNINF), s(sM[r], 2)))
        for r in range(16):
            a("v_cndmask_b32 %s, %s, %s, %s" % (v(SR(8) + r), v(vNINF), v(SR(8) + r), s(sM[r], 2)))
        lskip = a.newlabel("k2_nofix")
        a("s_cmp_lg_u32 %s, 0" % s(sXC))
        a("s_cbranch_scc1 %s" % lskip)
        a("s_lshl_b32 %s, %s, 1" % (s(sMIN), s(sA)))
        a("s_sub_u32 %s, %d, %s" % (s(sMIN), 8 - qt, s(sMIN)))
        for t in range(8):
            a("s_cmp_le_u32 %s, %d" % (s(sMIN), t))
            a("s_cbranch_scc1 %s" % lskip)
            for r in range(16):
                a("v_mov_b32 %s, %s" % (v(SR(t) + r), v(vNINF)))
        a.label(lskip)
        a("v_max_f32 %s, %s, %s" % (v(vMX), v(S0), v(S0 + 1)))
        a("v_max_f32 %s, %s, %s" % (v(vMX2), v(S0 + 2), v(S0 + 3)))
        for i in range(4, 144, 4):
            a("v_max3_f32 %s, %s, %s, %s" % (v(vMX), v(S0 + i), v(S0 + i + 1), v(vMX)))
            a("v_max3_f32 %s, %s, %s, %s" % (v(vMX2), v(S0 + i + 2), v(S0 + i + 3), v(vMX2)))
        a("v_max_f32 %s, %s, %s" % (v(vMX), v(vMX), v(vMX2)))
        a("v_mov_b32 %s, %s" % (v(vMX2), v(vMX)))
        a("s_nop 1")
        a("v_permlane32_swap_b32 %s, %s" % (v(vMX), v(vMX2)))
        a("s_nop 1")
        a("v_max_f32 %s, %s, %s" % (v(vMX), v(vMX), v(vMX2)))
        a("v_mul_f32 %s, %s, %s" % (v(vMX), s(sC), v(vMX)))
        for t in range(9):
            R = SR(t)
            for r in range(16):
                a("v_fma_f32 %s, %s, %s, -%s" % (v(R + r), v(R + r), s(sC), v(vMX)))
            for r in range(16):
                a("v_exp_f32 %s, %s" % (v(R + r), v(R + r)))
            a("s_nop 0")
            for j in range(8):
                a("v_cvt_pk_bf16_f32 %s, %s, %s" % (v(R + j), v(R + 2 * j), v(R + 2 * j + 1)))
            a("s_waitcnt lgkmcnt(%d)" % (4 if t < 8 else 0))
            a("s_nop 0")
            vf = VF0 + 8 * (t & 1)
            c = "0" if t == 0 else v(O0, 16)
            a("v_mfma_f32_32x32x16_bf16 %s, %s, %s, %s" % (v(O0, 16), v(vf, 4), v(R, 4), c))
            a("v_mfma_f32_32x32x16_bf16 %s, %s, %s, %s" % (v(O0, 16), v(vf + 4, 4), v(R + 4, 4), v(O0, 16)))
            if t + 2 < 9:
                vrd(t + 2)
            elif t == 7:
                pass
        a("s_nop 15")
        a("s_cmp_ge_u32 %s, 6" % s(sSFT))
        a("s_cselect_b64 %s, -1, 0" % s(sEX, 2))
        a("v_cndmask_b32 %s, %s, %s, %s" % (v(T[0]), v(O0 + 12), v(O0), s(sEX, 2)))
        a("v_rcp_f32 %s, %s" % (v(T[0]), v(T[0])))
        a("s_nop 0")
        for r in range(16):
            a("v_mul_f32 %s, %s, %s" % (v(O0 + r), v(O0 + r), v(T[0])))
        for j in range(8):
            a("v_cvt_pk_bf16_f32 %s, %s, %s" % (v(O0 + j), v(O0 + 2 * j), v(O0 + 2 * j + 1)))
        for p in range(2):
            a("s_add_u32 %s, %s, %d" % (s(sT0), s(sCG0), p))
            a("s_lshr_b32 %s, %s, 1" % (s(sT1), s(sT0)))
            a("s_lshl_b32 %s, %s, 12" % (s(sT1), s(sT1)))
            a("s_and_b32 %s, %s, 1" % (s(sT0), s(sT0)))
            a("s_lshl_b32 %s, %s, 9" % (s(sT0), s(sT0)))
            a("s_add_u32 %s, %s, %s" % (s(sT0), s(sT0), s(sT1)))
            a("s_add_u32 %s, %s, %s" % (s(sT0), s(sT0), s(sOB)))
            for dw in range(4):
                ls = a.newlabel("k2_ost")
                a("s_mov_b64 exec, %s" % s(sK[4 * p + dw], 2))
                a("s_cbranch_execz %s" % ls)
                a("buffer_store_dword %s, %s, %s, %s offen offset:%d sc1" % (v(O0 + 4 * p + dw), v(vOOFF), s(rWS, 4), s(sT0), qt * 2048 + dw * 4))
                a.label(ls)
            a("s_mov_b64 exec, -1")
    a("s_waitcnt vmcnt(0)")
    a("v_mov_b32 %s, %d" % (v(T[0]), LCNT))
    a("v_mov_b32 %s, 1" % v(T[1]))
    a("s_mov_b64 exec, 1")
    a("ds_add_rtn_u32 %s, %s, %s" % (v(T[2]), v(T[0]), v(T[1])))
    a("s_waitcnt lgkmcnt(0)")
    a("v_readfirstlane_b32 %s, %s" % (s(sT0), v(T[2])))
    a("s_lshl_b32 %s, %s, 5" % (s(sT1), s(sXC)))
    a("v_mov_b32 %s, %s" % (v(T[0]), s(sT1)))
    a("s_cmp_lg_u32 %s, 3" % s(sT0))
    a("s_cbranch_scc1 L_k2_end")
    a("global_atomic_add %s, %s, %s sc1" % (v(T[0]), v(T[1]), s(sDBG, 2)))
    a.label("L_k2_end")
    a("s_endpgm")
    return a.text(), kdesc(K2_NAME, 256, 102)
```

```python
import sys, json
from common import *
from k1 import *
from k2 import *

HEADER = open("parallel_sum__sliding_block__glu_gated_bilinear__prompt.s.ref").read().split("; Override launch geometry")[0]

def generate(opt):
    t1, d1 = gen_k1(opt)
    t2, d2 = gen_k2(opt)
    out = HEADER
    out += "; @launch kernel=%s grid=(256,1,1) block=(512,1,1) lds=%d\n" % (K1_NAME, K1_LDS)
    out += "; @launch kernel=%s grid=(256,1,1) block=(512,1,1) lds=%d\n" % (K2_NAME, K2_LDS)
    out += '.amdgcn_target "amdgcn-amd-amdhsa--gfx950"\n'
    out += t1 + t2 + 'L_code_end:\n' + d1 + d2
    return out

if __name__ == "__main__":
    path = sys.argv[1] if len(sys.argv) > 1 else "parallel_sum__sliding_block__glu_gated_bilinear__prompt.s"
    opt = json.loads(sys.argv[2]) if len(sys.argv) > 2 else {}
    open(path, "w").write(generate(opt))
    print("wrote", path)
```

```python
class Asm:
    def __init__(self):
        self.lines = []
        self.uid = 0
    def __call__(self, s):
        self.lines.append("    " + s)
    def label(self, l):
        self.lines.append(l + ":")
    def comment(self, c):
        self.lines.append("    ; " + c)
    def raw(self, s):
        self.lines.append(s)
    def newlabel(self, p):
        self.uid += 1
        return "L_%s_%d" % (p, self.uid)
    def text(self):
        return "\n".join(self.lines) + "\n"

def v(a, n=1):
    return "v%d" % a if n == 1 else "v[%d:%d]" % (a, a + n - 1)
def s(a, n=1):
    return "s%d" % a if n == 1 else "s[%d:%d]" % (a, a + n - 1)

S, D, F, H, DH, W = 2048, 576, 4608, 32, 18, 256
KA_X, KA_WQKV, KA_WO, KA_BX, KA_WG, KA_WU, KA_WD, KA_OUT, KA_DBG, KA_WS = [8 * i for i in range(10)]
NKS = 168
H_BASE = 0
NRT = 26
H_BYTES = NRT * NKS * 5120
QKV_BASE = H_BYTES
QKV_BYTES = 64 * 108 * 1024
FL_BASE = QKV_BASE + QKV_BYTES
WS_BYTES = FL_BASE + 24576

def srd(a, dst, base, nbytes):
    a("s_mov_b32 %s, %s" % (s(dst), s(base)))
    a("s_mov_b32 %s, %s" % (s(dst + 1), s(base + 1)))
    a("s_mov_b32 %s, %d" % (s(dst + 2), nbytes))
    a("s_mov_b32 %s, 0x00020000" % s(dst + 3))

def kdesc(name, nv, ns):
    acc = (nv + 3) // 4 * 4
    return """.section .rodata,"a"
.p2align 6
.amdhsa_kernel %s
  .amdhsa_next_free_vgpr %d
  .amdhsa_next_free_sgpr %d
  .amdhsa_accum_offset %d
  .amdhsa_group_segment_fixed_size 0
  .amdhsa_kernarg_size 80
  .amdhsa_user_sgpr_count 2
  .amdhsa_user_sgpr_kernarg_segment_ptr 1
  .amdhsa_system_sgpr_workgroup_id_x 1
  .amdhsa_float_denorm_mode_32 3
.end_amdhsa_kernel
""" % (name, nv, ns, acc)

def khead(name):
    return """.text
.globl %s
.p2align 8
.type %s,@function
%s:
""" % (name, name, name)

DIAG_BASE = 64 << 20
class Stamper:
    def __init__(self, a, on, vreg, stmp, kidx, scnt=None):
        self.a, self.on, self.v, self.s, self.k = a, on, vreg, stmp, kidx
        self.c = scnt if scnt is not None else stmp + 2
    def init(self):
        if not self.on: return
        self.a("v_mov_b32 %s, 0" % v(self.v))
        self.a("s_mov_b32 %s, 0" % s(self.c))
    def stamp(self, real=False):
        if not self.on: return
        a = self.a
        a("%s %s" % ("s_memrealtime" if real else "s_memtime", s(self.s, 2)))
        a("s_waitcnt lgkmcnt(0)")
        a("s_mov_b32 m0, %s" % s(self.c))
        a("s_nop 0")
        a("v_writelane_b32 %s, %s, m0" % (v(self.v), s(self.s)))
        a("s_add_u32 %s, %s, 1" % (s(self.c), s(self.c)))
    def dump(self, swave_full, sws, vtmp):
        if not self.on: return
        a = self.a
        a("s_mov_b64 exec, -1")
        a("s_lshl_b32 %s, s2, 3" % s(self.s))
        a("s_add_u32 %s, %s, %s" % (s(self.s), s(self.s), s(swave_full)))
        a("s_lshl_b32 %s, %s, 8" % (s(self.s), s(self.s)))
        a("s_add_u32 %s, %s, %d" % (s(self.s), s(self.s), DIAG_BASE + self.k * (1 << 20)))
        a("v_and_b32 %s, 63, v0" % v(vtmp))
        a("v_lshlrev_b32 %s, 2, %s" % (v(vtmp), v(vtmp)))
        a("v_add_u32 %s, %s, %s" % (v(vtmp), s(self.s), v(vtmp)))
        a("global_store_dword %s, %s, %s" % (v(vtmp), v(self.v), s(sws, 2)))
```

```python
from common import *

K1_NAME = "g1_kernel"
REG = 36864
SCR = 4 * REG
K1_LDS = SCR + 4 * 2048

def gen_k1(opt):
    a = Asm()
    a.raw(khead(K1_NAME))
    st_flag = opt.get("k1_store_flag", "")
    w_flag = opt.get("k1_w_flag", "")
    x_flag = opt.get("k1_x_flag", "")
    sX, sWQ, sWG, sWU, sWS = 4, 6, 8, 10, 12
    rX, rWQ, rWG, rWU, rWS = 16, 20, 24, 28, 32
    sWAVE, sRB, sCG, sROT, sW4 = 36, 37, 38, 39, 40
    sT0, sT1, sT2, sT3 = 41, 42, 43, 44
    sNQ, sNP, sQ0, sP0 = 45, 46, 47, 48
    sI, sNCH, sEP0, sEP1, sHB0, sHB1, sQB, sE2 = 49, 50, 51, 52, 53, 54, 55, 56
    sIC, sIG, sLB, sLEND, sLBEG, sG, sLAST, sO0, sKB, sPIT, sCOL = 49, 51, 52, 53, 54, 55, 56, 57, 58, 59, 60
    vLANE = 1
    vTR = [2, 3]
    vL16 = 4
    vT = [5, 6, 7, 8, 9, 10, 11, 12, 13, 14]
    X0 = 16
    ACC = [160, 192]
    WF0 = 224
    NF, PD = 8, 7
    def X(m, ks): return X0 + 8 * ks + 4 * m
    def WF(q): return WF0 + 4 * (q % NF)
    def TL(A, nt, m): return A + (m * 4 + nt) * 4

    a("s_cmp_ge_u32 s2, 256")
    a("s_cbranch_scc1 L_k1_end")
    st = Stamper(a, opt.get("diag", 0), 15, 64, 0)
    st.init(); st.stamp(True); st.stamp()
    a("s_load_dwordx4 %s, s[0:1], %d" % (s(4, 4), KA_X))
    a("s_load_dwordx4 %s, s[0:1], %d" % (s(8, 4), KA_WG))
    a("s_load_dwordx2 %s, s[0:1], %d" % (s(12, 2), KA_WS))
    a("s_load_dwordx2 %s, s[0:1], %d" % (s(68, 2), KA_WO))
    a("s_load_dwordx2 %s, s[0:1], %d" % (s(70, 2), KA_WD))
    a("v_and_b32 %s, 63, v0" % v(vLANE))
    a("v_lshrrev_b32 %s, 6, v0" % v(vT[0]))
    a("s_and_b32 %s, s2, 7" % s(sT0))
    a("s_lshr_b32 %s, s2, 3" % s(sT1))
    a("v_readfirstlane_b32 %s, %s" % (s(sWAVE), v(vT[0])))
    LR = opt.get("k1_lrb", 3)
    RBX, CGX = 1 << LR, 32 >> LR
    a("s_and_b32 %s, %s, %d" % (s(sT3), s(sT1), RBX - 1))
    a("s_lshr_b32 %s, %s, %d" % (s(sT1), s(sT1), LR))
    a("s_and_b32 %s, %s, %d" % (s(sT2), s(sT0), 16 // RBX - 1))
    a("s_lshr_b32 %s, %s, %d" % (s(sT0), s(sT0), 4 - LR))
    a("s_lshl_b32 %s, %s, %d" % (s(sRB), s(sT2), LR))
    a("s_add_u32 %s, %s, %s" % (s(sRB), s(sRB), s(sT3)))
    a("s_lshl_b32 %s, %s, %d" % (s(sCG), s(sT0), 5 - LR))
    a("s_add_u32 %s, %s, %s" % (s(sCG), s(sCG), s(sT1)))
    mr, mc = opt.get("k1_rot", {4: (1, 4), 3: (1, 2), 2: (2, 1)}[LR])
    a("s_mul_i32 %s, %s, %d" % (s(sT3), s(sT3), mr))
    a("s_mul_i32 %s, %s, %d" % (s(sT1), s(sT1), mc))
    a("s_add_u32 %s, %s, %s" % (s(sROT), s(sT3), s(sT1)))
    a("s_mul_i32 %s, %s, 57" % (s(sT0), s(sROT)))
    a("s_lshr_b32 %s, %s, 9" % (s(sT0), s(sT0)))
    a("s_mul_i32 %s, %s, 9" % (s(sT0), s(sT0)))
    a("s_sub_u32 %s, %s, %s" % (s(sROT), s(sROT), s(sT0)))
    a("s_mov_b32 %s, 1" % s(sNQ))
    a("s_mov_b32 %s, 5" % s(sNP))
    a("s_mov_b32 %s, %s" % (s(sQ0), s(sCG)))
    a("s_mul_i32 %s, %s, 5" % (s(sP0), s(sCG)))
    a("s_cmp_eq_u32 %s, 14" % s(sCG))
    a("s_cselect_b32 %s, 7, %s" % (s(sNQ), s(sNQ)))
    a("s_cselect_b32 %s, 1, %s" % (s(sNP), s(sNP)))
    a("s_cmp_eq_u32 %s, 15" % s(sCG))
    a("s_cselect_b32 %s, 6, %s" % (s(sNQ), s(sNQ)))
    a("s_cselect_b32 %s, 1, %s" % (s(sNP), s(sNP)))
    a("s_cselect_b32 %s, 21, %s" % (s(sQ0), s(sQ0)))
    a("s_cselect_b32 %s, 71, %s" % (s(sP0), s(sP0)))
    a("s_lshl_b32 %s, %s, 1" % (s(sNCH), s(sNP)))
    a("s_add_u32 %s, %s, %s" % (s(sNCH), s(sNCH), s(sNQ)))
    a("s_and_b32 %s, %s, 3" % (s(sW4), s(sWAVE)))
    a("v_lshrrev_b32 %s, 3, %s" % (v(vT[1]), v(vLANE)))
    a("v_and_b32 %s, 7, %s" % (v(vT[2]), v(vLANE)))
    a("v_mul_u32_u24 %s, 1152, %s" % (v(vT[0]), v(vT[1])))
    a("v_lshl_add_u32 %s, %s, 4, %s" % (v(vT[0]), v(vT[2]), v(vT[0])))
    a("v_add_u32 %s, %d, %s" % (v(vT[3]), 8 * 1152, v(vT[0])))
    a("s_lshl_b32 %s, %s, 7" % (s(sT0), s(sRB)))
    a("s_lshl_b32 %s, %s, 5" % (s(sT1), s(sW4)))
    a("s_add_u32 %s, %s, %s" % (s(sT0), s(sT0), s(sT1)))
    a("s_lshr_b32 %s, %s, 2" % (s(sT1), s(sWAVE)))
    a("s_lshl_b32 %s, %s, 4" % (s(sT1), s(sT1)))
    a("s_add_u32 %s, %s, %s" % (s(sT0), s(sT0), s(sT1)))
    a("s_mul_i32 %s, %s, 1152" % (s(sT0), s(sT0)))
    a("s_lshl_b32 %s, %s, 7" % (s(sT1), s(sROT)))
    a("s_waitcnt lgkmcnt(0)")
    srd(a, rX, sX, 2048 * 576 * 2)
    RAW = 176
    def RW(rg, i): return RAW + 8 * i + 4 * rg
    for i in range(9):
        a("s_add_u32 %s, %s, %s" % (s(sT2), s(sT0), s(sT1)))
        a("buffer_load_dwordx4 %s, %s, %s, %s offen %s" % (v(RW(0, i), 4), v(vT[0]), s(rX, 4), s(sT2), x_flag))
        a("buffer_load_dwordx4 %s, %s, %s, %s offen %s" % (v(RW(1, i), 4), v(vT[3]), s(rX, 4), s(sT2), x_flag))
        if i < 8:
            a("s_add_u32 %s, %s, 128" % (s(sT1), s(sT1)))
            a("s_cmp_eq_u32 %s, 1152" % s(sT1))
            a("s_cselect_b32 %s, 0, %s" % (s(sT1), s(sT1)))
    srd(a, rWQ, sWQ, 576 * 1728 * 2)
    srd(a, rWG, sWG, 576 * 4608 * 2)
    srd(a, rWU, sWU, 576 * 4608 * 2)
    srd(a, rWS, sWS, WS_BYTES)
    if opt.get("diag", 0) == 1: st.stamp()
    a("v_lshlrev_b32 %s, 4, %s" % (v(vL16), v(vLANE)))

    def layernorm(extra_vm, emit_piece, after_stats=None):
        def Fr(rg, i): return X0 + 16 * i + 8 * rg
        SA = [160, 162]
        SQ = [164, 166]
        for r in range(160, 168):
            a("v_mov_b32 %s, 0" % v(r))
        for i in range(9):
            for rg in range(2):
                a("s_waitcnt vmcnt(%d)" % (17 - 2 * i - rg + extra_vm))
                for d in range(4):
                    a("v_lshlrev_b32 %s, 16, %s" % (v(Fr(rg, i) + 2 * d), v(RW(rg, i) + d)))
                    a("v_and_b32 %s, 0xffff0000, %s" % (v(Fr(rg, i) + 2 * d + 1), v(RW(rg, i) + d)))
                for d in range(4):
                    f = v(Fr(rg, i) + 2 * d, 2)
                    a("v_pk_add_f32 %s, %s, %s" % (v(SA[rg], 2), v(SA[rg], 2), f))
                    a("v_pk_fma_f32 %s, %s, %s, %s" % (v(SQ[rg], 2), f, f, v(SQ[rg], 2)))
        st.stamp()
        if after_stats: after_stats()
        R4 = [160, 162, 164, 166]
        for r in R4:
            a("v_add_f32 %s, %s, %s" % (v(r), v(r), v(r + 1)))
        for dpp in ("quad_perm:[1,0,3,2]", "quad_perm:[2,3,0,1]", "row_half_mirror"):
            for r in R4:
                a("v_add_f32_dpp %s, %s, %s %s row_mask:0xf bank_mask:0xf" % (v(r), v(r), v(r), dpp))
        inv = 0x3ae38e39
        for r in R4:
            a("v_mul_f32 %s, 0x%x, %s" % (v(r), inv, v(r)))
        for rg in range(2):
            a("v_fma_f32 %s, -%s, %s, %s" % (v(SQ[rg]), v(SA[rg]), v(SA[rg]), v(SQ[rg])))
        for rg in range(2):
            a("v_max_f32 %s, 0, %s" % (v(SQ[rg]), v(SQ[rg])))
        for rg in range(2):
            a("v_cvt_pk_bf16_f32 %s, %s, %s" % (v(SQ[rg] + 1), v(SA[rg]), v(SQ[rg])))
        for rg in range(2):
            a("v_lshlrev_b32 %s, 16, %s" % (v(SA[rg]), v(SQ[rg] + 1)))
            a("v_and_b32 %s, 0xffff0000, %s" % (v(SQ[rg]), v(SQ[rg] + 1)))
        for rg in range(2):
            a("v_add_f32 %s, 0x3727c5ac, %s" % (v(SQ[rg]), v(SQ[rg])))
        for rg in range(2):
            a("v_cvt_pk_bf16_f32 %s, %s, %s" % (v(SQ[rg]), v(SQ[rg]), v(SQ[rg])))
        for rg in range(2):
            a("v_and_b32 %s, 0xffff0000, %s" % (v(SQ[rg]), v(SQ[rg])))
        for rg in range(2):
            a("v_sqrt_f32 %s, %s" % (v(SQ[rg]), v(SQ[rg])))
        a("s_nop 0")
        for rg in range(2):
            a("v_cvt_pk_bf16_f32 %s, %s, %s" % (v(SQ[rg]), v(SQ[rg]), v(SQ[rg])))
        for rg in range(2):
            a("v_and_b32 %s, 0xffff0000, %s" % (v(SQ[rg]), v(SQ[rg])))
        for rg in range(2):
            a("v_rcp_f32 %s, %s" % (v(SQ[rg]), v(SQ[rg])))
        a("s_nop 0")
        for rg in range(2):
            a("v_mul_f32 %s, -%s, %s" % (v(SA[rg]), v(SA[rg]), v(SQ[rg])))
        for i in range(9):
            for rg in range(2):
                for d in range(4):
                    f = v(Fr(rg, i) + 2 * d, 2)
                    a("v_pk_fma_f32 %s, %s, %s, %s op_sel_hi:[1,0,0]" % (f, f, v(SQ[rg], 2), v(SA[rg], 2)))
            for rg in range(2):
                for d in range(4):
                    a("v_cvt_pk_bf16_f32 %s, %s, %s" % (v(RW(rg, i) + d), v(Fr(rg, i) + 2 * d), v(Fr(rg, i) + 2 * d + 1)))
            emit_piece(i)

    vWA = vT[4]
    a("v_lshrrev_b32 %s, 2, %s" % (v(vT[5]), v(vT[2])))
    a("v_lshlrev_b32 %s, 10, %s" % (v(vT[5]), v(vT[5])))
    a("v_and_b32 %s, 3, %s" % (v(vT[6]), v(vT[2])))
    a("v_lshl_add_u32 %s, %s, 8, %s" % (v(vT[5]), v(vT[6]), v(vT[5])))
    a("v_xor_b32 %s, %s, %s" % (v(vT[6]), v(vT[1]), v(vT[2])))
    a("v_lshl_add_u32 %s, %s, 4, %s" % (v(vWA), v(vT[6]), v(vT[5])))
    a("s_cmp_ge_u32 %s, 4" % s(sWAVE))
    a("s_cbranch_scc1 L_k1_loader")

    vRA = [vT[7], vT[8]]
    vRH = [vT[0], vT[3]]
    a("v_lshrrev_b32 %s, 4, %s" % (v(vT[5]), v(vLANE)))
    a("v_and_b32 %s, 15, %s" % (v(vT[6]), v(vLANE)))
    a("v_xor_b32 %s, %s, %s" % (v(vT[9]), v(vT[6]), v(vT[5])))
    a("v_lshlrev_b32 %s, 4, %s" % (v(vT[9]), v(vT[9])))
    a("v_lshl_add_u32 %s, %s, 8, %s" % (v(vT[9]), v(vT[5]), v(vT[9])))
    a("s_lshl_b32 %s, %s, 11" % (s(sT0), s(sWAVE)))
    a("s_add_u32 %s, %s, %d" % (s(sT0), s(sT0), SCR))
    a("s_mul_i32 %s, %s, %d" % (s(sT1), s(sWAVE), REG))
    a("s_add_u32 %s, %s, 18432" % (s(sT1), s(sT1)))
    a("v_add_u32 %s, %s, %s" % (v(vWA), s(sT0), v(vWA)))
    a("v_add_u32 %s, %s, %s" % (v(vRA[0]), s(sT0), v(vT[9])))
    a("v_add_u32 %s, %s, %s" % (v(vRH[0]), s(sT1), v(vT[9])))
    a("v_xor_b32 %s, 0x440, %s" % (v(vT[9]), v(vT[9])))
    a("v_add_u32 %s, %s, %s" % (v(vRA[1]), s(sT0), v(vT[9])))
    a("v_add_u32 %s, %s, %s" % (v(vRH[1]), s(sT1), v(vT[9])))
    a("v_mul_u32_u24 %s, %d, %s" % (v(vT[9]), REG, v(vT[5])))
    a("v_bfe_u32 %s, %s, 2, 2" % (v(vT[6]), v(vLANE)))
    a("v_lshl_add_u32 %s, %s, 6, %s" % (v(vT[9]), v(vT[6]), v(vT[9])))
    a("v_and_b32 %s, 3, %s" % (v(vT[6]), v(vLANE)))
    a("v_lshl_add_u32 %s, %s, 3, %s" % (v(vT[9]), v(vT[6]), v(vT[9])))
    a("v_and_b32 %s, 1, %s" % (v(vT[6]), v(vT[5])))
    a("v_lshl_add_u32 %s, %s, 5, %s" % (v(vTR[0]), v(vT[6]), v(vT[9])))
    a("v_xor_b32 %s, 32, %s" % (v(vTR[1]), v(vTR[0])))
    for m, sH in ((0, sHB0), (1, sHB1)):
        a("s_lshl_b32 %s, %s, 3" % (s(sT0), s(sRB)))
        a("s_lshl_b32 %s, %s, 1" % (s(sT1), s(sWAVE)))
        a("s_add_u32 %s, %s, %s" % (s(sT0), s(sT0), s(sT1)))
        a("s_add_u32 %s, %s, %d" % (s(sT0), s(sT0), m))
        a("s_mul_i32 %s, %s, 205" % (s(sT1), s(sT0)))
        a("s_lshr_b32 %s, %s, 10" % (s(sT1), s(sT1)))
        a("s_mul_i32 %s, %s, %d" % (s(sT1), s(sT1), NKS * 5 - 5))
        a("s_add_u32 %s, %s, %s" % (s(sT0), s(sT0), s(sT1)))
        a("s_lshl_b32 %s, %s, 10" % (s(sH), s(sT0)))
        a("s_mul_i32 %s, %s, 10240" % (s(sT1), s(sP0)))
        a("s_add_u32 %s, %s, %s" % (s(sH), s(sH), s(sT1)))
        if H_BASE: a("s_add_u32 %s, %s, %d" % (s(sH), s(sH), H_BASE))
    a("s_lshl_b32 %s, %s, 2" % (s(sT0), s(sRB)))
    a("s_add_u32 %s, %s, %s" % (s(sT0), s(sT0), s(sWAVE)))
    a("s_mul_i32 %s, %s, 108" % (s(sT0), s(sT0)))
    a("s_lshl_b32 %s, %s, 2" % (s(sT1), s(sQ0)))
    a("s_add_u32 %s, %s, %s" % (s(sT0), s(sT0), s(sT1)))
    a("s_lshl_b32 %s, %s, 10" % (s(sQB), s(sT0)))
    a("s_add_u32 %s, %s, %d" % (s(sQB), s(sQB), QKV_BASE))

    def own_piece(i):
        for rg in range(2):
            a("ds_write_b128 %s, %s offset:%d" % (v(vWA), v(RW(rg, i), 4), rg * 128))
        for e in range(2):
            a("ds_read_b128 %s, %s" % (v(X(0, 2 * i + e), 4), v(vRA[e])))
    layernorm(0, own_piece)

    def rd(q, bf):
        ks, nt = q >> 2, q & 3
        off = bf * 18432 + ks * 1024 + (nt >> 1) * 512
        return ["ds_read_b64_tr_b16 %s, %s offset:%d" % (v(WF(q), 2), v(vTR[nt & 1]), off),
                "ds_read_b64_tr_b16 %s, %s offset:%d" % (v(WF(q) + 2, 2), v(vTR[nt & 1]), off + 256)]

    def epi_tail(B, typ):
        ops = []
        if typ == "u":
            for m, sE in ((0, sEP0), (1, sEP1)):
                for kk in range(2):
                    R = TL(B, 2 * kk, m)
                    for j in range(4):
                        ops.append("v_cvt_pk_bf16_f32 %s, %s, %s" % (v(R + j), v(R + 2 * j), v(R + 2 * j + 1)))
                    if kk == 0:
                        ops.append("buffer_store_dwordx4 %s, %s, %s, %s offen %s" % (v(R, 4), v(vL16), s(rWS, 4), s(sE), st_flag))
                    else:
                        ops.append("s_add_u32 %s, %s, 5120" % (s(sE2), s(sE)))
                        ops.append("buffer_store_dwordx4 %s, %s, %s, %s offen %s" % (v(R, 4), v(vL16), s(rWS, 4), s(sE2), st_flag))
        elif typ == "q":
            for nt in range(4):
                P, Q = TL(B, nt, 0), TL(B, nt, 1)
                ops.append("v_cvt_pk_bf16_f32 %s, %s, %s" % (v(P), v(P), v(P + 1)))
                ops.append("v_cvt_pk_bf16_f32 %s, %s, %s" % (v(P + 1), v(P + 2), v(P + 3)))
                ops.append("v_cvt_pk_bf16_f32 %s, %s, %s" % (v(P + 2), v(Q), v(Q + 1)))
                ops.append("v_cvt_pk_bf16_f32 %s, %s, %s" % (v(P + 3), v(Q + 2), v(Q + 3)))
                ops.append("s_nop 1")
                ops.append("v_permlane16_swap_b32 %s, %s" % (v(P), v(P + 2)))
                ops.append("v_permlane16_swap_b32 %s, %s" % (v(P + 1), v(P + 3)))
                ops.append("buffer_store_dwordx4 %s, %s, %s, %s offen offset:%d %s" % (v(P, 4), v(vL16), s(rWS, 4), s(sEP0), nt * 1024, st_flag))
        return ops

    def body(bf, ptyp):
        A, B = ACC[bf], ACC[1 - bf]
        ep = epi_tail(B, ptyp)
        for q in range(72):
            ks, nt = q >> 2, q & 3
            nq = q + PD
            nbf = bf if nq < 72 else 1 - bf
            r2 = rd(nq % 72, nbf)
            if nq % 24 == 0:
                a("s_barrier")
            if q % 2 == 0:
                a("s_waitcnt lgkmcnt(%d)" % (2 * PD - 4))
            for m in range(2):
                T = TL(A, nt, m)
                if ks == 0 and ptyp == "u":
                    U = TL(B, nt, m)
                    for r in range(4):
                        a("v_mul_f32 %s, %s, %s" % (v(U + r), v(T + r), v(U + r)))
                c = "0" if ks == 0 else v(T, 4)
                a("v_mfma_f32_16x16x32_bf16 %s, %s, %s, %s" % (v(T, 4), v(WF(q), 4), v(X(m, ks), 4), c))
                a(r2[m])
                if q >= 6 and ep and not (m == 1 and q % 2 == 1):
                    a(ep.pop(0))
        assert not ep

    st.stamp()
    a("s_barrier")
    st.stamp()
    if opt.get("diag", 0) == 2: st.stamp(True)
    for ks in range(18):
        a("ds_read_b128 %s, %s offset:%d" % (v(X(1, ks), 4), v(vRH[ks & 1]), (ks >> 1) * 2048))
    for q in range(PD):
        for l in rd(q, 0):
            a(l)
    a("s_mov_b32 %s, 0" % s(sI))
    a("s_branch L_k1_b0n")
    for bf in range(2):
        for typ in ("q", "u", "n"):
            a.label("L_k1_b%d%s" % (bf, typ))
            body(bf, typ)
            if typ != "n":
                a("s_branch L_k1_after%d" % bf)
        a.label("L_k1_after%d" % bf)
        st.stamp()
        if opt.get("diag", 0) == 2: st.stamp(True)
        a("s_add_u32 %s, %s, 1" % (s(sI), s(sI)))
        a("s_cmp_le_u32 %s, %s" % (s(sI), s(sNQ)))
        a("s_cbranch_scc0 L_k1_gu%d" % bf)
        a("s_mov_b32 %s, %s" % (s(sEP0), s(sQB)))
        a("s_add_u32 %s, %s, 4096" % (s(sQB), s(sQB)))
        a("s_branch L_k1_b%dq" % (1 - bf))
        a.label("L_k1_gu%d" % bf)
        a("s_sub_u32 %s, %s, %s" % (s(sT0), s(sI), s(sNQ)))
        a("s_bitcmp1_b32 %s, 0" % s(sT0))
        a("s_cbranch_scc1 L_k1_b%dn" % (1 - bf))
        a("s_mov_b32 %s, %s" % (s(sEP0), s(sHB0)))
        a("s_mov_b32 %s, %s" % (s(sEP1), s(sHB1)))
        a("s_add_u32 %s, %s, 10240" % (s(sHB0), s(sHB0)))
        a("s_add_u32 %s, %s, 10240" % (s(sHB1), s(sHB1)))
        a("s_cmp_lt_u32 %s, %s" % (s(sI), s(sNCH)))
        a("s_cbranch_scc1 L_k1_b%du" % (1 - bf))
        for r in range(32):
            a("v_mul_f32 %s, %s, %s" % (v(ACC[bf] + r), v(ACC[1 - bf] + r), v(ACC[bf] + r)))
        for l in epi_tail(ACC[bf], "u"):
            a(l)
        if st.on: a("s_waitcnt vmcnt(0)")
        st.stamp(); st.stamp(True); st.dump(sWAVE, sWS, 14)
        a("s_endpgm")

    a.label("L_k1_loader")
    vDQ, vDG = 2, 3
    a("v_bfe_u32 %s, %s, 2, 3" % (v(vT[5]), v(vLANE)))
    a("s_lshl_b32 %s, %s, 3" % (s(sT0), s(sW4)))
    a("v_add_u32 %s, %s, %s" % (v(vT[5]), s(sT0), v(vT[5])))
    a("s_and_b32 %s, %s, 1" % (s(sT0), s(sW4)))
    a("s_lshl_b32 %s, %s, 1" % (s(sT0), s(sT0)))
    a("v_and_b32 %s, 3, %s" % (v(vT[6]), v(vLANE)))
    a("v_xor_b32 %s, %s, %s" % (v(vT[6]), s(sT0), v(vT[6])))
    a("v_lshlrev_b32 %s, 4, %s" % (v(vT[6]), v(vT[6])))
    a("v_lshrrev_b32 %s, 5, %s" % (v(vT[7]), v(vLANE)))
    a("v_lshl_add_u32 %s, %s, 6, %s" % (v(vT[6]), v(vT[7]), v(vT[6])))
    a("v_mul_u32_u24 %s, 3456, %s" % (v(vDQ), v(vT[5])))
    a("v_add_u32 %s, %s, %s" % (v(vDQ), v(vDQ), v(vT[6])))
    a("v_mul_u32_u24 %s, 9216, %s" % (v(vDG), v(vT[5])))
    a("v_add_u32 %s, %s, %s" % (v(vDG), v(vDG), v(vT[6])))
    a("s_mov_b32 %s, 0" % s(sIC))
    a("s_mov_b32 %s, 0" % s(sIG))
    a("s_mov_b32 %s, %s" % (s(sKB), s(sROT)))
    a("s_mul_i32 %s, %s, %d" % (s(sLBEG), s(sW4), REG))
    a("s_add_u32 %s, %s, %d" % (s(sLEND), s(sLBEG), REG))
    a("s_mov_b32 %s, %s" % (s(sLB), s(sLBEG)))
    a("s_mul_i32 %s, %s, 3" % (s(sLAST), s(sNCH)))
    a("s_add_u32 %s, %s, 18432" % (s(sT0), s(sLBEG)))
    a("v_add_u32 %s, %s, %s" % (v(vWA), s(sT0), v(vWA)))
    def issue_kind(r, vo, pitch):
        for kb in range(3):
            a("s_mul_i32 %s, %s, %d" % (s(sO0), s(sKB), 64 * pitch))
            a("s_add_u32 %s, %s, %s" % (s(sO0), s(sO0), s(sCOL)))
            a("s_add_u32 m0, %s, %d" % (s(sLB), kb * 2048))
            a("s_add_u32 %s, %s, 1" % (s(sKB), s(sKB)))
            a("buffer_load_dwordx4 %s, %s, %s offen %s lds" % (v(vo), s(r, 4), s(sO0), w_flag))
            a("s_add_u32 m0, %s, %d" % (s(sLB), kb * 2048 + 1024))
            a("s_add_u32 %s, %s, %d" % (s(sO0), s(sO0), 32 * pitch))
            a("buffer_load_dwordx4 %s, %s, %s offen %s lds" % (v(vo), s(r, 4), s(sO0), w_flag))
            a("s_cmp_eq_u32 %s, 9" % s(sKB))
            a("s_cselect_b32 %s, 0, %s" % (s(sKB), s(sKB)))
    def issue_group():
        lq = a.newlabel("k1_iq"); lu = a.newlabel("k1_iu"); le = a.newlabel("k1_ie")
        a("s_cmp_lt_u32 %s, %s" % (s(sIC), s(sNQ)))
        a("s_cbranch_scc1 %s" % lq)
        a("s_sub_u32 %s, %s, %s" % (s(sT0), s(sIC), s(sNQ)))
        a("s_lshr_b32 %s, %s, 1" % (s(sT1), s(sT0)))
        a("s_add_u32 %s, %s, %s" % (s(sT1), s(sT1), s(sP0)))
        a("s_lshl_b32 %s, %s, 7" % (s(sCOL), s(sT1)))
        a("s_bitcmp1_b32 %s, 0" % s(sT0))
        a("s_cbranch_scc1 %s" % lu)
        issue_kind(rWG, vDG, 9216)
        a("s_branch %s" % le)
        a.label(lu)
        issue_kind(rWU, vDG, 9216)
        a("s_branch %s" % le)
        a.label(lq)
        a("s_add_u32 %s, %s, %s" % (s(sT1), s(sIC), s(sQ0)))
        a("s_lshl_b32 %s, %s, 7" % (s(sCOL), s(sT1)))
        issue_kind(rWQ, vDQ, 3456)
        a.label(le)
        a("s_add_u32 %s, %s, 6144" % (s(sLB), s(sLB)))
        a("s_cmp_eq_u32 %s, %s" % (s(sLB), s(sLEND)))
        a("s_cselect_b32 %s, %s, %s" % (s(sLB), s(sLBEG), s(sLB)))
        a("s_add_u32 %s, %s, 1" % (s(sIG), s(sIG)))
        a("s_cmp_eq_u32 %s, 3" % s(sIG))
        a("s_cselect_b32 %s, 0, %s" % (s(sIG), s(sIG)))
        a("s_addc_u32 %s, %s, 0" % (s(sIC), s(sIC)))
        a("s_add_u32 %s, %s, 1" % (s(sG), s(sG)))
    a("s_mov_b32 %s, 0" % s(sG))
    issue_group()
    def helper_piece(i):
        for rg in range(2):
            a("ds_write_b128 %s, %s offset:%d" % (v(vWA), v(RW(rg, i), 4), rg * 128 + i * 2048))
        if i == 4:
            issue_group()
    layernorm(6, helper_piece, issue_group)
    a("s_waitcnt vmcnt(12) lgkmcnt(0)")
    st.stamp()
    a("s_barrier")
    a("s_waitcnt vmcnt(6)")
    a("s_barrier")
    issue_group()
    a("s_waitcnt vmcnt(6)")
    a("s_barrier")
    issue_group()
    issue_group()
    a("s_waitcnt vmcnt(12)")
    a("s_barrier")
    issue_group()
    issue_group()
    NB = opt.get("k1_pf", 0)
    rWO, rWD, sPF, sPFO = 72, 76, 61, 62
    vPX, vPC = 5, 6
    if NB >= 0:
        srd(a, rWO, 68, 576 * 576 * 2)
        srd(a, rWD, 70, 4608 * 576 * 2)
        a("s_lshr_b32 %s, s2, 3" % s(sT0))
        a("s_lshl_b32 %s, %s, 2" % (s(sT0), s(sT0)))
        a("s_add_u32 %s, %s, %s" % (s(sT0), s(sT0), s(sW4)))
        a("s_lshl_b32 %s, %s, 13" % (s(sT0), s(sT0)))
        a("v_lshlrev_b32 %s, 7, %s" % (v(vPX), v(vLANE)))
        a("v_add_u32 %s, %s, %s" % (v(vPX), s(sT0), v(vPX)))
        rest = (4608 * 1152 - (NB << 20)) // 128
        per = (rest + 1023) // 1024
        assert per <= 64
        a("s_lshl_b32 %s, s2, 2" % s(sT0))
        a("s_add_u32 %s, %s, %s" % (s(sT0), s(sT0), s(sW4)))
        a("s_mul_i32 %s, %s, %d" % (s(sT1), s(sT0), per * 128))
        a("s_add_u32 %s, %s, %d" % (s(sT1), s(sT1), NB << 20))
        a("v_lshlrev_b32 %s, 7, %s" % (v(vPC), v(vLANE)))
        a("v_cmp_gt_u32 vcc, %d, %s" % (per, v(vLANE)))
        a("s_mov_b64 exec, vcc")
        a("buffer_load_dword v20, %s, %s, %s offen" % (v(vPC), s(rWD, 4), s(sT1)))
        a("s_mul_i32 %s, %s, %d" % (s(sT1), s(sT0), 6 * 128))
        a("v_cmp_gt_u32 vcc, 6, %s" % v(vLANE))
        a("s_mov_b64 exec, vcc")
        a("buffer_load_dword v21, %s, %s, %s offen" % (v(vPC), s(rWO, 4), s(sT1)))
        a("s_mov_b64 exec, -1")
        GAP = opt.get("k1_pf_gap", 3)
        a("s_sub_u32 %s, %s, %d" % (s(sPF), s(sLAST), NB * GAP + opt.get("k1_pf_end", 0)))
        a("s_mov_b32 %s, %d" % (s(sPFO), max(NB - 1, 0) << 20))
    a.label("L_k1_l2")
    st.stamp()
    a("s_waitcnt vmcnt(18)")
    st.stamp()
    a("s_barrier")
    issue_group()
    if NB > 0:
        a("s_cmp_lg_u32 %s, %s" % (s(sG), s(sPF)))
        a("s_cbranch_scc1 L_k1_nopf")
        a("buffer_load_dword v20, %s, %s, %s offen" % (v(vPX), s(rWD, 4), s(sPFO)))
        a("s_add_u32 %s, %s, %d" % (s(sPF), s(sPF), GAP))
        a("s_sub_u32 %s, %s, %d" % (s(sPFO), s(sPFO), 1 << 20))
        a("s_cselect_b32 %s, 0, %s" % (s(sPF), s(sPF)))
        a.label("L_k1_nopf")
    a("s_cmp_lt_u32 %s, %s" % (s(sG), s(sLAST)))
    a("s_cbranch_scc1 L_k1_l2")
    for n in (18, 12, 6, 0):
        a("s_waitcnt vmcnt(%d)" % n)
        a("s_barrier")
    st.dump(sWAVE, sWS, 14)
    a.label("L_k1_end")
    a("s_endpgm")
    return a.text(), kdesc(K1_NAME, 256, 80)
```

```python
from common import *
import math, struct

K2_NAME = "g2_kernel"
RING = 21760
AB = 4 * RING
LCNT = AB + 65536
K2_LDS = LCNT + 64

def fbits(x):
    return struct.unpack("<I", struct.pack("<f", x))[0]

def gen_k2(opt):
    a = Asm()
    a.raw(khead(K2_NAME))
    w_flag = opt.get("k2_w_flag", "")
    h_flag = opt.get("k2_h_flag", "")
    LEAD = opt.get("k2_lead", 1)
    sX, sWO, sWD, sOUT, sDBG, sWS = 4, 6, 8, 10, 12, 14
    rX, rWO, rWD, rOUT, rWS = 16, 20, 24, 28, 32
    sWAVE, sXC, sSLOT = 36, 37, 38
    sT0, sT1, sT2, sT3 = 39, 40, 41, 42
    vLANE = 1

    a("s_cmp_ge_u32 s2, 256")
    a("s_cbranch_scc1 L_k2_end")
    a("s_load_dwordx2 %s, s[0:1], %d" % (s(sX, 2), KA_X))
    a("s_load_dwordx2 %s, s[0:1], %d" % (s(sWO, 2), KA_WO))
    a("s_load_dwordx4 %s, s[0:1], %d" % (s(sWD, 4), KA_WD))
    a("s_load_dwordx4 %s, s[0:1], %d" % (s(sDBG, 4), KA_DBG))
    a("v_and_b32 %s, 63, v0" % v(vLANE))
    a("v_lshrrev_b32 v8, 6, v0")
    a("s_and_b32 %s, s2, 7" % s(sXC))
    a("s_lshr_b32 %s, s2, 3" % s(sSLOT))
    a("v_readfirstlane_b32 %s, v8" % s(sWAVE))
    a("v_mov_b32 v8, %d" % LCNT)
    a("v_mov_b32 v10, 0")
    a("v_mov_b32 v11, 0")
    a("ds_write_b64 v8, v[10:11]")
    a("s_waitcnt lgkmcnt(0)")
    a("s_barrier")
    srd(a, rX, sX, 2048 * 576 * 2)
    srd(a, rWO, sWO, 576 * 576 * 2)
    srd(a, rWD, sWD, 4608 * 576 * 2)
    srd(a, rOUT, sOUT, 2048 * 576 * 2)
    srd(a, rWS, sWS, WS_BYTES)
    st = Stamper(a, opt.get("diag", 0), 255, 100, 1, scnt=43)
    st.init(); st.stamp(True); st.stamp()
    a("s_cmp_ge_u32 %s, 4" % s(sWAVE))
    a("s_cbranch_scc1 L_k2_attn")

    sRT, sCT, sHB, sWB, sHO, sWOFF, sRING, sCNT, sSPIN, sPT, sC3 = 44, 45, 46, 47, 48, 49, 50, 51, 52, 53, 54
    vDO = [2, 3, 4, 5]
    vTR = [6, 7]
    vH, vH4 = 8, 9
    vPOLL, vPOFF = 10, 11
    T = [12, 13, 14, 15]
    ACC0, HF0, WF0 = 16, 96, 176
    def ACC(rt, nt): return ACC0 + rt * 16 + nt * 4
    P = opt.get("k2_p", 3)
    UNR = P if P % 2 == 0 else 2 * P
    def HF(i, rt): return HF0 + (i % P) * 20 + rt * 4
    def WF(i, nt): return WF0 + (i & 1) * 16 + nt * 4
    a("s_mul_i32 %s, %s, 29" % (s(sT0), s(sXC)))
    a("s_min_u32 %s, %s, 2" % (s(sT1), s(sXC)))
    a("s_add_u32 %s, %s, %s" % (s(sT0), s(sT0), s(sT1)))
    a("s_add_u32 %s, %s, %s" % (s(sT0), s(sT0), s(sSLOT)))
    a("s_cmp_lt_u32 %s, 2" % s(sXC))
    a("s_cselect_b32 %s, 30, 29" % s(sT1))
    a("s_cmp_ge_u32 %s, %s" % (s(sSLOT), s(sT1)))
    a("s_cbranch_scc1 L_k2_end")
    a("s_mul_i32 %s, %s, 7282" % (s(sRT), s(sT0)))
    a("s_lshr_b32 %s, %s, 16" % (s(sRT), s(sRT)))
    a("s_mul_i32 %s, %s, 9" % (s(sT1), s(sRT)))
    a("s_sub_u32 %s, %s, %s" % (s(sCT), s(sT0), s(sT1)))
    a("s_mul_i32 %s, %s, %d" % (s(sHB), s(sRT), NKS))
    a("s_add_u32 %s, %s, %s" % (s(sHB), s(sHB), s(sWAVE)))
    a("s_mul_i32 %s, %s, 5120" % (s(sHB), s(sHB)))
    if H_BASE: a("s_add_u32 %s, %s, %d" % (s(sHB), s(sHB), H_BASE))
    a("s_mul_i32 %s, %s, %d" % (s(sWB), s(sWAVE), 32 * 1152))
    a("s_lshl_b32 %s, %s, 7" % (s(sT0), s(sCT)))
    a("s_add_u32 %s, %s, %s" % (s(sWB), s(sWB), s(sT0)))
    a("s_mul_i32 %s, %s, %d" % (s(sRING), s(sWAVE), RING))
    a("s_add_u32 %s, %s, %s" % (s(sT0), s(sRT), s(sCT)))
    a("s_mul_i32 %s, %s, 171" % (s(sT1), s(sT0)))
    a("s_lshr_b32 %s, %s, 9" % (s(sT1), s(sT1)))
    a("s_mul_i32 %s, %s, 3" % (s(sT1), s(sT1)))
    a("s_sub_u32 %s, %s, %s" % (s(sC3), s(sT0), s(sT1)))
    a("s_mov_b32 %s, 0" % s(sPT))
    a("v_lshlrev_b32 %s, 4, %s" % (v(vH), v(vLANE)))
    vH3 = 211
    a("s_cmp_eq_u32 %s, %d" % (s(sRT), NRT - 1))
    a("s_cselect_b32 %s, 0x40000000, 0" % s(sT0))
    a("v_add_u32 %s, %s, %s" % (v(vH3), s(sT0), v(vH)))
    a("v_add_u32 %s, 4096, %s" % (v(vH4), v(vH3)))
    a("v_bfe_u32 %s, %s, 2, 3" % (v(T[0]), v(vLANE)))
    a("v_mul_u32_u24 %s, 1152, %s" % (v(T[0]), v(T[0])))
    a("v_bfe_u32 %s, %s, 4, 1" % (v(T[1]), v(vLANE)))
    a("v_lshlrev_b32 %s, 1, %s" % (v(T[1]), v(T[1])))
    a("v_and_b32 %s, 3, %s" % (v(T[2]), v(vLANE)))
    a("v_xor_b32 %s, %s, %s" % (v(T[1]), v(T[1]), v(T[2])))
    a("v_lshl_add_u32 %s, %s, 4, %s" % (v(T[0]), v(T[1]), v(T[0])))
    a("v_lshrrev_b32 %s, 5, %s" % (v(T[1]), v(vLANE)))
    a("v_lshl_add_u32 %s, %s, 6, %s" % (v(vDO[0]), v(T[1]), v(T[0])))
    for b in range(1, 4):
        a("v_add_u32 %s, %d, %s" % (v(vDO[b]), b * 9216, v(vDO[0])))
    vLP, vG1, vI4 = 208, 209, 210
    a("v_bfe_u32 %s, %s, 2, 3" % (v(T[0]), v(vLANE)))
    a("v_mul_u32_u24 %s, 1152, %s" % (v(T[0]), v(T[0])))
    a("v_sub_u32 %s, %s, %s" % (v(vLP), v(vDO[0]), v(T[0])))
    a("v_bfe_u32 %s, %s, 4, 1" % (v(vG1), v(vLANE)))
    a("v_bfe_u32 %s, %s, 2, 2" % (v(vI4), v(vLANE)))

    def setpos():
        ops = []
        if LEAD:
            ops += ["s_add_u32 %s, %s, %d" % (s(sT0), s(sPT), 3 * LEAD),
                    "s_sub_u32 %s, %s, 36" % (s(sT1), s(sT0)),
                    "s_cmp_ge_u32 %s, 36" % s(sT0),
                    "s_cselect_b32 %s, %s, %s" % (s(sT0), s(sT1), s(sT0)),
                    "s_cmp_eq_u32 %s, 0" % s(sC3),
                    "s_cselect_b32 %s, %s, %s" % (s(sT0), s(sT0), s(sPT)),
                    "s_cselect_b32 %s, 3, %s" % (s(sC3), s(sC3)),
                    "s_sub_u32 %s, %s, 1" % (s(sC3), s(sC3))]
            k = sT0
        else:
            k = sPT
        if opt.get("x_small", 0):
            ops += ["s_and_b32 %s, %s, %d" % (s(sT0), s(k), opt["x_small"] - 1)]
            k = sT0
        ops += ["s_mul_i32 %s, %s, %d" % (s(sHO), s(k), 4 * 5120),
                "s_mul_i32 %s, %s, %d" % (s(sWOFF), s(k), 4 * 32 * 1152),
                "s_add_u32 %s, %s, %s" % (s(sHO), s(sHO), s(sHB)),
                "s_add_u32 %s, %s, %s" % (s(sWOFF), s(sWOFF), s(sWB)),
                "s_add_u32 %s, %s, 1" % (s(sPT), s(sPT))]
        return ops
    def setpos_o(j):
        ops = ["s_add_u32 %s, %s, %d" % (s(sHO), s(sHB), (36 + j) * 4 * 5120),
               "s_lshl_b32 %s, %s, 7" % (s(sWOFF), s(sCT)),
               "s_lshl_b32 %s, %s, 2" % (s(sT0), s(sWAVE))]
        for b in range(2):
            U, Hh, W = T[0], T[1], T[2]
            ops += ["s_add_u32 %s, %s, %d" % (s(sT1), s(sT0), 16 * j + 2 * b),
                    "v_add_u32 %s, %s, %s" % (v(U), s(sT1), v(vG1)),
                    "v_mul_u32_u24 %s, 171, %s" % (v(Hh), v(U)),
                    "v_lshrrev_b32 %s, 9, %s" % (v(Hh), v(Hh)),
                    "v_mul_u32_u24 %s, 3, %s" % (v(W), v(Hh)),
                    "v_sub_u32 %s, %s, %s" % (v(U), v(U), v(W)),
                    "v_mul_u32_u24 %s, %s, %s" % (v(U), v(U), v(U)),
                    "v_mul_u32_u24 %s, 18, %s" % (v(W), v(Hh)),
                    "v_and_b32 %s, -4, %s" % (v(W), v(W)),
                    "v_lshl_add_u32 %s, %s, 2, %s" % (v(W), v(U), v(W)),
                    "v_add_u32 %s, %s, %s" % (v(W), v(W), v(vI4)),
                    "v_mul_u32_u24 %s, 1152, %s" % (v(W), v(W)),
                    "v_add_u32 %s, %s, %s" % (v(vDO[b]), v(W), v(vLP)),
                    "v_add_u32 %s, %d, %s" % (v(vDO[b + 2]), 8 * 1152, v(vDO[b]))]
        return ops
    def dma(i, b, part):
        r = rWD if part == 0 else rWO
        return ["s_add_u32 m0, %s, %d" % (s(sRING), (i % P) * 4096 + b * 1024),
                "s_nop 0",
                "buffer_load_dwordx4 %s, %s, %s offen %s lds" % (v(vDO[b]), s(r, 4), s(sWOFF), w_flag)]
    def hld(i, rt, part):
        return "buffer_load_dwordx4 %s, %s, %s, %s offen offset:%d %s" % (v(HF(i, rt), 4), v(vH4 if rt == 4 else vH3 if rt == 3 else vH), s(rWS, 4), s(sHO), (rt & 3) * 1024, "sc1" if part else h_flag)
    def trd(i, nt, hf):
        return "ds_read_b64_tr_b16 %s, %s offset:%d" % (v(WF(i, nt) + 2 * hf, 2), v(vTR[nt & 1]), (i % P) * 4096 + (nt >> 1) * 512 + hf * 2048)

    for i in range(P):
        for l in setpos(): a(l)
        for b in range(4):
            for l in dma(i, b, 0): a(l)
        for rt in range(5):
            a(hld(i, rt, 0))
    a("v_lshrrev_b32 %s, 5, %s" % (v(T[0]), v(vLANE)))
    a("v_lshlrev_b32 %s, 10, %s" % (v(T[0]), v(T[0])))
    a("v_bfe_u32 %s, %s, 2, 3" % (v(T[1]), v(vLANE)))
    a("v_lshl_add_u32 %s, %s, 6, %s" % (v(T[0]), v(T[1]), v(T[0])))
    a("v_bfe_u32 %s, %s, 4, 1" % (v(T[1]), v(vLANE)))
    a("v_lshl_add_u32 %s, %s, 5, %s" % (v(T[0]), v(T[1]), v(T[0])))
    a("v_and_b32 %s, 3, %s" % (v(T[1]), v(vLANE)))
    a("v_lshl_add_u32 %s, %s, 3, %s" % (v(T[0]), v(T[1]), v(T[0])))
    a("v_add_u32 %s, %s, %s" % (v(vTR[0]), s(sRING), v(T[0])))
    a("v_xor_b32 %s, 32, %s" % (v(T[0]), v(T[0])))
    a("v_add_u32 %s, %s, %s" % (v(vTR[1]), s(sRING), v(T[0])))
    a("s_mul_i32 %s, %s, 80" % (s(sT0), s(sRT)))
    a("s_add_u32 %s, %s, 79" % (s(sT1), s(sT0)))
    a("s_min_u32 %s, %s, 2047" % (s(sT1), s(sT1)))
    a("s_lshr_b32 %s, %s, 8" % (s(sT0), s(sT0)))
    a("s_lshr_b32 %s, %s, 8" % (s(sT1), s(sT1)))
    a("s_lshl_b32 %s, %s, 5" % (s(sT0), s(sT0)))
    a("s_lshl_b32 %s, %s, 5" % (s(sT1), s(sT1)))
    a("v_mov_b32 %s, %s" % (v(vPOFF), s(sT1)))
    a("v_writelane_b32 %s, %s, 0" % (v(vPOFF), s(sT0)))
    a("v_mov_b32 %s, 0" % v(vPOLL))
    for r in range(80):
        a("v_mov_b32 %s, 0" % v(ACC0 + r))
    st.stamp()
    a("s_waitcnt vmcnt(%d)" % (9 * P - 4))
    st.stamp()
    for nt in range(4):
        for hf in range(2):
            a(trd(0, nt, hf))

    def iteration(i, first, pf, part, vm, pos=None, reads=True, extra=None):
        if pos:
            for l in pos: a(l)
        a("s_waitcnt vmcnt(%d) lgkmcnt(0)" % vm)
        if extra: extra()
        rds = [trd(i + 1, nt, hf) for nt in range(4) for hf in range(2)] if reads else []
        for rt in range(5):
            for nt in range(4):
                c = "0" if first else v(ACC(rt, nt), 4)
                a("v_mfma_f32_16x16x32_bf16 %s, %s, %s, %s" % (v(ACC(rt, nt), 4), v(WF(i, nt), 4), v(HF(i, rt), 4), c))
                if rt == 0 and pf:
                    for l in dma(i, nt, part): a(l)
                if rt >= 1 and rds:
                    a(rds.pop(0))
            if pf:
                a(hld(i, rt, part))
        assert not rds

    VM = 5 + 9 * (P - 2)
    NL = (36 - P) // UNR
    a("s_mov_b32 %s, %d" % (s(sCNT), NL))
    a.label("L_k2_loop")
    st.stamp()
    a("s_cmp_lg_u32 %s, 1" % s(sCNT))
    a("s_cbranch_scc1 L_k2_nopoll")
    a("global_load_dword %s, %s, %s sc1" % (v(vPOLL), v(vPOFF), s(sDBG, 2)))
    a.label("L_k2_nopoll")
    for i in range(UNR):
        iteration(i, False, True, 0, VM, pos=setpos())
    a("s_sub_u32 %s, %s, 1" % (s(sCNT), s(sCNT)))
    a("s_cmp_lg_u32 %s, 0" % s(sCNT))
    a("s_cbranch_scc1 L_k2_loop")
    for i in range(NL * UNR, 36 - P):
        iteration(i, False, True, 0, VM, pos=setpos())
    def check_flag():
        if opt.get("x_noattn", 0): return
        a("s_mov_b32 %s, 400000" % s(sSPIN))
        a.label("L_k2_spin")
        a("v_cmp_gt_u32 vcc, 32, %s" % v(vPOLL))
        a("s_sub_u32 %s, %s, 1" % (s(sSPIN), s(sSPIN)))
        a("s_cmp_eq_u32 %s, 0" % s(sSPIN))
        a("s_cbranch_scc1 L_k2_ready")
        a("s_cmp_eq_u64 vcc, 0")
        a("s_cbranch_scc1 L_k2_ready")
        a("s_sleep 4")
        a("global_load_dword %s, %s, %s sc1" % (v(vPOLL), v(vPOFF), s(sDBG, 2)))
        a("s_waitcnt vmcnt(0)")
        a("s_branch L_k2_spin")
        a.label("L_k2_ready")
    st.stamp()
    for j in range(6):
        iteration(36 - P + j, False, True, 1, VM, pos=setpos_o(j), extra=check_flag if j == 0 else None)
    st.stamp()
    for k in range(P - 1):
        iteration(42 - P + k, False, False, 0, 5 + 9 * (P - 2 - k))
    XR = WF0
    vLA, vGO = 2, 3
    def epi_addr():
        a("s_mul_i32 %s, %s, %d" % (s(sT2), s(sRT), 80 * 1152))
        a("s_lshl_b32 %s, %s, 7" % (s(sT0), s(sCT)))
        a("s_add_u32 %s, %s, %s" % (s(sT2), s(sT2), s(sT0)))
        a("v_lshrrev_b32 %s, 3, v0" % v(T[0]))
        a("v_and_b32 %s, 7, v0" % v(T[1]))
        a("v_mul_u32_u24 %s, 272, %s" % (v(T[2]), v(T[0])))
        a("v_lshl_add_u32 %s, %s, 5, %s" % (v(vLA), v(T[1]), v(T[2])))
        a("v_mul_u32_u24 %s, 1152, %s" % (v(T[2]), v(T[0])))
        a("v_lshl_add_u32 %s, %s, 4, %s" % (v(T[2]), v(T[1]), v(T[2])))
        a("v_add_u32 %s, %s, %s" % (v(vGO), s(sT2), v(T[2])))
        a("s_mov_b32 %s, %d" % (s(sT0), 32 * 1152))
        a("s_mov_b32 %s, %d" % (s(sT1), 64 * 1152))
        a("buffer_load_dwordx4 %s, %s, %s, 0 offen" % (v(XR, 4), v(vGO), s(rX, 4)))
        a("buffer_load_dwordx4 %s, %s, %s, %s offen" % (v(XR + 4, 4), v(vGO), s(rX, 4), s(sT0)))
        a("buffer_load_dwordx4 %s, %s, %s, %s offen" % (v(XR + 8, 4), v(vGO), s(rX, 4), s(sT1)))
    iteration(41, False, False, 0, 0, reads=False, extra=epi_addr)
    a("v_and_b32 %s, 15, %s" % (v(T[0]), v(vLANE)))
    a("v_mul_u32_u24 %s, 272, %s" % (v(T[0]), v(T[0])))
    a("v_lshrrev_b32 %s, 4, %s" % (v(T[1]), v(vLANE)))
    a("v_lshl_add_u32 %s, %s, 4, %s" % (v(T[0]), v(T[1]), v(T[0])))
    a("v_add_u32 %s, %s, %s" % (v(T[0]), s(sRING), v(T[0])))
    a("v_add_u32 v4, %d, %s" % (32 * 272, v(vLA)))
    a("v_add_u32 v5, %d, %s" % (64 * 272, v(vLA)))
    a("s_nop 1")
    for rt in range(5):
        for nt in range(4):
            a("ds_write_b128 %s, %s offset:%d" % (v(T[0]), v(ACC(rt, nt), 4), rt * 16 * 272 + nt * 64))
    a("s_waitcnt lgkmcnt(0)")
    st.stamp()
    a("s_barrier")
    st.stamp()
    for r in range(3):
        if r == 2:
            a("s_cmp_ge_u32 %s, 2" % s(sWAVE))
            a("s_cbranch_scc1 L_k2_fin")
        B = 16 + 32 * r
        la = (vLA, 4, 5)[r]
        for w in range(4):
            a("ds_read_b128 %s, %s offset:%d" % (v(B + 8 * w, 4), v(la), w * RING))
            a("ds_read_b128 %s, %s offset:%d" % (v(B + 8 * w + 4, 4), v(la), w * RING + 16))
        a("s_waitcnt vmcnt(2)")
        xr = XR + 4 * r
        U = 112
        for d in range(4):
            a("v_lshlrev_b32 %s, 16, %s" % (v(U + 2 * d), v(xr + d)))
            a("v_and_b32 %s, 0xffff0000, %s" % (v(U + 2 * d + 1), v(xr + d)))
        a("s_waitcnt lgkmcnt(0)")
        for e in range(8):
            a("v_add_f32 %s, %s, %s" % (v(B + e), v(B + e), v(B + 8 + e)))
            a("v_add_f32 %s, %s, %s" % (v(B + 16 + e), v(B + 16 + e), v(B + 24 + e)))
        for e in range(8):
            a("v_add_f32 %s, %s, %s" % (v(B + e), v(B + e), v(B + 16 + e)))
        for e in range(8):
            a("v_add_f32 %s, %s, %s" % (v(B + e), v(B + e), v(U + e)))
        for d in range(4):
            a("v_cvt_pk_bf16_f32 %s, %s, %s" % (v(B + d), v(B + 2 * d), v(B + 2 * d + 1)))
        a("buffer_store_dwordx4 %s, %s, %s, %s offen" % (v(B, 4), v(vGO), s(rOUT, 4), ("0", s(sT0), s(sT1))[r]))
    a("s_branch L_k2_fin")

    a.label("L_k2_attn")
    if opt.get("x_noattn", 0): a("s_branch L_k2_fin")
    if opt.get("k2_prio", 1): a("s_setprio 3")
    sA, sCG0, sSFT, sMIN, sOB, sC, sEX = 44, 45, 46, 47, 48, 49, 50
    sM = [52 + 2 * r for r in range(16)]
    sK = [84 + 2 * i for i in range(8)]
    vL16, vKB, vVB, vOOFF, vNINF, vMX, vMX2, vOL = 2, 3, 4, 5, 6, 7, 8, 9
    T = [10, 11, 12, 13, 14, 15]
    S0, O0, Q0, KF0, VF0 = 16, 160, 176, 192, 208
    def SR(t): return S0 + 16 * t
    a("s_sub_u32 %s, %s, 4" % (s(sA), s(sWAVE)))
    a("s_mul_i32 %s, %s, 18" % (s(sT0), s(sSLOT)))
    a("s_lshr_b32 %s, %s, 4" % (s(sCG0), s(sT0)))
    a("s_and_b32 %s, %s, 15" % (s(sSFT), s(sT0)))
    a("v_lshlrev_b32 %s, 4, %s" % (v(vL16), v(vLANE)))
    for j in range(4):
        a("s_lshl_b32 %s, %s, 3" % (s(sT0), s(sXC)))
        a("s_lshl_b32 %s, %s, 2" % (s(sT1), s(sA)))
        a("s_add_u32 %s, %s, %d" % (s(sT1), s(sT1), j))
        a("s_add_u32 %s, %s, %s" % (s(sT0), s(sT0), s(sT1)))
        a("s_sub_i32 %s, %s, 8" % (s(sT0), s(sT0)))
        a("s_max_i32 %s, %s, 0" % (s(sT0), s(sT0)))
        a("s_mul_i32 %s, %s, 108" % (s(sT0), s(sT0)))
        a("s_add_u32 %s, %s, %s" % (s(sT0), s(sT0), s(sCG0)))
        a("s_lshl_b32 %s, %s, 10" % (s(sT0), s(sT0)))
        a("s_add_u32 %s, %s, %d" % (s(sT2), s(sT0), QKV_BASE + 36 * 1024))
        a("s_add_u32 %s, %s, %d" % (s(sT3), s(sT0), QKV_BASE + 72 * 1024))
        a("s_lshl_b32 %s, %s, 12" % (s(sT1), s(sT1)))
        a("s_add_u32 m0, %s, %d" % (s(sT1), AB))
        a("s_nop 0")
        a("buffer_load_dwordx4 %s, %s, %s offen lds" % (v(vL16), s(rWS, 4), s(sT2)))
        a("buffer_load_dwordx4 %s, %s, %s offen offset:1024 lds" % (v(vL16), s(rWS, 4), s(sT2)))
        a("s_add_u32 m0, %s, %d" % (s(sT1), AB + 2048))
        a("s_nop 0")
        a("buffer_load_dwordx4 %s, %s, %s offen lds" % (v(vL16), s(rWS, 4), s(sT3)))
        a("buffer_load_dwordx4 %s, %s, %s offen offset:1024 lds" % (v(vL16), s(rWS, 4), s(sT3)))
    a("s_lshl_b32 %s, %s, 3" % (s(sT0), s(sXC)))
    a("s_lshl_b32 %s, %s, 1" % (s(sT1), s(sA)))
    a("s_add_u32 %s, %s, %s" % (s(sT0), s(sT0), s(sT1)))
    a("s_mul_i32 %s, %s, 108" % (s(sT0), s(sT0)))
    a("s_add_u32 %s, %s, %s" % (s(sT0), s(sT0), s(sCG0)))
    a("s_lshl_b32 %s, %s, 10" % (s(sT0), s(sT0)))
    a("s_add_u32 %s, %s, %d" % (s(sT0), s(sT0), QKV_BASE))
    a("s_add_u32 %s, %s, %d" % (s(sT1), s(sT0), 108 * 1024))
    for qt in range(2):
        for p in range(2):
            a("buffer_load_dwordx4 %s, %s, %s, %s offen offset:%d" % (v(Q0 + 8 * qt + 4 * p, 4), v(vL16), s(rWS, 4), s(sT0 + qt), 1024 * p))
    a("v_lshrrev_b32 %s, 5, %s" % (v(T[0]), v(vLANE)))
    a("v_lshlrev_b32 %s, 2, %s" % (v(T[0]), v(T[0])))
    a("v_and_b32 %s, 31, %s" % (v(T[1]), v(vLANE)))
    a("v_sub_u32 %s, %s, %s" % (v(T[2]), v(T[1]), v(T[0])))
    for r in range(16):
        a("v_cmp_le_i32 %s, %d, %s" % (s(sM[r], 2), (r & 3) + 8 * (r >> 2), v(T[2])))
    a("v_lshlrev_b32 %s, 1, %s" % (v(T[2]), v(T[0])))
    a("v_subrev_u32 %s, %s, %s" % (v(T[2]), s(sSFT), v(T[2])))
    for p in range(2):
        for dw in range(4):
            a("v_add_u32 %s, %d, %s" % (v(T[3]), 16 * p + 2 * dw, v(T[2])))
            a("v_cmp_gt_u32 %s, 18, %s" % (s(sK[4 * p + dw], 2), v(T[3])))
    a("s_lshl_b32 %s, %s, 13" % (s(sT2), s(sA)))
    a("s_add_u32 %s, %s, %d" % (s(sT2), s(sT2), AB))
    a("v_add_u32 %s, %s, %s" % (v(vKB), s(sT2), v(vL16)))
    a("s_lshr_b32 %s, %s, 2" % (s(sT3), s(sSFT)))
    a("v_bfe_u32 %s, %s, 4, 1" % (v(T[3]), v(vLANE)))
    a("v_and_b32 %s, 3, %s" % (v(T[4]), v(vLANE)))
    a("v_lshl_add_u32 %s, %s, 2, %s" % (v(T[3]), v(T[3]), v(T[4])))
    a("v_min_u32 %s, 5, %s" % (v(T[3]), v(T[3])))
    a("v_add_u32 %s, %s, %s" % (v(T[3]), s(sT3), v(T[3])))
    a("v_bfe_u32 %s, %s, 1, 2" % (v(T[4]), v(T[3])))
    a("v_lshlrev_b32 %s, 9, %s" % (v(T[4]), v(T[4])))
    a("v_and_b32 %s, 1, %s" % (v(T[3]), v(T[3])))
    a("v_lshl_add_u32 %s, %s, 3, %s" % (v(T[3]), v(T[3]), v(T[4])))
    a("v_bfe_u32 %s, %s, 2, 2" % (v(T[4]), v(vLANE)))
    a("v_add_u32 %s, %s, %s" % (v(T[4]), v(T[4]), v(T[0])))
    a("v_lshl_add_u32 %s, %s, 4, %s" % (v(T[3]), v(T[4]), v(T[3])))
    a("v_add_u32 %s, %s, %s" % (v(vVB), s(sT2), v(T[3])))
    a("s_mul_i32 %s, %s, 3" % (s(sT0), s(sSLOT)))
    a("v_lshrrev_b32 %s, 5, %s" % (v(T[3]), v(vLANE)))
    a("v_add_u32 %s, %s, %s" % (v(T[3]), s(sT0), v(T[3])))
    a("v_lshrrev_b32 %s, 2, %s" % (v(T[4]), v(T[3])))
    a("v_mul_u32_u24 %s, 5120, %s" % (v(T[4]), v(T[4])))
    a("v_and_b32 %s, 3, %s" % (v(T[3]), v(T[3])))
    a("v_lshl_add_u32 %s, %s, 8, %s" % (v(T[3]), v(T[3]), v(T[4])))
    a("v_and_b32 %s, 15, %s" % (v(T[4]), v(vLANE)))
    a("v_lshl_add_u32 %s, %s, 4, %s" % (v(vOL), v(T[4]), v(T[3])))
    a("s_add_u32 %s, %s, 2" % (s(sT1), s(sT0)))
    a("s_lshr_b32 %s, %s, 2" % (s(sOB), s(sT1)))
    a("s_lshr_b32 %s, %s, 2" % (s(sMIN), s(sT0)))
    a("s_sub_u32 %s, %s, %s" % (s(sOB), s(sOB), s(sMIN)))
    a("s_mul_i32 %s, %s, %d" % (s(sOB), s(sOB), 5120 - 1024))
    a("s_add_u32 %s, %s, %d" % (s(sOB), s(sOB), H_BASE + 144 * 5120 + 512))
    a("v_mov_b32 %s, 0xff800000" % v(vNINF))
    a("s_mov_b32 %s, 0x%x" % (s(sC), fbits(18 ** -0.5 * math.log2(math.e))))
    a("s_add_u32 %s, %s, 5" % (s(sT3), s(sT3)))
    a("s_bfe_u32 %s, %s, 0x20001" % (s(sT0), s(sT3)))
    a("s_lshl_b32 %s, %s, 9" % (s(sT0), s(sT0)))
    a("s_and_b32 %s, %s, 1" % (s(sT1), s(sT3)))
    a("s_lshl_b32 %s, %s, 3" % (s(sT1), s(sT1)))
    a("s_add_u32 %s, %s, %s" % (s(sT0), s(sT0), s(sT1)))
    a("s_lshl_b32 %s, %s, 14" % (s(sT1), s(sA)))
    a("s_add_u32 %s, %s, %s" % (s(sT0), s(sT0), s(sT1)))
    a("s_add_u32 %s, %s, %d" % (s(sT0), s(sT0), AB + 2048))
    a("v_lshlrev_b32 %s, 4, %s" % (v(T[3]), v(T[1])))
    a("v_add3_u32 %s, %s, %s, %s" % (v(T[3]), v(T[3]), v(T[0]), s(sT0)))
    a("v_mov_b32 %s, 0x3f803f80" % v(T[4]))
    a("v_mov_b32 %s, %d" % (v(T[5]), LCNT))
    a("v_mov_b32 %s, 1" % v(vMX))
    a("s_waitcnt vmcnt(0)")
    for j in range(4):
        a("ds_write_b32 %s, %s offset:%d" % (v(T[3]), v(T[4]), j * 4096))
    a("s_mov_b64 exec, 1")
    a("ds_add_u32 %s, %s" % (v(T[5]), v(vMX)))
    a("s_mov_b64 exec, -1")
    for qt in range(2):
        for i in range(8):
            a("v_cndmask_b32 %s, 0, %s, %s" % (v(Q0 + 8 * qt + i), v(Q0 + 8 * qt + i), s(sK[i], 2)))
    a("s_bitcmp1_b32 %s, 0" % s(sSLOT))
    a("s_cselect_b32 %s, 0, -1" % s(sK[0]))
    a("s_mov_b32 %s, -1" % s(sK[0] + 1))
    a("s_cselect_b64 %s, -1, 0" % s(sK[1], 2))
    st.stamp()
    a.label("L_k2_astage")
    a("ds_read_b32 %s, %s" % (v(vMX), v(T[5])))
    a("s_waitcnt lgkmcnt(0)")
    a("v_readfirstlane_b32 %s, %s" % (s(sT0), v(vMX)))
    a("s_cmp_lt_u32 %s, 4" % s(sT0))
    a("s_cbranch_scc1 L_k2_astage")
    for qt in range(2):
        st.stamp()
        if opt.get("k2_prio", 1) == 2: a("s_setprio 0")
        Q = Q0 + 8 * qt
        def krd(t):
            for p in range(2):
                a("ds_read_b128 %s, %s offset:%d" % (v(KF0 + 8 * (t & 1) + 4 * p, 4), v(vKB), (qt + t) * 4096 + 1024 * p))
        def vrd(t):
            for hf in range(2):
                for aa in range(2):
                    a("ds_read_b64_tr_b16 %s, %s offset:%d" % (v(VF0 + 8 * (t & 1) + 4 * hf + 2 * aa, 2), v(vVB), (qt + t) * 4096 + 2048 + hf * 256 + aa * 128))
        krd(0)
        for t in range(9):
            if t < 8:
                krd(t + 1)
                a("s_waitcnt lgkmcnt(2)")
            else:
                a("s_waitcnt lgkmcnt(0)")
            kf = KF0 + 8 * (t & 1)
            a("v_mfma_f32_32x32x16_bf16 %s, %s, %s, 0" % (v(SR(t), 16), v(kf, 4), v(Q, 4)))
            a("v_mfma_f32_32x32x16_bf16 %s, %s, %s, %s" % (v(SR(t), 16), v(kf + 4, 4), v(Q + 4, 4), v(SR(t), 16)))
        vrd(0)
        vrd(1)
        for r in range(16):
            a("v_cndmask_b32 %s, %s, %s, %s" % (v(SR(0) + r), v(SR(0) + r), v(vNINF), s(sM[r], 2)))
        for r in range(16):
            a("v_cndmask_b32 %s, %s, %s, %s" % (v(SR(8) + r), v(vNINF), v(SR(8) + r), s(sM[r], 2)))
        lskip = a.newlabel("k2_nofix")
        a("s_cmp_lg_u32 %s, 0" % s(sXC))
        a("s_cbranch_scc1 %s" % lskip)
        a("s_lshl_b32 %s, %s, 1" % (s(sMIN), s(sA)))
        a("s_sub_u32 %s, %d, %s" % (s(sMIN), 8 - qt, s(sMIN)))
        for t in range(8):
            a("s_cmp_le_u32 %s, %d" % (s(sMIN), t))
            a("s_cbranch_scc1 %s" % lskip)
            for r in range(16):
                a("v_mov_b32 %s, %s" % (v(SR(t) + r), v(vNINF)))
        a.label(lskip)
        a("v_max_f32 %s, %s, %s" % (v(vMX), v(S0), v(S0 + 1)))
        a("v_max_f32 %s, %s, %s" % (v(vMX2), v(S0 + 2), v(S0 + 3)))
        for i in range(4, 144, 4):
            a("v_max3_f32 %s, %s, %s, %s" % (v(vMX), v(S0 + i), v(S0 + i + 1), v(vMX)))
            a("v_max3_f32 %s, %s, %s, %s" % (v(vMX2), v(S0 + i + 2), v(S0 + i + 3), v(vMX2)))
        a("v_max_f32 %s, %s, %s" % (v(vMX), v(vMX), v(vMX2)))
        a("v_mov_b32 %s, %s" % (v(vMX2), v(vMX)))
        a("s_nop 1")
        a("v_permlane32_swap_b32 %s, %s" % (v(vMX), v(vMX2)))
        a("s_nop 1")
        a("v_max_f32 %s, %s, %s" % (v(vMX), v(vMX), v(vMX2)))
        a("v_mul_f32 %s, %s, %s" % (v(vMX), s(sC), v(vMX)))
        for t in range(9):
            R = SR(t)
            for r in range(16):
                a("v_fma_f32 %s, %s, %s, -%s" % (v(R + r), v(R + r), s(sC), v(vMX)))
            for r in range(16):
                a("v_exp_f32 %s, %s" % (v(R + r), v(R + r)))
            a("s_nop 0")
            for j in range(8):
                a("v_cvt_pk_bf16_f32 %s, %s, %s" % (v(R + j), v(R + 2 * j), v(R + 2 * j + 1)))
            a("s_waitcnt lgkmcnt(%d)" % (4 if t < 8 else 0))
            a("s_nop 0")
            vf = VF0 + 8 * (t & 1)
            c = "0" if t == 0 else v(O0, 16)
            a("v_mfma_f32_32x32x16_bf16 %s, %s, %s, %s" % (v(O0, 16), v(vf, 4), v(R, 4), c))
            a("v_mfma_f32_32x32x16_bf16 %s, %s, %s, %s" % (v(O0, 16), v(vf + 4, 4), v(R + 4, 4), v(O0, 16)))
            if t + 2 < 9:
                vrd(t + 2)
        a("s_lshl_b32 %s, %s, 4" % (s(sT0), s(sXC)))
        a("s_lshl_b32 %s, %s, 2" % (s(sT1), s(sA)))
        a("s_add_u32 %s, %s, %s" % (s(sT0), s(sT0), s(sT1)))
        a("s_add_u32 %s, %s, %d" % (s(sT0), s(sT0), 2 * qt))
        a("v_bfe_u32 %s, %s, 4, 1" % (v(T[1]), v(vLANE)))
        a("v_add_u32 %s, %s, %s" % (v(T[1]), s(sT0), v(T[1])))
        a("v_mul_u32_u24 %s, 205, %s" % (v(T[2]), v(T[1])))
        a("v_lshrrev_b32 %s, 10, %s" % (v(T[2]), v(T[2])))
        a("v_mul_u32_u24 %s, %d, %s" % (v(T[2]), NKS * 5 - 5, v(T[2])))
        a("v_add_u32 %s, %s, %s" % (v(T[1]), v(T[1]), v(T[2])))
        a("v_lshl_add_u32 %s, %s, 10, %s" % (v(vOOFF), v(T[1]), v(vOL)))
        a("s_nop 6")
        a("v_rcp_f32 %s, %s" % (v(T[0]), v(O0 + 12)))
        a("s_nop 0")
        for r in range(12):
            a("v_mul_f32 %s, %s, %s" % (v(O0 + r), v(O0 + r), v(T[0])))
        for j in range(6):
            a("v_cvt_pk_bf16_f32 %s, %s, %s" % (v(O0 + j), v(O0 + 2 * j), v(O0 + 2 * j + 1)))
        a("v_cndmask_b32 %s, 0, %s, %s" % (v(O0), v(O0), s(sK[0], 2)))
        a("v_cndmask_b32 %s, 0, %s, %s" % (v(O0 + 5), v(O0 + 5), s(sK[1], 2)))
        a("v_mov_b32 %s, 0" % v(O0 + 6))
        a("v_mov_b32 %s, 0" % v(O0 + 7))
        if opt.get("k2_prio", 1) == 2: a("s_setprio 3")
        a("s_mov_b32 %s, %d" % (s(sT0), H_BASE + 144 * 5120))
        a("buffer_store_dwordx4 %s, %s, %s, %s offen sc1" % (v(O0, 4), v(vOOFF), s(rWS, 4), s(sT0)))
        a("s_mov_b32 exec_hi, 0")
        a("buffer_store_dwordx4 %s, %s, %s, %s offen sc1" % (v(O0 + 4, 4), v(vOOFF), s(rWS, 4), s(sOB)))
        a("s_mov_b64 exec, -1")
    st.stamp()
    a("s_waitcnt vmcnt(0)")
    st.stamp()
    a("v_mov_b32 %s, %d" % (v(T[0]), LCNT + 4))
    a("v_mov_b32 %s, 1" % v(T[1]))
    a("s_mov_b64 exec, 1")
    a("ds_add_rtn_u32 %s, %s, %s" % (v(T[2]), v(T[0]), v(T[1])))
    a("s_waitcnt lgkmcnt(0)")
    a("v_readfirstlane_b32 %s, %s" % (s(sT0), v(T[2])))
    a("s_lshl_b32 %s, %s, 5" % (s(sT1), s(sXC)))
    a("v_mov_b32 %s, %s" % (v(T[0]), s(sT1)))
    a("s_cmp_lg_u32 %s, 3" % s(sT0))
    a("s_cbranch_scc1 L_k2_fin")
    a("global_atomic_add %s, %s, %s sc1" % (v(T[0]), v(T[1]), s(sDBG, 2)))
    a.label("L_k2_fin")
    if st.on: a("s_waitcnt vmcnt(0)")
    st.stamp(); st.stamp(True); st.dump(sWAVE, sWS, 254)
    a.label("L_k2_end")
    a("s_endpgm")
    return a.text(), kdesc(K2_NAME, 256, 102)
```

```python
from common import *

K1_NAME = "g1_kernel"
REG = 36864
SCR = 4 * REG
K1_LDS = SCR + 4 * 2048

def gen_k1(opt):
    a = Asm()
    a.raw(khead(K1_NAME))
    st_flag = opt.get("k1_store_flag", "")
    w_flag = opt.get("k1_w_flag", "")
    x_flag = opt.get("k1_x_flag", "")
    sX, sWQ, sWG, sWU, sWS = 4, 6, 8, 10, 12
    rX, rWQ, rWG, rWU, rWS = 16, 20, 24, 28, 32
    sWAVE, sRB, sCG, sROT, sW4 = 36, 37, 38, 39, 40
    sT0, sT1, sT2, sT3 = 41, 42, 43, 44
    sNQ, sNP, sQ0, sP0 = 45, 46, 47, 48
    sI, sNCH, sEP0, sEP1, sHB0, sHB1, sQB, sE2 = 49, 50, 51, 52, 53, 54, 55, 56
    sIC, sIG, sLB, sLEND, sLBEG, sG, sLAST, sO0, sKB, sPIT, sCOL = 49, 51, 52, 53, 54, 55, 56, 57, 58, 59, 60
    vLANE = 1
    vTR = [2, 3]
    vL16 = 4
    vT = [5, 6, 7, 8, 9, 10, 11, 12, 13, 14]
    X0 = 16
    ACC = [160, 192]
    WF0 = 224
    NF, PD = 8, 7
    def X(m, ks): return X0 + 8 * ks + 4 * m
    def WF(q): return WF0 + 4 * (q % NF)
    def TL(A, nt, m): return A + (m * 4 + nt) * 4

    a("s_cmp_ge_u32 s2, 256")
    a("s_cbranch_scc1 L_k1_end")
    if opt.get("code_pf", 1):
        a("s_getpc_b64 s[14:15]")
        a("s_lshr_b32 s3, s2, 3")
        a("s_lshl_b32 s3, s3, 11")
        a("v_lshl_add_u32 v14, v0, 7, s3")
        a("v_min_u32 v14, L_code_end-%s-128, v14" % K1_NAME)
        a("v_cmp_gt_u32 vcc, 16, v0")
        a("s_and_saveexec_b64 s[62:63], vcc")
        a("s_cbranch_execz L_k1_nocpf")
        a("global_load_dword v255, v14, s[14:15]")
        a.label("L_k1_nocpf")
        a("s_mov_b64 exec, s[62:63]")
    st = Stamper(a, opt.get("diag", 0), 15, 64, 0)
    st.init(); st.stamp(True); st.stamp()
    a("s_load_dwordx4 %s, s[0:1], %d" % (s(4, 4), KA_X))
    a("s_load_dwordx4 %s, s[0:1], %d" % (s(8, 4), KA_WG))
    a("s_load_dwordx2 %s, s[0:1], %d" % (s(12, 2), KA_WS))
    a("s_load_dwordx2 %s, s[0:1], %d" % (s(68, 2), KA_WO))
    a("s_load_dwordx2 %s, s[0:1], %d" % (s(70, 2), KA_WD))
    a("v_and_b32 %s, 63, v0" % v(vLANE))
    a("v_lshrrev_b32 %s, 6, v0" % v(vT[0]))
    a("s_and_b32 %s, s2, 7" % s(sT0))
    a("s_lshr_b32 %s, s2, 3" % s(sT1))
    a("v_readfirstlane_b32 %s, %s" % (s(sWAVE), v(vT[0])))
    LR = opt.get("k1_lrb", 3)
    RBX, CGX = 1 << LR, 32 >> LR
    a("s_and_b32 %s, %s, %d" % (s(sT3), s(sT1), RBX - 1))
    a("s_lshr_b32 %s, %s, %d" % (s(sT1), s(sT1), LR))
    a("s_and_b32 %s, %s, %d" % (s(sT2), s(sT0), 16 // RBX - 1))
    a("s_lshr_b32 %s, %s, %d" % (s(sT0), s(sT0), 4 - LR))
    a("s_lshl_b32 %s, %s, %d" % (s(sRB), s(sT2), LR))
    a("s_add_u32 %s, %s, %s" % (s(sRB), s(sRB), s(sT3)))
    a("s_lshl_b32 %s, %s, %d" % (s(sCG), s(sT0), 5 - LR))
    a("s_add_u32 %s, %s, %s" % (s(sCG), s(sCG), s(sT1)))
    mr, mc = opt.get("k1_rot", {4: (1, 4), 3: (1, 2), 2: (2, 1)}[LR])
    a("s_mul_i32 %s, %s, %d" % (s(sT3), s(sT3), mr))
    a("s_mul_i32 %s, %s, %d" % (s(sT1), s(sT1), mc))
    a("s_add_u32 %s, %s, %s" % (s(sROT), s(sT3), s(sT1)))
    a("s_mul_i32 %s, %s, 57" % (s(sT0), s(sROT)))
    a("s_lshr_b32 %s, %s, 9" % (s(sT0), s(sT0)))
    a("s_mul_i32 %s, %s, 9" % (s(sT0), s(sT0)))
    a("s_sub_u32 %s, %s, %s" % (s(sROT), s(sROT), s(sT0)))
    a("s_mov_b32 %s, 1" % s(sNQ))
    a("s_mov_b32 %s, 5" % s(sNP))
    a("s_mov_b32 %s, %s" % (s(sQ0), s(sCG)))
    a("s_mul_i32 %s, %s, 5" % (s(sP0), s(sCG)))
    a("s_cmp_eq_u32 %s, 14" % s(sCG))
    a("s_cselect_b32 %s, 7, %s" % (s(sNQ), s(sNQ)))
    a("s_cselect_b32 %s, 1, %s" % (s(sNP), s(sNP)))
    a("s_cmp_eq_u32 %s, 15" % s(sCG))
    a("s_cselect_b32 %s, 6, %s" % (s(sNQ), s(sNQ)))
    a("s_cselect_b32 %s, 1, %s" % (s(sNP), s(sNP)))
    a("s_cselect_b32 %s, 21, %s" % (s(sQ0), s(sQ0)))
    a("s_cselect_b32 %s, 71, %s" % (s(sP0), s(sP0)))
    a("s_lshl_b32 %s, %s, 1" % (s(sNCH), s(sNP)))
    a("s_add_u32 %s, %s, %s" % (s(sNCH), s(sNCH), s(sNQ)))
    a("s_and_b32 %s, %s, 3" % (s(sW4), s(sWAVE)))
    a("v_lshrrev_b32 %s, 3, %s" % (v(vT[1]), v(vLANE)))
    a("v_and_b32 %s, 7, %s" % (v(vT[2]), v(vLANE)))
    a("v_mul_u32_u24 %s, 1152, %s" % (v(vT[0]), v(vT[1])))
    a("v_lshl_add_u32 %s, %s, 4, %s" % (v(vT[0]), v(vT[2]), v(vT[0])))
    a("v_add_u32 %s, %d, %s" % (v(vT[3]), 8 * 1152, v(vT[0])))
    a("s_lshl_b32 %s, %s, 7" % (s(sT0), s(sRB)))
    a("s_lshl_b32 %s, %s, 5" % (s(sT1), s(sW4)))
    a("s_add_u32 %s, %s, %s" % (s(sT0), s(sT0), s(sT1)))
    a("s_lshr_b32 %s, %s, 2" % (s(sT1), s(sWAVE)))
    a("s_lshl_b32 %s, %s, 4" % (s(sT1), s(sT1)))
    a("s_add_u32 %s, %s, %s" % (s(sT0), s(sT0), s(sT1)))
    a("s_mul_i32 %s, %s, 1152" % (s(sT0), s(sT0)))
    a("s_lshl_b32 %s, %s, 7" % (s(sT1), s(sROT)))
    a("s_waitcnt lgkmcnt(0)")
    srd(a, rX, sX, 2048 * 576 * 2)
    RAW = 176
    def RW(rg, i): return RAW + 8 * i + 4 * rg
    for i in range(9):
        a("s_add_u32 %s, %s, %s" % (s(sT2), s(sT0), s(sT1)))
        a("buffer_load_dwordx4 %s, %s, %s, %s offen %s" % (v(RW(0, i), 4), v(vT[0]), s(rX, 4), s(sT2), x_flag))
        a("buffer_load_dwordx4 %s, %s, %s, %s offen %s" % (v(RW(1, i), 4), v(vT[3]), s(rX, 4), s(sT2), x_flag))
        if i < 8:
            a("s_add_u32 %s, %s, 128" % (s(sT1), s(sT1)))
            a("s_cmp_eq_u32 %s, 1152" % s(sT1))
            a("s_cselect_b32 %s, 0, %s" % (s(sT1), s(sT1)))
    srd(a, rWQ, sWQ, 576 * 1728 * 2)
    srd(a, rWG, sWG, 576 * 4608 * 2)
    srd(a, rWU, sWU, 576 * 4608 * 2)
    srd(a, rWS, sWS, WS_BYTES)
    if opt.get("diag", 0) == 1: st.stamp()
    a("v_lshlrev_b32 %s, 4, %s" % (v(vL16), v(vLANE)))

    def layernorm(extra_vm, emit_piece, after_stats=None):
        def Fr(rg, i): return X0 + 16 * i + 8 * rg
        SA = [160, 162]
        SQ = [164, 166]
        for r in range(160, 168):
            a("v_mov_b32 %s, 0" % v(r))
        for i in range(9):
            for rg in range(2):
                a("s_waitcnt vmcnt(%d)" % (17 - 2 * i - rg + extra_vm))
                for d in range(4):
                    a("v_lshlrev_b32 %s, 16, %s" % (v(Fr(rg, i) + 2 * d), v(RW(rg, i) + d)))
                    a("v_and_b32 %s, 0xffff0000, %s" % (v(Fr(rg, i) + 2 * d + 1), v(RW(rg, i) + d)))
                for d in range(4):
                    f = v(Fr(rg, i) + 2 * d, 2)
                    a("v_pk_add_f32 %s, %s, %s" % (v(SA[rg], 2), v(SA[rg], 2), f))
                    a("v_pk_fma_f32 %s, %s, %s, %s" % (v(SQ[rg], 2), f, f, v(SQ[rg], 2)))
        st.stamp()
        if after_stats: after_stats()
        R4 = [160, 162, 164, 166]
        for r in R4:
            a("v_add_f32 %s, %s, %s" % (v(r), v(r), v(r + 1)))
        for dpp in ("quad_perm:[1,0,3,2]", "quad_perm:[2,3,0,1]", "row_half_mirror"):
            for r in R4:
                a("v_add_f32_dpp %s, %s, %s %s row_mask:0xf bank_mask:0xf" % (v(r), v(r), v(r), dpp))
        inv = 0x3ae38e39
        for r in R4:
            a("v_mul_f32 %s, 0x%x, %s" % (v(r), inv, v(r)))
        for rg in range(2):
            a("v_fma_f32 %s, -%s, %s, %s" % (v(SQ[rg]), v(SA[rg]), v(SA[rg]), v(SQ[rg])))
        for rg in range(2):
            a("v_max_f32 %s, 0, %s" % (v(SQ[rg]), v(SQ[rg])))
        for rg in range(2):
            a("v_cvt_pk_bf16_f32 %s, %s, %s" % (v(SQ[rg] + 1), v(SA[rg]), v(SQ[rg])))
        for rg in range(2):
            a("v_lshlrev_b32 %s, 16, %s" % (v(SA[rg]), v(SQ[rg] + 1)))
            a("v_and_b32 %s, 0xffff0000, %s" % (v(SQ[rg]), v(SQ[rg] + 1)))
        for rg in range(2):
            a("v_add_f32 %s, 0x3727c5ac, %s" % (v(SQ[rg]), v(SQ[rg])))
        for rg in range(2):
            a("v_cvt_pk_bf16_f32 %s, %s, %s" % (v(SQ[rg]), v(SQ[rg]), v(SQ[rg])))
        for rg in range(2):
            a("v_and_b32 %s, 0xffff0000, %s" % (v(SQ[rg]), v(SQ[rg])))
        for rg in range(2):
            a("v_sqrt_f32 %s, %s" % (v(SQ[rg]), v(SQ[rg])))
        a("s_nop 0")
        for rg in range(2):
            a("v_cvt_pk_bf16_f32 %s, %s, %s" % (v(SQ[rg]), v(SQ[rg]), v(SQ[rg])))
        for rg in range(2):
            a("v_and_b32 %s, 0xffff0000, %s" % (v(SQ[rg]), v(SQ[rg])))
        for rg in range(2):
            a("v_rcp_f32 %s, %s" % (v(SQ[rg]), v(SQ[rg])))
        a("s_nop 0")
        for rg in range(2):
            a("v_mul_f32 %s, -%s, %s" % (v(SA[rg]), v(SA[rg]), v(SQ[rg])))
        for i in range(9):
            for rg in range(2):
                for d in range(4):
                    f = v(Fr(rg, i) + 2 * d, 2)
                    a("v_pk_fma_f32 %s, %s, %s, %s op_sel_hi:[1,0,0]" % (f, f, v(SQ[rg], 2), v(SA[rg], 2)))
            for rg in range(2):
                for d in range(4):
                    a("v_cvt_pk_bf16_f32 %s, %s, %s" % (v(RW(rg, i) + d), v(Fr(rg, i) + 2 * d), v(Fr(rg, i) + 2 * d + 1)))
            emit_piece(i)

    vWA = vT[4]
    a("v_lshrrev_b32 %s, 2, %s" % (v(vT[5]), v(vT[2])))
    a("v_lshlrev_b32 %s, 10, %s" % (v(vT[5]), v(vT[5])))
    a("v_and_b32 %s, 3, %s" % (v(vT[6]), v(vT[2])))
    a("v_lshl_add_u32 %s, %s, 8, %s" % (v(vT[5]), v(vT[6]), v(vT[5])))
    a("v_xor_b32 %s, %s, %s" % (v(vT[6]), v(vT[1]), v(vT[2])))
    a("v_lshl_add_u32 %s, %s, 4, %s" % (v(vWA), v(vT[6]), v(vT[5])))
    a("s_cmp_ge_u32 %s, 4" % s(sWAVE))
    a("s_cbranch_scc1 L_k1_loader")

    vRA = [vT[7], vT[8]]
    vRH = [vT[0], vT[3]]
    a("v_lshrrev_b32 %s, 4, %s" % (v(vT[5]), v(vLANE)))
    a("v_and_b32 %s, 15, %s" % (v(vT[6]), v(vLANE)))
    a("v_xor_b32 %s, %s, %s" % (v(vT[9]), v(vT[6]), v(vT[5])))
    a("v_lshlrev_b32 %s, 4, %s" % (v(vT[9]), v(vT[9])))
    a("v_lshl_add_u32 %s, %s, 8, %s" % (v(vT[9]), v(vT[5]), v(vT[9])))
    a("s_lshl_b32 %s, %s, 11" % (s(sT0), s(sWAVE)))
    a("s_add_u32 %s, %s, %d" % (s(sT0), s(sT0), SCR))
    a("s_mul_i32 %s, %s, %d" % (s(sT1), s(sWAVE), REG))
    a("s_add_u32 %s, %s, 18432" % (s(sT1), s(sT1)))
    a("v_add_u32 %s, %s, %s" % (v(vWA), s(sT0), v(vWA)))
    a("v_add_u32 %s, %s, %s" % (v(vRA[0]), s(sT0), v(vT[9])))
    a("v_add_u32 %s, %s, %s" % (v(vRH[0]), s(sT1), v(vT[9])))
    a("v_xor_b32 %s, 0x440, %s" % (v(vT[9]), v(vT[9])))
    a("v_add_u32 %s, %s, %s" % (v(vRA[1]), s(sT0), v(vT[9])))
    a("v_add_u32 %s, %s, %s" % (v(vRH[1]), s(sT1), v(vT[9])))
    a("v_mul_u32_u24 %s, %d, %s" % (v(vT[9]), REG, v(vT[5])))
    a("v_bfe_u32 %s, %s, 2, 2" % (v(vT[6]), v(vLANE)))
    a("v_lshl_add_u32 %s, %s, 6, %s" % (v(vT[9]), v(vT[6]), v(vT[9])))
    a("v_and_b32 %s, 3, %s" % (v(vT[6]), v(vLANE)))
    a("v_lshl_add_u32 %s, %s, 3, %s" % (v(vT[9]), v(vT[6]), v(vT[9])))
    a("v_and_b32 %s, 1, %s" % (v(vT[6]), v(vT[5])))
    a("v_lshl_add_u32 %s, %s, 5, %s" % (v(vTR[0]), v(vT[6]), v(vT[9])))
    a("v_xor_b32 %s, 32, %s" % (v(vTR[1]), v(vTR[0])))
    for m, sH in ((0, sHB0), (1, sHB1)):
        a("s_lshl_b32 %s, %s, 3" % (s(sT0), s(sRB)))
        a("s_lshl_b32 %s, %s, 1" % (s(sT1), s(sWAVE)))
        a("s_add_u32 %s, %s, %s" % (s(sT0), s(sT0), s(sT1)))
        a("s_add_u32 %s, %s, %d" % (s(sT0), s(sT0), m))
        a("s_mul_i32 %s, %s, 205" % (s(sT1), s(sT0)))
        a("s_lshr_b32 %s, %s, 10" % (s(sT1), s(sT1)))
        a("s_mul_i32 %s, %s, %d" % (s(sT1), s(sT1), NKS * 5 - 5))
        a("s_add_u32 %s, %s, %s" % (s(sT0), s(sT0), s(sT1)))
        a("s_lshl_b32 %s, %s, 10" % (s(sH), s(sT0)))
        a("s_mul_i32 %s, %s, 10240" % (s(sT1), s(sP0)))
        a("s_add_u32 %s, %s, %s" % (s(sH), s(sH), s(sT1)))
        if H_BASE: a("s_add_u32 %s, %s, %d" % (s(sH), s(sH), H_BASE))
    a("s_lshl_b32 %s, %s, 2" % (s(sT0), s(sRB)))
    a("s_add_u32 %s, %s, %s" % (s(sT0), s(sT0), s(sWAVE)))
    a("s_mul_i32 %s, %s, 108" % (s(sT0), s(sT0)))
    a("s_lshl_b32 %s, %s, 2" % (s(sT1), s(sQ0)))
    a("s_add_u32 %s, %s, %s" % (s(sT0), s(sT0), s(sT1)))
    a("s_lshl_b32 %s, %s, 10" % (s(sQB), s(sT0)))
    a("s_add_u32 %s, %s, %d" % (s(sQB), s(sQB), QKV_BASE))

    def own_piece(i):
        for rg in range(2):
            a("ds_write_b128 %s, %s offset:%d" % (v(vWA), v(RW(rg, i), 4), rg * 128))
        for e in range(2):
            a("ds_read_b128 %s, %s" % (v(X(0, 2 * i + e), 4), v(vRA[e])))
    layernorm(0, own_piece)

    def rd(q, bf):
        ks, nt = q >> 2, q & 3
        off = bf * 18432 + ks * 1024 + (nt >> 1) * 512
        return ["ds_read_b64_tr_b16 %s, %s offset:%d" % (v(WF(q), 2), v(vTR[nt & 1]), off),
                "ds_read_b64_tr_b16 %s, %s offset:%d" % (v(WF(q) + 2, 2), v(vTR[nt & 1]), off + 256)]

    def epi_tail(B, typ):
        ops = []
        if typ == "u":
            for m, sE in ((0, sEP0), (1, sEP1)):
                for kk in range(2):
                    R = TL(B, 2 * kk, m)
                    for j in range(4):
                        ops.append("v_cvt_pk_bf16_f32 %s, %s, %s" % (v(R + j), v(R + 2 * j), v(R + 2 * j + 1)))
                    if kk == 0:
                        ops.append("buffer_store_dwordx4 %s, %s, %s, %s offen %s" % (v(R, 4), v(vL16), s(rWS, 4), s(sE), st_flag))
                    else:
                        ops.append("s_add_u32 %s, %s, 5120" % (s(sE2), s(sE)))
                        ops.append("buffer_store_dwordx4 %s, %s, %s, %s offen %s" % (v(R, 4), v(vL16), s(rWS, 4), s(sE2), st_flag))
        elif typ == "q":
            for nt in range(4):
                P, Q = TL(B, nt, 0), TL(B, nt, 1)
                ops.append("v_cvt_pk_bf16_f32 %s, %s, %s" % (v(P), v(P), v(P + 1)))
                ops.append("v_cvt_pk_bf16_f32 %s, %s, %s" % (v(P + 1), v(P + 2), v(P + 3)))
                ops.append("v_cvt_pk_bf16_f32 %s, %s, %s" % (v(P + 2), v(Q), v(Q + 1)))
                ops.append("v_cvt_pk_bf16_f32 %s, %s, %s" % (v(P + 3), v(Q + 2), v(Q + 3)))
                ops.append("s_nop 1")
                ops.append("v_permlane16_swap_b32 %s, %s" % (v(P), v(P + 2)))
                ops.append("v_permlane16_swap_b32 %s, %s" % (v(P + 1), v(P + 3)))
                ops.append("buffer_store_dwordx4 %s, %s, %s, %s offen offset:%d %s" % (v(P, 4), v(vL16), s(rWS, 4), s(sEP0), nt * 1024, st_flag))
        return ops

    def body(bf, ptyp):
        A, B = ACC[bf], ACC[1 - bf]
        ep = epi_tail(B, ptyp)
        for q in range(72):
            ks, nt = q >> 2, q & 3
            nq = q + PD
            nbf = bf if nq < 72 else 1 - bf
            r2 = rd(nq % 72, nbf)
            if nq % 24 == 0:
                a("s_barrier")
            if q % 2 == 0:
                a("s_waitcnt lgkmcnt(%d)" % (2 * PD - 4))
            for m in range(2):
                T = TL(A, nt, m)
                if ks == 0 and ptyp == "u":
                    U = TL(B, nt, m)
                    for r in range(4):
                        a("v_mul_f32 %s, %s, %s" % (v(U + r), v(T + r), v(U + r)))
                c = "0" if ks == 0 else v(T, 4)
                a("v_mfma_f32_16x16x32_bf16 %s, %s, %s, %s" % (v(T, 4), v(WF(q), 4), v(X(m, ks), 4), c))
                a(r2[m])
                if q >= 6 and ep and not (m == 1 and q % 2 == 1):
                    a(ep.pop(0))
        assert not ep

    st.stamp()
    a("s_barrier")
    st.stamp()
    if opt.get("diag", 0) == 2: st.stamp(True)
    for ks in range(18):
        a("ds_read_b128 %s, %s offset:%d" % (v(X(1, ks), 4), v(vRH[ks & 1]), (ks >> 1) * 2048))
    for q in range(PD):
        for l in rd(q, 0):
            a(l)
    a("s_mov_b32 %s, 0" % s(sI))
    a("s_branch L_k1_b0n")
    for bf in range(2):
        for typ in ("q", "u", "n"):
            a.label("L_k1_b%d%s" % (bf, typ))
            body(bf, typ)
            if typ != "n":
                a("s_branch L_k1_after%d" % bf)
        a.label("L_k1_after%d" % bf)
        st.stamp()
        if opt.get("diag", 0) == 2: st.stamp(True)
        a("s_add_u32 %s, %s, 1" % (s(sI), s(sI)))
        a("s_cmp_le_u32 %s, %s" % (s(sI), s(sNQ)))
        a("s_cbranch_scc0 L_k1_gu%d" % bf)
        a("s_mov_b32 %s, %s" % (s(sEP0), s(sQB)))
        a("s_add_u32 %s, %s, 4096" % (s(sQB), s(sQB)))
        a("s_branch L_k1_b%dq" % (1 - bf))
        a.label("L_k1_gu%d" % bf)
        a("s_sub_u32 %s, %s, %s" % (s(sT0), s(sI), s(sNQ)))
        a("s_bitcmp1_b32 %s, 0" % s(sT0))
        a("s_cbranch_scc1 L_k1_b%dn" % (1 - bf))
        a("s_mov_b32 %s, %s" % (s(sEP0), s(sHB0)))
        a("s_mov_b32 %s, %s" % (s(sEP1), s(sHB1)))
        a("s_add_u32 %s, %s, 10240" % (s(sHB0), s(sHB0)))
        a("s_add_u32 %s, %s, 10240" % (s(sHB1), s(sHB1)))
        a("s_cmp_lt_u32 %s, %s" % (s(sI), s(sNCH)))
        a("s_cbranch_scc1 L_k1_b%du" % (1 - bf))
        for r in range(32):
            a("v_mul_f32 %s, %s, %s" % (v(ACC[bf] + r), v(ACC[1 - bf] + r), v(ACC[bf] + r)))
        for l in epi_tail(ACC[bf], "u"):
            a(l)
        if st.on: a("s_waitcnt vmcnt(0)")
        st.stamp(); st.stamp(True); st.dump(sWAVE, sWS, 14)
        a("s_endpgm")

    a.label("L_k1_loader")
    vDQ, vDG = 2, 3
    a("v_bfe_u32 %s, %s, 2, 3" % (v(vT[5]), v(vLANE)))
    a("s_lshl_b32 %s, %s, 3" % (s(sT0), s(sW4)))
    a("v_add_u32 %s, %s, %s" % (v(vT[5]), s(sT0), v(vT[5])))
    a("s_and_b32 %s, %s, 1" % (s(sT0), s(sW4)))
    a("s_lshl_b32 %s, %s, 1" % (s(sT0), s(sT0)))
    a("v_and_b32 %s, 3, %s" % (v(vT[6]), v(vLANE)))
    a("v_xor_b32 %s, %s, %s" % (v(vT[6]), s(sT0), v(vT[6])))
    a("v_lshlrev_b32 %s, 4, %s" % (v(vT[6]), v(vT[6])))
    a("v_lshrrev_b32 %s, 5, %s" % (v(vT[7]), v(vLANE)))
    a("v_lshl_add_u32 %s, %s, 6, %s" % (v(vT[6]), v(vT[7]), v(vT[6])))
    a("v_mul_u32_u24 %s, 3456, %s" % (v(vDQ), v(vT[5])))
    a("v_add_u32 %s, %s, %s" % (v(vDQ), v(vDQ), v(vT[6])))
    a("v_mul_u32_u24 %s, 9216, %s" % (v(vDG), v(vT[5])))
    a("v_add_u32 %s, %s, %s" % (v(vDG), v(vDG), v(vT[6])))
    a("s_mov_b32 %s, 0" % s(sIC))
    a("s_mov_b32 %s, 0" % s(sIG))
    a("s_mov_b32 %s, %s" % (s(sKB), s(sROT)))
    a("s_mul_i32 %s, %s, %d" % (s(sLBEG), s(sW4), REG))
    a("s_add_u32 %s, %s, %d" % (s(sLEND), s(sLBEG), REG))
    a("s_mov_b32 %s, %s" % (s(sLB), s(sLBEG)))
    a("s_mul_i32 %s, %s, 3" % (s(sLAST), s(sNCH)))
    a("s_add_u32 %s, %s, 18432" % (s(sT0), s(sLBEG)))
    a("v_add_u32 %s, %s, %s" % (v(vWA), s(sT0), v(vWA)))
    def issue_kind(r, vo, pitch):
        for kb in range(3):
            a("s_mul_i32 %s, %s, %d" % (s(sO0), s(sKB), 64 * pitch))
            a("s_add_u32 %s, %s, %s" % (s(sO0), s(sO0), s(sCOL)))
            a("s_add_u32 m0, %s, %d" % (s(sLB), kb * 2048))
            a("s_add_u32 %s, %s, 1" % (s(sKB), s(sKB)))
            a("buffer_load_dwordx4 %s, %s, %s offen %s lds" % (v(vo), s(r, 4), s(sO0), w_flag))
            a("s_add_u32 m0, %s, %d" % (s(sLB), kb * 2048 + 1024))
            a("s_add_u32 %s, %s, %d" % (s(sO0), s(sO0), 32 * pitch))
            a("buffer_load_dwordx4 %s, %s, %s offen %s lds" % (v(vo), s(r, 4), s(sO0), w_flag))
            a("s_cmp_eq_u32 %s, 9" % s(sKB))
            a("s_cselect_b32 %s, 0, %s" % (s(sKB), s(sKB)))
    def issue_group():
        lq = a.newlabel("k1_iq"); lu = a.newlabel("k1_iu"); le = a.newlabel("k1_ie")
        a("s_cmp_lt_u32 %s, %s" % (s(sIC), s(sNQ)))
        a("s_cbranch_scc1 %s" % lq)
        a("s_sub_u32 %s, %s, %s" % (s(sT0), s(sIC), s(sNQ)))
        a("s_lshr_b32 %s, %s, 1" % (s(sT1), s(sT0)))
        a("s_add_u32 %s, %s, %s" % (s(sT1), s(sT1), s(sP0)))
        a("s_lshl_b32 %s, %s, 7" % (s(sCOL), s(sT1)))
        a("s_bitcmp1_b32 %s, 0" % s(sT0))
        a("s_cbranch_scc1 %s" % lu)
        issue_kind(rWG, vDG, 9216)
        a("s_branch %s" % le)
        a.label(lu)
        issue_kind(rWU, vDG, 9216)
        a("s_branch %s" % le)
        a.label(lq)
        a("s_add_u32 %s, %s, %s" % (s(sT1), s(sIC), s(sQ0)))
        a("s_lshl_b32 %s, %s, 7" % (s(sCOL), s(sT1)))
        issue_kind(rWQ, vDQ, 3456)
        a.label(le)
        a("s_add_u32 %s, %s, 6144" % (s(sLB), s(sLB)))
        a("s_cmp_eq_u32 %s, %s" % (s(sLB), s(sLEND)))
        a("s_cselect_b32 %s, %s, %s" % (s(sLB), s(sLBEG), s(sLB)))
        a("s_add_u32 %s, %s, 1" % (s(sIG), s(sIG)))
        a("s_cmp_eq_u32 %s, 3" % s(sIG))
        a("s_cselect_b32 %s, 0, %s" % (s(sIG), s(sIG)))
        a("s_addc_u32 %s, %s, 0" % (s(sIC), s(sIC)))
        a("s_add_u32 %s, %s, 1" % (s(sG), s(sG)))
    a("s_mov_b32 %s, 0" % s(sG))
    issue_group()
    def helper_piece(i):
        for rg in range(2):
            a("ds_write_b128 %s, %s offset:%d" % (v(vWA), v(RW(rg, i), 4), rg * 128 + i * 2048))
        if i == 4:
            issue_group()
    layernorm(6, helper_piece, issue_group)
    a("s_waitcnt vmcnt(12) lgkmcnt(0)")
    st.stamp()
    a("s_barrier")
    a("s_waitcnt vmcnt(6)")
    a("s_barrier")
    issue_group()
    a("s_waitcnt vmcnt(6)")
    a("s_barrier")
    issue_group()
    issue_group()
    a("s_waitcnt vmcnt(12)")
    a("s_barrier")
    issue_group()
    issue_group()
    NB = opt.get("k1_pf", 0)
    rWO, rWD, sPF, sPFO = 72, 76, 61, 62
    vPX, vPC = 5, 6
    if NB >= 0:
        srd(a, rWO, 68, 576 * 576 * 2)
        srd(a, rWD, 70, 4608 * 576 * 2)
        a("s_lshr_b32 %s, s2, 3" % s(sT0))
        a("s_lshl_b32 %s, %s, 2" % (s(sT0), s(sT0)))
        a("s_add_u32 %s, %s, %s" % (s(sT0), s(sT0), s(sW4)))
        a("s_lshl_b32 %s, %s, 13" % (s(sT0), s(sT0)))
        a("v_lshlrev_b32 %s, 7, %s" % (v(vPX), v(vLANE)))
        a("v_add_u32 %s, %s, %s" % (v(vPX), s(sT0), v(vPX)))
        rest = (4608 * 1152 - (NB << 20)) // 128
        per = (rest + 1023) // 1024
        assert per <= 64
        a("s_lshl_b32 %s, s2, 2" % s(sT0))
        a("s_add_u32 %s, %s, %s" % (s(sT0), s(sT0), s(sW4)))
        a("s_mul_i32 %s, %s, %d" % (s(sT1), s(sT0), per * 128))
        a("s_add_u32 %s, %s, %d" % (s(sT1), s(sT1), NB << 20))
        a("v_lshlrev_b32 %s, 7, %s" % (v(vPC), v(vLANE)))
        a("v_cmp_gt_u32 vcc, %d, %s" % (per, v(vLANE)))
        a("s_mov_b64 exec, vcc")
        a("buffer_load_dword v20, %s, %s, %s offen" % (v(vPC), s(rWD, 4), s(sT1)))
        a("s_mul_i32 %s, %s, %d" % (s(sT1), s(sT0), 6 * 128))
        a("v_cmp_gt_u32 vcc, 6, %s" % v(vLANE))
        a("s_mov_b64 exec, vcc")
        a("buffer_load_dword v21, %s, %s, %s offen" % (v(vPC), s(rWO, 4), s(sT1)))
        a("s_mov_b64 exec, -1")
        GAP = opt.get("k1_pf_gap", 3)
        a("s_sub_u32 %s, %s, %d" % (s(sPF), s(sLAST), NB * GAP + opt.get("k1_pf_end", 0)))
        a("s_mov_b32 %s, %d" % (s(sPFO), max(NB - 1, 0) << 20))
    a.label("L_k1_l2")
    st.stamp()
    a("s_waitcnt vmcnt(18)")
    st.stamp()
    a("s_barrier")
    issue_group()
    if NB > 0:
        a("s_cmp_lg_u32 %s, %s" % (s(sG), s(sPF)))
        a("s_cbranch_scc1 L_k1_nopf")
        a("buffer_load_dword v20, %s, %s, %s offen" % (v(vPX), s(rWD, 4), s(sPFO)))
        a("s_add_u32 %s, %s, %d" % (s(sPF), s(sPF), GAP))
        a("s_sub_u32 %s, %s, %d" % (s(sPFO), s(sPFO), 1 << 20))
        a("s_cselect_b32 %s, 0, %s" % (s(sPF), s(sPF)))
        a.label("L_k1_nopf")
    a("s_cmp_lt_u32 %s, %s" % (s(sG), s(sLAST)))
    a("s_cbranch_scc1 L_k1_l2")
    for n in (18, 12, 6, 0):
        a("s_waitcnt vmcnt(%d)" % n)
        a("s_barrier")
    st.dump(sWAVE, sWS, 14)
    a.label("L_k1_end")
    a("s_endpgm")
    return a.text(), kdesc(K1_NAME, 256, 80)
```

```python
from common import *
import math, struct

F_NAME = "parallel_sum__sliding_block__glu_gated_bilinear__prompt_kernel"
BUF = 73728
QTR = 18432
CNT = 0
LB0 = 4096
C_E, C_L, C_A0, C_A1, C_GO, C_TAG = CNT + 32, CNT + 36, CNT + 40, CNT + 44, CNT + 48, CNT + 52
C_PROD = CNT + 256
C_CONS = CNT + 64
F_LDS = LB0 + 2 * BUF
PART = 21760
F_E, F_L, F_A = FL_BASE, FL_BASE + 4096, FL_BASE + 8192
SPIN = 100000

def fbits(x):
    return struct.unpack("<I", struct.pack("<f", x))[0]

def gen_f1(opt):
    global BUF, QTR
    if opt.get("x_oldlayout", 0):
        BUF, QTR = 18432, 36864
    a = Asm()
    a.raw(khead(F_NAME))
    sX, sWQ, sWG, sWU, sDBG, sWS, sWO, sWD, sOUT = 4, 6, 8, 10, 12, 14, 44, 48, 50
    rX, rW, rWO, rOUT, rWS = 16, 20, 24, 28, 32
    sWAVE, sW4, sXCD, sSLOT = 36, 37, 38, 39
    sT0, sT1, sT2, sT3 = 40, 41, 42, 43
    sSPIN = 47
    sRET = 98
    sRB, sCG, sROT, sNQ, sNP, sQ0, sP0, sNCH, sNG = 52, 53, 54, 55, 56, 57, 58, 60, 71
    vLANE = 1

    a("s_cmp_ge_u32 s2, 256")
    a("s_cbranch_scc1 L_end")
    a("s_load_dwordx4 s[4:7], s[0:1], %d" % KA_X)
    a("s_load_dwordx4 s[8:11], s[0:1], %d" % KA_WG)
    a("s_load_dwordx4 s[12:15], s[0:1], %d" % KA_DBG)
    a("s_load_dwordx2 s[44:45], s[0:1], %d" % KA_WO)
    a("s_load_dwordx4 s[48:51], s[0:1], %d" % KA_WD)
    if opt.get("code_pf", 1):
        a("s_getpc_b64 s[96:97]")
        a("s_lshr_b32 s3, s2, 3")
        a("s_lshl_b32 s3, s3, 11")
        a("v_lshl_add_u32 v14, v0, 7, s3")
        a("v_min_u32 v14, L_code_end-%s-192, v14" % F_NAME)
        a("v_cmp_gt_u32 vcc, 16, v0")
        a("s_and_saveexec_b64 s[94:95], vcc")
        a("s_cbranch_execz L_nocpf")
        a("global_load_dword v255, v14, s[96:97]")
        a.label("L_nocpf")
        a("s_mov_b64 exec, s[94:95]")
    st = Stamper(a, opt.get("diag", 0), 15, 100, 0, scnt=46)
    st.init(); st.stamp(True); st.stamp()
    vT = list(range(236, 252))
    a("v_and_b32 %s, 63, v0" % v(vLANE))
    a("v_lshrrev_b32 %s, 6, v0" % v(vT[0]))
    a("s_and_b32 %s, s2, 7" % s(sXCD))
    a("s_lshr_b32 %s, s2, 3" % s(sSLOT))
    a("v_readfirstlane_b32 %s, %s" % (s(sWAVE), v(vT[0])))
    LR = opt.get("k1_lrb", 3)
    RBX, CGX = 1 << LR, 32 >> LR
    sRBL = 79
    a("s_and_b32 %s, %s, %d" % (s(sRBL), s(sSLOT), RBX - 1))
    a("s_lshr_b32 %s, %s, %d" % (s(sT1), s(sSLOT), LR))
    a("s_and_b32 %s, %s, %d" % (s(sT2), s(sXCD), 16 // RBX - 1))
    a("s_lshr_b32 %s, %s, %d" % (s(sT0), s(sXCD), 4 - LR))
    a("s_lshl_b32 %s, %s, %d" % (s(sRB), s(sT2), LR))
    a("s_add_u32 %s, %s, %s" % (s(sRB), s(sRB), s(sRBL)))
    a("s_lshl_b32 %s, %s, %d" % (s(sCG), s(sT0), 5 - LR))
    a("s_add_u32 %s, %s, %s" % (s(sCG), s(sCG), s(sT1)))
    mr, mc, mx = opt.get("k1_rot", {4: (1, 4, 1), 3: (1, 2, 1), 2: (2, 1, 0)}[LR])
    a("s_mul_i32 %s, %s, %d" % (s(sT3), s(sRBL), mr))
    a("s_mul_i32 %s, %s, %d" % (s(sT1), s(sT1), mc))
    a("s_mul_i32 %s, %s, %d" % (s(sT0), s(sT0), mx))
    a("s_add_u32 %s, %s, %s" % (s(sROT), s(sT3), s(sT1)))
    a("s_add_u32 %s, %s, %s" % (s(sROT), s(sROT), s(sT0)))
    a("s_mul_i32 %s, %s, 57" % (s(sT0), s(sROT)))
    a("s_lshr_b32 %s, %s, 9" % (s(sT0), s(sT0)))
    a("s_mul_i32 %s, %s, 9" % (s(sT0), s(sT0)))
    a("s_sub_u32 %s, %s, %s" % (s(sROT), s(sROT), s(sT0)))
    a("s_and_b32 %s, %s, 3" % (s(sW4), s(sWAVE)))
    def worklist():
        a("s_mov_b32 %s, 1" % s(sNQ))
        a("s_mov_b32 %s, 5" % s(sNP))
        a("s_mov_b32 %s, %s" % (s(sQ0), s(sCG)))
        a("s_mul_i32 %s, %s, 5" % (s(sP0), s(sCG)))
        a("s_cmp_eq_u32 %s, 14" % s(sCG))
        a("s_cselect_b32 %s, 7, %s" % (s(sNQ), s(sNQ)))
        a("s_cselect_b32 %s, 1, %s" % (s(sNP), s(sNP)))
        a("s_cmp_eq_u32 %s, 15" % s(sCG))
        a("s_cselect_b32 %s, 6, %s" % (s(sNQ), s(sNQ)))
        a("s_cselect_b32 %s, 1, %s" % (s(sNP), s(sNP)))
        a("s_cselect_b32 %s, 21, %s" % (s(sQ0), s(sQ0)))
        a("s_cselect_b32 %s, 71, %s" % (s(sP0), s(sP0)))
        a("s_lshl_b32 %s, %s, 1" % (s(sNCH), s(sNP)))
        a("s_add_u32 %s, %s, %s" % (s(sNCH), s(sNCH), s(sNQ)))
        a("s_mul_i32 %s, %s, 3" % (s(sNG), s(sNCH)))
    sRT, sCT = 80, 81
    def tile_of():
        a("s_mul_i32 %s, %s, 29" % (s(sT0), s(sXCD)))
        a("s_min_u32 %s, %s, 2" % (s(sT1), s(sXCD)))
        a("s_add_u32 %s, %s, %s" % (s(sT0), s(sT0), s(sT1)))
        a("s_add_u32 %s, %s, %s" % (s(sT0), s(sT0), s(sSLOT)))
        a("s_min_u32 %s, %s, 233" % (s(sT0), s(sT0)))
        a("s_mul_i32 %s, %s, 7282" % (s(sRT), s(sT0)))
        a("s_lshr_b32 %s, %s, 16" % (s(sRT), s(sRT)))
        a("s_mul_i32 %s, %s, 9" % (s(sT1), s(sRT)))
        a("s_sub_u32 %s, %s, %s" % (s(sCT), s(sT0), s(sT1)))
        a("s_mul_i32 %s, %s, 80" % (s(sT0), s(sRT)))
        a("s_add_u32 %s, %s, 79" % (s(sT1), s(sT0)))
        a("s_min_u32 %s, %s, 2047" % (s(sT1), s(sT1)))
        a("s_lshr_b32 %s, %s, 7" % (s(sT2), s(sT0)))
        a("s_lshr_b32 %s, %s, 7" % (s(sT3), s(sT1)))
        a("s_lshl_b32 %s, %s, 2" % (s(sT2), s(sT2)))
        a("s_lshl_b32 %s, %s, 2" % (s(sT3), s(sT3)))
    def lds_wait(name, vaddr, vtmp, sneed, sleep=1):
        a.label(name)
        a("ds_read_b32 %s, %s" % (v(vtmp), v(vaddr)))
        a("s_waitcnt lgkmcnt(0)")
        a("v_cmp_gt_u32 vcc, %s, %s" % (sneed, v(vtmp)))
        a("s_cbranch_vccz %s_ok" % name)
        if sleep: a("s_sleep %d" % sleep)
        a("s_branch %s" % name)
        a.label(name + "_ok")
    sTAG = 3
    def poll(vval, voff):
        a("buffer_load_dword %s, %s, %s, 0 offen sc1" % (v(vval), v(voff), s(rWS, 4)))
    def flag_wait(name, vval, voff):
        a("s_mov_b32 %s, %d" % (s(sSPIN), SPIN))
        a.label(name)
        a("v_cmp_ne_u32 vcc, %s, %s" % (s(sTAG), v(vval)))
        a("s_cbranch_vccz %s_ok" % name)
        a("s_sub_u32 %s, %s, 1" % (s(sSPIN), s(sSPIN)))
        a("s_cbranch_scc1 %s_ok" % name)
        a("s_sleep %d" % opt.get("poll_sleep", 12))
        poll(vval, voff)
        a("s_waitcnt vmcnt(0)")
        a("s_branch %s" % name)
        a.label(name + "_ok")
    def tag_issue():
        a("s_load_dword %s, %s, 0" % (s(sTAG), s(sDBG, 2)))
    def tag_check(name):
        a("s_mov_b32 %s, %d" % (s(sSPIN), SPIN))
        a.label(name)
        a("s_cmp_lg_u32 %s, 0" % s(sTAG))
        a("s_cbranch_scc1 %s_ok" % name)
        a("s_sub_u32 %s, %s, 1" % (s(sSPIN), s(sSPIN)))
        a("s_cbranch_scc1 %s_ok" % name)
        a("s_sleep 8")
        a("s_load_dword %s, %s, 0 glc" % (s(sTAG), s(sDBG, 2)))
        a("s_waitcnt lgkmcnt(0)")
        a("s_branch %s" % name)
        a.label(name + "_ok")
    def own_flag(sd):
        a("s_lshl_b32 %s, %s, 6" % (s(sd), s(sRB)))
        a("s_add_u32 %s, %s, %s" % (s(sd), s(sd), s(sCG)))
        a("s_lshl_b32 %s, %s, 2" % (s(sd), s(sd)))
        a("s_add_u32 %s, %s, %d" % (s(sd), s(sd), F_E))
    def rb_lanes(vd, vt, base):
        a("v_mov_b32 %s, %s" % (v(vd), s(sT2)))
        a("v_mov_b32 %s, %s" % (v(vt), s(sT3)))
        a("s_mov_b32 vcc_lo, 0xffff0000")
        a("s_mov_b32 vcc_hi, 0xffff0000")
        a("v_cndmask_b32 %s, %s, %s, vcc" % (v(vd), v(vd), v(vt)))
        a("v_and_b32 %s, 15, %s" % (v(vt), v(vLANE)))
        a("v_lshl_add_u32 %s, %s, 4, %s" % (v(vd), v(vd), v(vt)))
        a("v_lshlrev_b32 %s, 2, %s" % (v(vd), v(vd)))
        a("v_add_u32 %s, %d, %s" % (v(vd), base, v(vd)))
    a("s_cmp_ge_u32 %s, 4" % s(sWAVE))
    a("s_cbranch_scc1 L_loader")

    sI, sEP0, sEP1, sHB0, sHB1, sQB, sE2, sXO, sXC, sXL, sNEED = 59, 61, 62, 63, 64, 65, 66, 67, 68, 69, 70
    vTR = [[2, 3], [4, 5]]
    vL16 = 6
    vR, vR2 = [7, 8], [9, 10]
    vPA, vPV, vCA, vCV = 11, 12, 13, 14
    X0 = 16
    ACC = [160, 192]
    WF0 = 224
    NF, PD = 8, 7
    def X(m, ks): return X0 + 8 * ks + 4 * m
    def WF(q): return WF0 + 4 * (q % NF)
    def TL(A, nt, m): return A + (m * 4 + nt) * 4
    a("s_lshl_b32 %s, %s, 7" % (s(sT0), s(sRB)))
    a("s_lshl_b32 %s, %s, 5" % (s(sT1), s(sWAVE)))
    a("s_add_u32 %s, %s, %s" % (s(sT0), s(sT0), s(sT1)))
    a("s_mul_i32 %s, %s, 1152" % (s(sXO), s(sT0)))
    a("s_lshl_b32 %s, %s, 7" % (s(sXC), s(sROT)))
    a("s_mul_i32 %s, %s, %d" % (s(sXL), s(sWAVE), QTR))
    a("s_add_u32 %s, %s, %d" % (s(sXL), s(sXL), LB0 + BUF))
    vXO = [vT[0], vT[3]]
    a("v_lshrrev_b32 %s, 3, %s" % (v(vT[1]), v(vLANE)))
    a("v_and_b32 %s, 7, %s" % (v(vT[2]), v(vLANE)))
    a("v_mul_u32_u24 %s, 1152, %s" % (v(vT[4]), v(vT[1])))
    a("v_lshrrev_b32 %s, 4, %s" % (v(vT[5]), v(vLANE)))
    a("v_xor_b32 %s, %s, %s" % (v(vT[6]), v(vT[2]), v(vT[5])))
    a("v_lshl_add_u32 %s, %s, 4, %s" % (v(vXO[0]), v(vT[6]), v(vT[4])))
    a("v_xor_b32 %s, 4, %s" % (v(vT[6]), v(vT[6])))
    a("v_lshl_add_u32 %s, %s, 4, %s" % (v(vXO[1]), v(vT[6]), v(vT[4])))
    a("v_add_u32 %s, %d, %s" % (v(vXO[1]), 8 * 1152, v(vXO[1])))
    a("s_waitcnt lgkmcnt(0)")
    srd(a, rX, sX, 2048 * 576 * 2)
    def xdma(i):
        sl = (i % 4) * 4096
        a("s_add_u32 %s, %s, %s" % (s(sT2), s(sXO), s(sXC)))
        a("s_add_u32 m0, %s, %d" % (s(sXL), sl))
        a("s_add_u32 %s, %s, %d" % (s(sT3), s(sT2), 16 * 1152))
        a("buffer_load_dwordx4 %s, %s, %s offen lds" % (v(vXO[0]), s(rX, 4), s(sT2)))
        a("s_add_u32 m0, %s, %d" % (s(sXL), sl + 1024))
        a("s_add_u32 %s, %s, 128" % (s(sXC), s(sXC)))
        a("buffer_load_dwordx4 %s, %s, %s offen lds" % (v(vXO[1]), s(rX, 4), s(sT2)))
        a("s_add_u32 m0, %s, %d" % (s(sXL), sl + 2048))
        a("s_cmp_eq_u32 %s, 1152" % s(sXC))
        a("buffer_load_dwordx4 %s, %s, %s offen lds" % (v(vXO[0]), s(rX, 4), s(sT3)))
        a("s_cselect_b32 %s, 0, %s" % (s(sXC), s(sXC)))
        a("s_add_u32 m0, %s, %d" % (s(sXL), sl + 3072))
        a("s_nop 0")
        a("buffer_load_dwordx4 %s, %s, %s offen lds" % (v(vXO[1]), s(rX, 4), s(sT3)))
    xdma(0); xdma(1)
    srd(a, rWS, sWS, WS_BYTES)
    worklist()
    a("v_lshlrev_b32 %s, 4, %s" % (v(vL16), v(vLANE)))
    vRA = [vT[7], vT[8]]
    a("v_and_b32 %s, 15, %s" % (v(vT[6]), v(vLANE)))
    a("v_lshrrev_b32 %s, 1, %s" % (v(vT[9]), v(vT[6])))
    a("v_xor_b32 %s, %s, %s" % (v(vT[9]), v(vT[9]), v(vT[5])))
    a("v_lshlrev_b32 %s, 4, %s" % (v(vT[9]), v(vT[9])))
    a("v_lshl_add_u32 %s, %s, 7, %s" % (v(vT[9]), v(vT[6]), v(vT[9])))
    a("v_add_u32 %s, %s, %s" % (v(vRA[0]), s(sXL), v(vT[9])))
    a("v_xor_b32 %s, 64, %s" % (v(vT[9]), v(vT[9])))
    a("v_add_u32 %s, %s, %s" % (v(vRA[1]), s(sXL), v(vT[9])))
    SEL, ONE = 224, 232
    a("v_lshrrev_b32 %s, 2, %s" % (v(vT[9]), v(vT[6])))
    a("v_cmp_eq_u32 vcc, %s, %s" % (v(vT[9]), v(vT[5])))
    a("v_and_b32 %s, 1, %s" % (v(vT[9]), v(vLANE)))
    a("v_lshlrev_b32 %s, 4, %s" % (v(vT[9]), v(vT[9])))
    a("v_mov_b32 %s, 0x3f80" % v(vT[1]))
    a("v_lshlrev_b32 %s, %s, %s" % (v(vT[9]), v(vT[9]), v(vT[1])))
    a("v_cndmask_b32 %s, 0, %s, vcc" % (v(vT[9]), v(vT[9])))
    for r, c in ((72, 0xcccccccc), (73, 0xcccccccc), (74, 0xaaaaaaaa), (75, 0xaaaaaaaa), (76, 0x00f0000f), (77, 0xf0000f00)):
        a("s_mov_b32 s%d, 0x%x" % (r, c))
    a("v_cndmask_b32 %s, %s, 0, s[72:73]" % (v(SEL + 2), v(vT[9])))
    a("v_cndmask_b32 %s, 0, %s, s[72:73]" % (v(SEL + 3), v(vT[9])))
    for r in (0, 1, 4, 5):
        a("v_mov_b32 %s, 0" % v(SEL + r))
    for r in range(4):
        a("v_mov_b32 %s, 0x3f803f80" % v(ONE + r))
    a("v_mul_u32_u24 %s, %d, %s" % (v(vT[9]), QTR, v(vT[5])))
    a("v_add_u32 %s, %d, %s" % (v(vT[9]), LB0, v(vT[9])))
    a("v_bfe_u32 %s, %s, 2, 2" % (v(vT[6]), v(vLANE)))
    a("v_lshl_add_u32 %s, %s, 6, %s" % (v(vT[9]), v(vT[6]), v(vT[9])))
    a("v_and_b32 %s, 3, %s" % (v(vT[6]), v(vLANE)))
    a("v_lshl_add_u32 %s, %s, 3, %s" % (v(vT[9]), v(vT[6]), v(vT[9])))
    a("v_and_b32 %s, 1, %s" % (v(vT[6]), v(vT[5])))
    a("v_lshl_add_u32 %s, %s, 5, %s" % (v(vTR[0][0]), v(vT[6]), v(vT[9])))
    a("v_xor_b32 %s, 32, %s" % (v(vTR[0][1]), v(vTR[0][0])))
    a("v_add_u32 %s, %d, %s" % (v(vTR[1][0]), BUF, v(vTR[0][0])))
    a("v_add_u32 %s, %d, %s" % (v(vTR[1][1]), BUF, v(vTR[0][1])))

    xdma(2); xdma(3)
    if opt.get("diag", 0) == 1: st.stamp()
    a("s_mul_i32 %s, %s, 3" % (s(sE2), s(sCG)))
    a("s_cmp_eq_u32 %s, 15" % s(sCG))
    a("s_cselect_b32 %s, 43, %s" % (s(sE2), s(sE2)))
    for m, sH in ((0, sHB0), (1, sHB1)):
        a("s_lshl_b32 %s, %s, 3" % (s(sT0), s(sRB)))
        a("s_lshl_b32 %s, %s, 1" % (s(sT1), s(sWAVE)))
        a("s_add_u32 %s, %s, %s" % (s(sT0), s(sT0), s(sT1)))
        a("s_add_u32 %s, %s, %d" % (s(sT0), s(sT0), m))
        a("s_mul_i32 %s, %s, 205" % (s(sT1), s(sT0)))
        a("s_lshr_b32 %s, %s, 10" % (s(sT1), s(sT1)))
        a("s_mul_i32 %s, %s, %d" % (s(sT1), s(sT1), NKS * 5 - 5))
        a("s_add_u32 %s, %s, %s" % (s(sT0), s(sT0), s(sT1)))
        a("s_lshl_b32 %s, %s, 10" % (s(sH), s(sT0)))
        a("s_mul_i32 %s, %s, 10240" % (s(sT1), s(sE2)))
        a("s_add_u32 %s, %s, %s" % (s(sH), s(sH), s(sT1)))
        if H_BASE: a("s_add_u32 %s, %s, %d" % (s(sH), s(sH), H_BASE))
    sFO = 91
    own_flag(sFO)
    sJMP = 78
    a("s_sub_u32 %s, 41, %s" % (s(sJMP), s(sCG)))
    a("s_mul_i32 %s, %s, 10240" % (s(sJMP), s(sJMP)))
    a("s_lshl_b32 %s, %s, 2" % (s(sT0), s(sRB)))
    a("s_add_u32 %s, %s, %s" % (s(sT0), s(sT0), s(sWAVE)))
    a("s_mul_i32 %s, %s, 108" % (s(sT0), s(sT0)))
    a("s_lshl_b32 %s, %s, 2" % (s(sT1), s(sQ0)))
    a("s_add_u32 %s, %s, %s" % (s(sT0), s(sT0), s(sT1)))
    a("s_lshl_b32 %s, %s, 10" % (s(sQB), s(sT0)))
    a("s_add_u32 %s, %s, %d" % (s(sQB), s(sQB), QKV_BASE))
    SUM, GRM = [160, 164], [208, 212]
    def cstat(i):
        for e in range(2):
            for m in range(2):
                x = v(X(m, 2 * i + e), 4)
                first = i == 0 and e == 0
                a("v_mfma_f32_16x16x32_bf16 %s, %s, %s, %s" % (v(SUM[m], 4), v(ONE, 4), x, "0" if first else v(SUM[m], 4)))
                a("v_mfma_f32_16x16x32_bf16 %s, %s, %s, %s" % (v(GRM[m], 4), x, x, "0" if first else v(GRM[m], 4)))
    for i in range(9):
        issued = min(9, max(4, i + 3))
        a("s_waitcnt vmcnt(%d)" % (4 * (issued - i - 1)))
        for e in range(2):
            for m in range(2):
                a("ds_read_b128 %s, %s offset:%d" % (v(X(m, 2 * i + e), 4), v(vRA[e]), (i % 4) * 4096 + m * 2048))
        if i > 0:
            a("s_waitcnt lgkmcnt(4)")
            if i + 3 < 9:
                xdma(i + 3)
            cstat(i - 1)
    a("s_waitcnt lgkmcnt(0)")
    a("s_barrier")
    cstat(8)
    st.stamp()
    a("s_nop 6")
    inv = 0x3ae38e39
    MEAN = [168, 169]
    for m in range(2):
        a("v_mul_f32 %s, 0x%x, %s" % (v(MEAN[m]), inv, v(SUM[m])))
    a("v_cvt_pk_bf16_f32 v170, %s, %s" % (v(MEAN[0]), v(MEAN[1])))
    a("v_xor_b32 v170, 0x80008000, v170")
    for r in range(4):
        a("v_lshlrev_b32 %s, 16, v170" % v(SUM[0] + r))
    for r in range(4):
        a("v_and_b32 %s, 0xffff0000, v170" % v(SUM[1] + r))
    vc = []
    for m in range(2):
        G = GRM[m]
        vc.append("v_cndmask_b32 %s, %s, %s, s[74:75]" % (v(G), v(G), v(G + 1)))
        vc.append("v_cndmask_b32 %s, %s, %s, s[74:75]" % (v(G + 2), v(G + 2), v(G + 3)))
    def both(f):
        for m in range(2): vc.append(f(GRM[m], m))
    both(lambda G, m: "v_cndmask_b32 %s, %s, %s, s[72:73]" % (v(G), v(G), v(G + 2)))
    both(lambda G, m: "v_cndmask_b32 %s, 0, %s, s[76:77]" % (v(G), v(G)))
    for sw in ("v_permlane16_swap_b32", "v_permlane32_swap_b32"):
        both(lambda G, m: "v_mov_b32 %s, %s" % (v(G + 1), v(G)))
        both(lambda G, m: "%s %s, %s" % (sw, v(G), v(G + 1)))
        both(lambda G, m: "v_add_f32 %s, %s, %s" % (v(G), v(G), v(G + 1)))
    both(lambda G, m: "v_mul_f32 %s, 0x%x, %s" % (v(G), inv, v(G)))
    both(lambda G, m: "v_fma_f32 %s, -%s, %s, %s" % (v(G), v(MEAN[m]), v(MEAN[m]), v(G)))
    both(lambda G, m: "v_max_f32 %s, 0, %s" % (v(G), v(G)))
    for op in ("add", "sqrt", "rcp"):
        both(lambda G, m: "v_cvt_pk_bf16_f32 %s, %s, %s" % (v(G), v(G), v(G)))
        both(lambda G, m: "v_and_b32 %s, 0xffff0000, %s" % (v(G), v(G)))
        if op == "add": both(lambda G, m: "v_add_f32 %s, 0x3727c5ac, %s" % (v(G), v(G)))
        elif op == "sqrt": both(lambda G, m: "v_sqrt_f32 %s, %s" % (v(G), v(G)))
        else: both(lambda G, m: "v_rcp_f32 %s, %s" % (v(vR[m]), v(G)))
    both(lambda G, m: "v_mul_f32 %s, %s, %s" % (v(vR2[m]), v(vR[m]), v(vR[m])))
    frs = [(m, ks) for ks in range(18) for m in range(2)]
    def DT(n): return 176 + 8 * (n % 4)
    def app_m(n):
        m, ks = frs[n]
        a("v_mfma_f32_16x16x32_bf16 %s, %s, %s, %s" % (v(DT(n), 4), v(SEL + 2, 4), v(X(m, ks), 4), v(SUM[m], 4)))
        a("v_mfma_f32_16x16x32_bf16 %s, %s, %s, %s" % (v(DT(n) + 4, 4), v(SEL, 4), v(X(m, ks), 4), v(SUM[m], 4)))
    def app_c(n):
        m, ks = frs[n]
        for d in range(4):
            a("v_cvt_pk_bf16_f32 %s, %s, %s" % (v(X(m, ks) + d), v(DT(n) + 2 * d), v(DT(n) + 2 * d + 1)))
    app_m(0); app_m(1); app_m(2)
    a("s_nop 3")
    for n in range(36):
        app_c(n)
        if vc:
            a(vc.pop(0)); a(vc.pop(0))
        if n + 3 < 36:
            app_m(n + 3)
        elif n + 1 < 36:
            a("s_nop 1")
    assert not vc

    def rd(q, bf):
        ks, nt = q >> 2, q & 3
        off = ks * 1024 + (nt >> 1) * 512
        return ["ds_read_b64_tr_b16 %s, %s offset:%d" % (v(WF(q), 2), v(vTR[bf][nt & 1]), off),
                "ds_read_b64_tr_b16 %s, %s offset:%d" % (v(WF(q) + 2, 2), v(vTR[bf][nt & 1]), off + 256)]

    def epi_tail(B, typ):
        ops = []
        if typ == "u":
            for m, sE in ((0, sEP0), (1, sEP1)):
                for kk in range(2):
                    R = TL(B, 2 * kk, m)
                    for j in range(4):
                        ops.append("v_cvt_pk_bf16_f32 %s, %s, %s" % (v(R + j), v(R + 2 * j), v(R + 2 * j + 1)))
                    if kk == 0:
                        ops.append("buffer_store_dwordx4 %s, %s, %s, %s offen sc1" % (v(R, 4), v(vL16), s(rWS, 4), s(sE)))
                    else:
                        ops.append("s_add_u32 %s, %s, 5120" % (s(sE2), s(sE)))
                        ops.append("buffer_store_dwordx4 %s, %s, %s, %s offen sc1" % (v(R, 4), v(vL16), s(rWS, 4), s(sE2)))
        elif typ == "n":
            for m in range(2):
                for r in range(16):
                    R = TL(B, 0, m) + r
                    ops.append("v_mul_f32 %s, %s, %s" % (v(R), v(vR2[m]), v(R)))
        elif typ == "q":
            for nt in range(4):
                P, Q = TL(B, nt, 0), TL(B, nt, 1)
                for r in range(4):
                    ops.append("v_mul_f32 %s, %s, %s" % (v(P + r), v(vR[0]), v(P + r)))
                    ops.append("v_mul_f32 %s, %s, %s" % (v(Q + r), v(vR[1]), v(Q + r)))
                ops.append("v_cvt_pk_bf16_f32 %s, %s, %s" % (v(P), v(P), v(P + 1)))
                ops.append("v_cvt_pk_bf16_f32 %s, %s, %s" % (v(P + 1), v(P + 2), v(P + 3)))
                ops.append("v_cvt_pk_bf16_f32 %s, %s, %s" % (v(P + 2), v(Q), v(Q + 1)))
                ops.append("v_cvt_pk_bf16_f32 %s, %s, %s" % (v(P + 3), v(Q + 2), v(Q + 3)))
                ops.append("s_nop 1")
                ops.append("v_permlane16_swap_b32 %s, %s" % (v(P), v(P + 2)))
                ops.append("v_permlane16_swap_b32 %s, %s" % (v(P + 1), v(P + 3)))
                ops.append("buffer_store_dwordx4 %s, %s, %s, %s offen offset:%d sc1" % (v(P, 4), v(vL16), s(rWS, 4), s(sEP0), nt * 1024))
        return ops

    def body(bf, ptyp):
        last = ptyp == "l"
        A, B = ACC[bf], ACC[1 - bf]
        ep = epi_tail(B, "n" if last else ptyp)
        for q in range(72):
            ks, nt = q >> 2, q & 3
            nq = q + PD
            nbf = bf if nq < 72 else 1 - bf
            r2 = rd(nq % 72, nbf)
            extra = {0: [], 1: []}
            if last and nq >= 72:
                r2 = [None, None]
            if last and nq == 71:
                extra[1].append("ds_append %s offset:%d" % (v(vCV), C_CONS))
            if nq % 24 == 0 and not (last and nq > 24):
                a("s_barrier")
            if q % 2 == 0:
                a("s_waitcnt lgkmcnt(%d)" % (min(2 * PD - 4, 2 * (70 - q) + 1) if last and q >= 64 else 2 * PD - 4))
            for m in range(2):
                T = TL(A, nt, m)
                if ks == 0 and ptyp == "u":
                    U = TL(B, nt, m)
                    for r in (0, 2):
                        a("v_pk_mul_f32 %s, %s, %s" % (v(U + r, 2), v(T + r, 2), v(U + r, 2)))
                c = "0" if ks == 0 else v(T, 4)
                a("v_mfma_f32_16x16x32_bf16 %s, %s, %s, %s" % (v(T, 4), v(WF(q), 4), v(X(m, ks), 4), c))
                if r2[m]: a(r2[m])
                if extra[m]:
                    for l in extra[m]: a(l)
                elif q >= 6 and ep and not (m == 1 and q % 2 == 1):
                    a(ep.pop(0))
        assert not ep

    st.stamp()
    a("s_barrier")
    st.stamp()
    for q in range(PD):
        for l in rd(q, 0):
            a(l)
    a("s_mov_b32 %s, 0" % s(sI))
    a("s_mov_b32 m0, 0")
    order = [(0, "n"), (1, "u"), (1, "q"), (0, "q"), (0, "u"), (1, "n")]
    def after(bf):
        st.stamp()
        if st.on: a("s_mov_b32 m0, 0")
        a("s_add_u32 %s, %s, 1" % (s(sI), s(sI)))
        a("s_cmp_le_u32 %s, %s" % (s(sI), s(sNQ)))
        a("s_cbranch_scc1 L_wasq%d" % bf)
        a("s_cmp_eq_u32 %s, %s" % (s(sI), s(sNEED)))
        a("s_cbranch_scc1 L_b%dl" % (1 - bf))
        a("s_sub_u32 %s, %s, %s" % (s(sT0), s(sI), s(sNQ)))
        a("s_bitcmp1_b32 %s, 0" % s(sT0))
        a("s_cbranch_scc1 L_b%dn" % (1 - bf))
        a("s_cmp_eq_u32 %s, 8" % s(sT0))
        a("s_cbranch_scc1 L_early%d" % bf)
        a("s_mov_b32 %s, %s" % (s(sEP0), s(sHB0)))
        a("s_mov_b32 %s, %s" % (s(sEP1), s(sHB1)))
        a("s_add_u32 %s, %s, 10240" % (s(sHB0), s(sHB0)))
        a("s_add_u32 %s, %s, 10240" % (s(sHB1), s(sHB1)))
    a("s_sub_u32 %s, %s, 1" % (s(sNEED), s(sNCH)))
    for idx, (bf, typ) in enumerate(order):
        a.label("L_b%d%s" % (bf, typ))
        body(bf, typ)
        after(bf)
        if not (idx + 1 < len(order) and order[idx + 1] == (1 - bf, "u")):
            a("s_branch L_b%du" % (1 - bf))
    vG2PO, vG2PV = 2, 3
    for bf in range(2):
        a.label("L_wasq%d" % bf)
        a("s_mov_b32 %s, %s" % (s(sEP0), s(sQB)))
        a("s_add_u32 %s, %s, 4096" % (s(sQB), s(sQB)))
        a("s_branch L_b%dq" % (1 - bf))
        a.label("L_early%d" % bf)
        a("s_waitcnt vmcnt(0)")
        a("s_add_u32 %s, %s, %s" % (s(sEP0), s(sHB0), s(sJMP)))
        a("s_add_u32 %s, %s, %s" % (s(sEP1), s(sHB1), s(sJMP)))
        a("s_add_u32 %s, %s, 10240" % (s(sHB0), s(sEP0)))
        a("s_add_u32 %s, %s, 10240" % (s(sHB1), s(sEP1)))
        a("s_branch L_b%du" % (1 - bf))
    for bf in (1, 0):
        a.label("L_b%dl" % bf)
        body(bf, "l")
        st.stamp()
        tag_issue()
        a("s_mov_b32 %s, %s" % (s(sEP0), s(sHB0)))
        a("s_mov_b32 %s, %s" % (s(sEP1), s(sHB1)))
        a("s_nop 5")
        for r in range(0, 32, 2):
            a("v_pk_mul_f32 %s, %s, %s" % (v(ACC[bf] + r, 2), v(ACC[1 - bf] + r, 2), v(ACC[bf] + r, 2)))
        for l in epi_tail(ACC[bf], "u"):
            a(l)
        a("s_mov_b32 %s, %d" % (s(sXL), LB0 + bf * BUF))
        if bf == 1:
            a("s_branch L_g2")

    a.label("L_g2")
    st.stamp()
    LEAD = opt.get("k2_lead", 1)
    P = 3
    UNR = 6
    sHB, sWB, sHO, sWOFF, sRING, sCNT, sPT, sC3, sWH = 82, 83, 84, 85, 86, 87, 88, 89, 90
    vDO = [4, 5, 7, 8]
    vG2TR = [9, 10]
    vH, vH3, vH4 = 6, 224, 225
    vAPO = 226
    vLP, vG1, vI4 = 227, 228, 229
    vLA, vGO = 230, 231
    T = [232, 233, 234, 235]
    XR = 236
    ACC0, HF0, WG0 = 16, 96, 176
    def GA(rt, nt): return ACC0 + rt * 16 + nt * 4
    def HF(i, rt): return HF0 + (i % P) * 20 + rt * 4
    def GW(i, nt): return WG0 + (i & 1) * 16 + nt * 4
    def signal_done():
        l = a.newlabel("sig")
        a("v_mov_b32 %s, %d" % (v(T[0]), C_L))
        a("v_mov_b32 %s, 1" % v(T[1]))
        a("v_mov_b32 %s, %s" % (v(T[3]), s(sFO)))
        a("s_mov_b64 exec, 1")
        a("ds_add_rtn_u32 %s, %s, %s" % (v(T[2]), v(T[0]), v(T[1])))
        a("v_mov_b32 %s, %s" % (v(vPV), s(sTAG)))
        a("s_waitcnt lgkmcnt(0)")
        a("v_readfirstlane_b32 %s, %s" % (s(sT0), v(T[2])))
        a("s_cmp_lg_u32 %s, 3" % s(sT0))
        a("s_cbranch_scc1 %s" % l)
        a("s_mov_b32 %s, 4096" % s(sT0))
        a("buffer_store_dword %s, %s, %s, %s offen sc1" % (v(vPV), v(T[3]), s(rWS, 4), s(sT0)))
        a("s_cmp_lg_u32 %s, 1" % s(sNP))
        a("s_cbranch_scc1 %s" % l)
        a("buffer_store_dword %s, %s, %s, 0 offen sc1" % (v(vPV), v(T[3]), s(rWS, 4)))
        a.label(l)
        a("s_mov_b64 exec, -1")
    a("s_waitcnt lgkmcnt(0)")
    tag_check("L_tg2")
    a("s_cmp_lt_u32 %s, 2" % s(sXCD))
    a("s_cselect_b32 %s, 30, 29" % s(sT1))
    a("s_cmp_ge_u32 %s, %s" % (s(sSLOT), s(sT1)))
    a("s_cselect_b32 %s, 1, 0" % s(sCNT))
    a("s_cmp_eq_u32 %s, 1" % s(sNP))
    a("s_cselect_b32 %s, 1, %s" % (s(sPT), s(sCNT)))
    a("s_cmp_eq_u32 %s, 0" % s(sPT))
    a("s_cbranch_scc1 L_g2a")
    a("s_waitcnt vmcnt(0)")
    signal_done()
    a("s_cmp_lg_u32 %s, 0" % s(sCNT))
    a("s_cbranch_scc1 L_fin")
    a.label("L_g2a")
    a("s_mov_b32 %s, %s" % (s(sI), s(sPT)))
    tile_of()
    rb_lanes(vG2PO, vG2PV, F_L)
    a("s_lshr_b32 %s, %s, 3" % (s(sT2), s(sT2)))
    a("s_lshr_b32 %s, %s, 3" % (s(sT3), s(sT3)))
    a("v_mov_b32 %s, %s" % (v(vAPO), s(sT2)))
    a("s_mov_b32 exec_lo, 0")
    a("v_mov_b32 %s, %s" % (v(vAPO), s(sT3)))
    a("s_mov_b64 exec, -1")
    a("v_and_b32 %s, 31, %s" % (v(vG2PV), v(vLANE)))
    a("v_lshl_add_u32 %s, %s, 6, %s" % (v(vAPO), v(vAPO), v(vG2PV)))
    a("v_lshlrev_b32 %s, 2, %s" % (v(vAPO), v(vAPO)))
    a("v_add_u32 %s, %d, %s" % (v(vAPO), F_A, v(vAPO)))
    a("v_mov_b32 %s, 0" % v(vG2PV))
    a("v_mov_b32 %s, %d" % (v(vCA), C_GO))
    srd(a, rW, sWD, 4608 * 576 * 2)
    srd(a, rOUT, sOUT, 2048 * 576 * 2)
    a("s_mul_i32 %s, %s, %d" % (s(sHB), s(sRT), NKS))
    a("s_add_u32 %s, %s, %s" % (s(sHB), s(sHB), s(sWAVE)))
    a("s_mul_i32 %s, %s, 5120" % (s(sHB), s(sHB)))
    if H_BASE: a("s_add_u32 %s, %s, %d" % (s(sHB), s(sHB), H_BASE))
    a("s_and_b32 %s, %s, 1" % (s(sWB), s(sWAVE)))
    a("s_mul_i32 %s, %s, %d" % (s(sWB), s(sWB), 32 * 1152))
    a("s_lshl_b32 %s, %s, 7" % (s(sT0), s(sCT)))
    a("s_add_u32 %s, %s, %s" % (s(sWB), s(sWB), s(sT0)))
    a("s_lshr_b32 %s, %s, 1" % (s(sWH), s(sWAVE)))
    a("s_mul_i32 %s, %s, %d" % (s(sRING), s(sWAVE), QTR))
    a("s_add_u32 %s, %s, %s" % (s(sRING), s(sRING), s(sXL)))
    a("s_add_u32 %s, %s, %s" % (s(sT0), s(sRT), s(sCT)))
    a("s_mul_i32 %s, %s, 171" % (s(sT1), s(sT0)))
    a("s_lshr_b32 %s, %s, 9" % (s(sT1), s(sT1)))
    a("s_mul_i32 %s, %s, 3" % (s(sT1), s(sT1)))
    a("s_sub_u32 %s, %s, %s" % (s(sC3), s(sT0), s(sT1)))
    a("s_mov_b32 %s, 0" % s(sPT))
    a("s_cmp_eq_u32 %s, %d" % (s(sRT), NRT - 1))
    a("s_cselect_b32 %s, 0x40000000, 0" % s(sT0))
    a("v_add_u32 %s, %s, %s" % (v(vH3), s(sT0), v(vH)))
    a("v_add_u32 %s, 4096, %s" % (v(vH4), v(vH3)))
    a("v_bfe_u32 %s, %s, 4, 1" % (v(vG1), v(vLANE)))
    a("v_bfe_u32 %s, %s, 2, 2" % (v(vI4), v(vLANE)))
    a("v_lshlrev_b32 %s, 1, %s" % (v(T[1]), v(vG1)))
    a("v_and_b32 %s, 3, %s" % (v(T[2]), v(vLANE)))
    a("v_xor_b32 %s, %s, %s" % (v(T[1]), v(T[1]), v(T[2])))
    a("v_lshlrev_b32 %s, 4, %s" % (v(T[1]), v(T[1])))
    a("v_lshrrev_b32 %s, 5, %s" % (v(T[3]), v(vLANE)))
    a("v_lshl_add_u32 %s, %s, 6, %s" % (v(vLP), v(T[3]), v(T[1])))
    a("v_bfe_u32 %s, %s, 2, 3" % (v(T[0]), v(vLANE)))
    a("v_mul_u32_u24 %s, 1152, %s" % (v(T[1]), v(T[0])))
    a("v_add_u32 %s, %s, %s" % (v(vDO[0]), v(T[1]), v(vLP)))
    for b in range(1, 4):
        a("v_add_u32 %s, %d, %s" % (v(vDO[b]), b * 9216, v(vDO[0])))
    a("v_lshlrev_b32 %s, 10, %s" % (v(T[3]), v(T[3])))
    a("v_lshl_add_u32 %s, %s, 6, %s" % (v(T[3]), v(T[0]), v(T[3])))
    a("v_lshl_add_u32 %s, %s, 5, %s" % (v(T[3]), v(vG1), v(T[3])))
    a("v_lshl_add_u32 %s, %s, 3, %s" % (v(T[3]), v(T[2]), v(T[3])))
    a("v_add_u32 %s, %s, %s" % (v(vG2TR[0]), s(sRING), v(T[3])))
    a("v_xor_b32 %s, 32, %s" % (v(T[3]), v(T[3])))
    a("v_add_u32 %s, %s, %s" % (v(vG2TR[1]), s(sRING), v(T[3])))
    a("v_mov_b32 %s, 0" % v(vLA))
    a("v_mov_b32 %s, 0x40000000" % v(vGO))
    a("v_mov_b32 %s, %d" % (v(vPA), C_CONS))
    a("s_movk_i32 %s, 256" % s(sT0))
    lds_wait("L_w1", vPA, vPV, s(sT0), 0)
    lds_wait("L_w2", vCA, vPV, "1", 1)
    st.stamp()

    def dma(i, b):
        return ["s_add_u32 m0, %s, %d" % (s(sRING), (i % P) * 4096 + b * 1024),
                "s_nop 0",
                "buffer_load_dwordx4 %s, %s, %s offen lds" % (v(vDO[b]), s(rW, 4), s(sWOFF))]
    def hld(i, rt):
        return "buffer_load_dwordx4 %s, %s, %s, %s offen offset:%d sc1" % (v(HF(i, rt), 4), v(vH4 if rt == 4 else vH3 if rt == 3 else vH), s(rWS, 4), s(sHO), (rt & 3) * 1024)
    def trd(i, nt, hf):
        return "ds_read_b64_tr_b16 %s, %s offset:%d" % (v(GW(i, nt) + 2 * hf, 2), v(vG2TR[nt & 1]), (i % P) * 4096 + (nt >> 1) * 512 + hf * 2048)
    def pos():
        a("s_call_b64 %s, L_pos" % s(sRET, 2))
    for i in range(P):
        pos()
        for b in range(4):
            for l in dma(i, b): a(l)
        for rt in range(5):
            a(hld(i, rt))
    for r in range(80):
        a("v_mov_b32 %s, 0" % v(ACC0 + r))
    a("s_waitcnt vmcnt(%d)" % (9 * P - 4))
    a("s_cmp_lg_u32 %s, 0" % s(sI))
    a("s_cbranch_scc1 L_g2b")
    signal_done()
    a.label("L_g2b")
    st.stamp()
    for nt in range(4):
        for hf in range(2):
            a(trd(0, nt, hf))
    VM = 5 + 9 * (P - 2)
    a("s_mov_b32 %s, %d" % (s(sCNT), 42 // UNR))
    a.label("L_g2loop")
    st.stamp()
    for i in range(UNR):
        pos()
        a("s_waitcnt vmcnt(%d) lgkmcnt(0)" % VM)
        rds = [trd(i + 1, nt, hf) for nt in range(4) for hf in range(2)]
        for rt in range(5):
            for nt in range(4):
                a("v_mfma_f32_16x16x32_bf16 %s, %s, %s, %s" % (v(GA(rt, nt), 4), v(GW(i, nt), 4), v(HF(i, rt), 4), v(GA(rt, nt), 4)))
                if rt == 0:
                    for l in dma(i, nt): a(l)
                if rt >= 1 and rds:
                    a(rds.pop(0))
            a(hld(i, rt))
    a("s_sub_u32 %s, %s, 1" % (s(sCNT), s(sCNT)))
    a("s_cmp_lg_u32 %s, 0" % s(sCNT))
    a("s_cbranch_scc1 L_g2loop")
    st.stamp()
    a("s_mul_i32 %s, %s, %d" % (s(sT2), s(sWAVE), PART))
    a("s_add_u32 %s, %s, %d" % (s(sT2), s(sT2), LB0))
    a("v_add_u32 %s, %d, %s" % (v(vLA), LB0, v(vLA)))
    a("v_and_b32 %s, 15, %s" % (v(T[0]), v(vLANE)))
    a("v_mul_u32_u24 %s, 272, %s" % (v(T[0]), v(T[0])))
    a("v_lshrrev_b32 %s, 4, %s" % (v(T[1]), v(vLANE)))
    a("v_lshl_add_u32 %s, %s, 4, %s" % (v(T[0]), v(T[1]), v(T[0])))
    a("v_add_u32 %s, %s, %s" % (v(T[0]), s(sT2), v(T[0])))
    a("v_add_u32 %s, %d, %s" % (v(T[2]), 32 * 272, v(vLA)))
    a("v_add_u32 %s, %d, %s" % (v(T[3]), 64 * 272, v(vLA)))
    a("s_waitcnt vmcnt(0) lgkmcnt(0)")
    a("s_barrier")
    for rt in range(5):
        for nt in range(4):
            a("ds_write_b128 %s, %s offset:%d" % (v(T[0]), v(GA(rt, nt), 4), rt * 16 * 272 + nt * 64))
    a("s_mov_b32 %s, %d" % (s(sT0), 32 * 1152))
    a("s_mov_b32 %s, %d" % (s(sT1), 64 * 1152))
    a("s_waitcnt lgkmcnt(0)")
    a("s_barrier")
    st.stamp()
    def red_rd(r):
        B = 96 + 32 * r
        la = (vLA, T[2], T[3])[r]
        for w in range(4):
            a("ds_read_b128 %s, %s offset:%d" % (v(B + 8 * w, 4), v(la), w * PART))
            a("ds_read_b128 %s, %s offset:%d" % (v(B + 8 * w + 4, 4), v(la), w * PART + 16))
    def red_fin(r, lg):
        B = 96 + 32 * r
        xr = XR + 4 * r
        U = 16
        for d in range(4):
            a("v_lshlrev_b32 %s, 16, %s" % (v(U + 2 * d), v(xr + d)))
            a("v_and_b32 %s, 0xffff0000, %s" % (v(U + 2 * d + 1), v(xr + d)))
        a("s_waitcnt lgkmcnt(%d)" % lg)
        for e in range(0, 8, 2):
            a("v_pk_add_f32 %s, %s, %s" % (v(B + e, 2), v(B + e, 2), v(B + 8 + e, 2)))
            a("v_pk_add_f32 %s, %s, %s" % (v(B + 16 + e, 2), v(B + 16 + e, 2), v(B + 24 + e, 2)))
        for e in range(0, 8, 2):
            a("v_pk_add_f32 %s, %s, %s" % (v(B + e, 2), v(B + e, 2), v(U + e, 2)))
        for e in range(0, 8, 2):
            a("v_pk_add_f32 %s, %s, %s" % (v(B + e, 2), v(B + e, 2), v(B + 16 + e, 2)))
        for d in range(4):
            a("v_cvt_pk_bf16_f32 %s, %s, %s" % (v(B + d), v(B + 2 * d), v(B + 2 * d + 1)))
        a("buffer_store_dwordx4 %s, %s, %s, %s offen" % (v(B, 4), v(vGO), s(rOUT, 4), ("0", s(sT0), s(sT1))[r]))
    red_rd(0); red_rd(1)
    red_fin(0, 8)
    a("s_cmp_ge_u32 %s, 2" % s(sWAVE))
    a("s_cbranch_scc1 L_red2")
    red_rd(2)
    red_fin(1, 8)
    red_fin(2, 0)
    a("s_branch L_fin")
    a.label("L_red2")
    red_fin(1, 0)
    a("s_branch L_fin")

    a.label("L_pos")
    a("s_cmp_ge_u32 %s, 36" % s(sPT))
    a("s_cbranch_scc1 L_pos_o")
    a("s_cmp_eq_u32 %s, %d" % (s(sPT), 22 - 3 * LEAD))
    a("s_cbranch_scc1 L_pos_wl")
    a("s_cmp_lg_u32 %s, 0" % s(sWAVE))
    a("s_cbranch_scc1 L_pos_h")
    a("s_cmp_eq_u32 %s, %d" % (s(sPT), 15 - 3 * LEAD))
    a("s_cbranch_scc1 L_pos_pl")
    a("s_cmp_eq_u32 %s, %d" % (s(sPT), 20 - 3 * LEAD))
    a("s_cbranch_scc1 L_pos_cl")
    a("s_cmp_eq_u32 %s, 29" % s(sPT))
    a("s_cbranch_scc1 L_pos_pa")
    a("s_cmp_eq_u32 %s, 34" % s(sPT))
    a("s_cbranch_scc1 L_pos_ca")
    a.label("L_pos_h")
    if LEAD:
        a("s_add_u32 %s, %s, %d" % (s(sT0), s(sPT), 3 * LEAD))
        a("s_sub_u32 %s, %s, 36" % (s(sT1), s(sT0)))
        a("s_cmp_ge_u32 %s, 36" % s(sT0))
        a("s_cselect_b32 %s, %s, %s" % (s(sT0), s(sT1), s(sT0)))
        a("s_cmp_eq_u32 %s, 0" % s(sC3))
        a("s_cselect_b32 %s, %s, %s" % (s(sT0), s(sT0), s(sPT)))
        a("s_cselect_b32 %s, 3, %s" % (s(sC3), s(sC3)))
        a("s_sub_u32 %s, %s, 1" % (s(sC3), s(sC3)))
    else:
        a("s_mov_b32 %s, %s" % (s(sT0), s(sPT)))
    a("s_mul_i32 %s, %s, %d" % (s(sHO), s(sT0), 4 * 5120))
    a("s_add_u32 %s, %s, %s" % (s(sHO), s(sHO), s(sHB)))
    a("s_lshl_b32 %s, %s, 1" % (s(sT0), s(sT0)))
    a("s_add_u32 %s, %s, %s" % (s(sT0), s(sT0), s(sWH)))
    a("s_mul_i32 %s, %s, 171" % (s(sT1), s(sT0)))
    a("s_lshr_b32 %s, %s, 9" % (s(sT1), s(sT1)))
    a("s_lshl_b32 %s, %s, 1" % (s(sT1), s(sT1)))
    a("s_add_u32 %s, %s, %s" % (s(sT1), s(sT1), s(sT0)))
    a("s_sub_u32 %s, %s, 44" % (s(sT2), s(sT0)))
    a("s_lshr_b32 %s, %s, 1" % (s(sT3), s(sT2)))
    a("s_mul_i32 %s, %s, 3" % (s(sT3), s(sT3)))
    a("s_add_u32 %s, %s, %s" % (s(sT2), s(sT2), s(sT3)))
    a("s_add_u32 %s, %s, 3" % (s(sT2), s(sT2)))
    a("s_cmp_lt_u32 %s, 44" % s(sT0))
    a("s_cselect_b32 %s, %s, %s" % (s(sT1), s(sT1), s(sT2)))
    a("s_mul_i32 %s, %s, %d" % (s(sWOFF), s(sT1), 64 * 1152))
    a("s_add_u32 %s, %s, %s" % (s(sWOFF), s(sWOFF), s(sWB)))
    a("s_add_u32 %s, %s, 1" % (s(sPT), s(sPT)))
    a("s_setpc_b64 %s" % s(sRET, 2))
    a.label("L_pos_pl")
    poll(vG2PV, vG2PO)
    a("s_branch L_pos_h")
    a.label("L_pos_cl")
    flag_wait("L_fl", vG2PV, vG2PO)
    a("v_mov_b32 %s, 2" % v(vCV))
    a("s_mov_b64 exec, 1")
    a("ds_write_b32 %s, %s" % (v(vCA), v(vCV)))
    a("s_mov_b64 exec, -1")
    a("s_branch L_pos_h")
    a.label("L_pos_wl")
    lds_wait("L_w3", vCA, vPV, "2", 1)
    a("s_branch L_pos_h")
    a.label("L_pos_pa")
    poll(vG2PV, vAPO)
    a("s_branch L_pos_h")
    a.label("L_pos_ca")
    flag_wait("L_fa", vG2PV, vAPO)
    a("v_mov_b32 %s, 3" % v(vCV))
    a("s_mov_b64 exec, 1")
    a("ds_write_b32 %s, %s" % (v(vCA), v(vCV)))
    a("s_mov_b64 exec, -1")
    a("s_branch L_pos_h")
    a.label("L_pos_o")
    a("s_cmp_ge_u32 %s, 42" % s(sPT))
    a("s_cbranch_scc1 L_pos_z")
    a("s_cmp_lg_u32 %s, 36" % s(sPT))
    a("s_cbranch_scc1 L_pos_o2")
    lds_wait("L_w4", vCA, vPV, "3", 1)
    srd(a, rW, sWO, 576 * 576 * 2)
    a.label("L_pos_o2")
    a("s_mul_i32 %s, %s, %d" % (s(sHO), s(sPT), 4 * 5120))
    a("s_add_u32 %s, %s, %s" % (s(sHO), s(sHO), s(sHB)))
    a("s_lshl_b32 %s, %s, 7" % (s(sWOFF), s(sCT)))
    a("s_sub_u32 %s, %s, 36" % (s(sT0), s(sPT)))
    a("s_lshl_b32 %s, %s, 2" % (s(sT0), s(sT0)))
    a("s_add_u32 %s, %s, %s" % (s(sT0), s(sT0), s(sWAVE)))
    a("s_lshl_b32 %s, %s, 2" % (s(sT0), s(sT0)))
    for b in range(2):
        U, Hh, Wr = T[0], T[1], T[2]
        a("s_add_u32 %s, %s, %d" % (s(sT1), s(sT0), 2 * b))
        a("v_add_u32 %s, %s, %s" % (v(U), s(sT1), v(vG1)))
        a("v_mul_u32_u24 %s, 171, %s" % (v(Hh), v(U)))
        a("v_lshrrev_b32 %s, 9, %s" % (v(Hh), v(Hh)))
        a("v_mul_u32_u24 %s, 3, %s" % (v(Wr), v(Hh)))
        a("v_sub_u32 %s, %s, %s" % (v(U), v(U), v(Wr)))
        a("v_mul_u32_u24 %s, %s, %s" % (v(U), v(U), v(U)))
        a("v_mul_u32_u24 %s, 18, %s" % (v(Wr), v(Hh)))
        a("v_and_b32 %s, -4, %s" % (v(Wr), v(Wr)))
        a("v_lshl_add_u32 %s, %s, 2, %s" % (v(Wr), v(U), v(Wr)))
        a("v_add_u32 %s, %s, %s" % (v(Wr), v(Wr), v(vI4)))
        a("v_mul_u32_u24 %s, 1152, %s" % (v(Wr), v(Wr)))
        a("v_add_u32 %s, %s, %s" % (v(vDO[b]), v(Wr), v(vLP)))
        a("v_add_u32 %s, %d, %s" % (v(vDO[b + 2]), 8 * 1152, v(vDO[b])))
    a("s_add_u32 %s, %s, 1" % (s(sPT), s(sPT)))
    a("s_setpc_b64 %s" % s(sRET, 2))
    a.label("L_pos_z")
    a("s_mov_b32 %s, 0x40000000" % s(sHO))
    a("s_mov_b32 %s, 0x40000000" % s(sWOFF))
    a("s_add_u32 %s, %s, 1" % (s(sPT), s(sPT)))
    a("s_cmp_lg_u32 %s, 43" % s(sPT))
    a("s_cbranch_scc1 L_pos_r")
    a("s_mul_i32 %s, %s, %d" % (s(sT2), s(sRT), 80 * 1152))
    a("s_lshl_b32 %s, %s, 7" % (s(sT0), s(sCT)))
    a("s_add_u32 %s, %s, %s" % (s(sT2), s(sT2), s(sT0)))
    a("s_lshl_b32 %s, %s, 3" % (s(sT3), s(sWAVE)))
    a("v_lshrrev_b32 %s, 3, %s" % (v(T[0]), v(vLANE)))
    a("v_add_u32 %s, %s, %s" % (v(T[0]), s(sT3), v(T[0])))
    a("v_and_b32 %s, 7, %s" % (v(T[1]), v(vLANE)))
    a("v_mul_u32_u24 %s, 272, %s" % (v(T[2]), v(T[0])))
    a("v_lshl_add_u32 %s, %s, 5, %s" % (v(vLA), v(T[1]), v(T[2])))
    a("v_mul_u32_u24 %s, 1152, %s" % (v(T[2]), v(T[0])))
    a("v_lshl_add_u32 %s, %s, 4, %s" % (v(T[2]), v(T[1]), v(T[2])))
    a("v_add_u32 %s, %s, %s" % (v(vGO), s(sT2), v(T[2])))
    a("s_mov_b32 %s, %d" % (s(sT0), 32 * 1152))
    a("s_mov_b32 %s, %d" % (s(sT1), 64 * 1152))
    a("buffer_load_dwordx4 %s, %s, %s, 0 offen" % (v(XR, 4), v(vGO), s(rX, 4)))
    a("buffer_load_dwordx4 %s, %s, %s, %s offen" % (v(XR + 4, 4), v(vGO), s(rX, 4), s(sT0)))
    a("buffer_load_dwordx4 %s, %s, %s, %s offen" % (v(XR + 8, 4), v(vGO), s(rX, 4), s(sT1)))
    a.label("L_pos_r")
    a("s_setpc_b64 %s" % s(sRET, 2))

    sIC, sIG, sLB, sLBEG, sG, sO0, sKB, sP32, sCOL, sFREE = 59, 61, 62, 63, 64, 65, 66, 67, 68, 69
    vDG, vD, vCP, vCT, vPW, vPX, vTQ, vTG = 2, 3, 4, 5, 6, 7, 8, 9
    sTC, sTN = 75, 76
    a.label("L_touch")
    a("s_cmp_ge_u32 %s, %s" % (s(sTC), s(sNCH)))
    a("s_cbranch_scc1 L_touch_r")
    a("s_mov_b64 exec, 0x1ff")
    a("s_cmp_lt_u32 %s, %s" % (s(sTC), s(sNQ)))
    a("s_cbranch_scc1 L_touch_q")
    a("s_sub_u32 %s, %s, %s" % (s(sT0), s(sTC), s(sNQ)))
    a("s_lshr_b32 %s, %s, 1" % (s(sT1), s(sT0)))
    a("s_add_u32 %s, %s, %s" % (s(sT1), s(sT1), s(sP0)))
    a("s_lshl_b32 %s, %s, 7" % (s(sT1), s(sT1)))
    a("s_bitcmp1_b32 %s, 0" % s(sT0))
    a("s_cselect_b32 %s, %s, %s" % (s(rX), s(sWU), s(sWG)))
    a("s_cselect_b32 %s, %s, %s" % (s(rX + 1), s(sWU + 1), s(sWG + 1)))
    a("s_mov_b32 %s, %d" % (s(rX + 2), 576 * 4608 * 2))
    a("buffer_load_dword v20, %s, %s, %s offen" % (v(vTG), s(rX, 4), s(sT1)))
    a("s_branch L_touch_e")
    a.label("L_touch_q")
    a("s_add_u32 %s, %s, %s" % (s(sT1), s(sTC), s(sQ0)))
    a("s_lshl_b32 %s, %s, 7" % (s(sT1), s(sT1)))
    a("buffer_load_dword v20, %s, %s, %s offen" % (v(vTQ), s(rX, 4), s(sT1)))
    a.label("L_touch_e")
    a("s_mov_b64 exec, -1")
    a("s_add_u32 %s, %s, 1" % (s(sTC), s(sTC)))
    a.label("L_touch_r")
    a("s_setpc_b64 %s" % s(sRET, 2))
    a.label("L_issue")
    a("s_cmp_lg_u32 %s, 0" % s(sIG))
    a("s_cbranch_scc1 L_issue2")
    a("s_bitcmp1_b32 %s, 0" % s(sIC))
    a("s_cselect_b32 %s, %d, 0" % (s(sLB), BUF))
    a("s_add_u32 %s, %s, %s" % (s(sLB), s(sLB), s(sLBEG)))
    a("s_cmp_lt_u32 %s, %s" % (s(sIC), s(sNQ)))
    a("s_cbranch_scc1 L_issueq")
    a("s_sub_u32 %s, %s, %s" % (s(sT0), s(sIC), s(sNQ)))
    a("s_lshr_b32 %s, %s, 1" % (s(sT1), s(sT0)))
    a("s_add_u32 %s, %s, %s" % (s(sT1), s(sT1), s(sP0)))
    a("s_lshl_b32 %s, %s, 7" % (s(sCOL), s(sT1)))
    a("s_bitcmp1_b32 %s, 0" % s(sT0))
    a("s_cselect_b32 %s, %s, %s" % (s(rW), s(sWU), s(sWG)))
    a("s_cselect_b32 %s, %s, %s" % (s(rW + 1), s(sWU + 1), s(sWG + 1)))
    a("s_mov_b32 %s, %d" % (s(rW + 2), 576 * 4608 * 2))
    a("s_mov_b32 %s, %d" % (s(sP32), 32 * 9216))
    a("v_mov_b32 %s, %s" % (v(vD), v(vDG)))
    a("s_branch L_issue2")
    a.label("L_issueq")
    a("s_add_u32 %s, %s, %s" % (s(sT1), s(sIC), s(sQ0)))
    a("s_lshl_b32 %s, %s, 7" % (s(sCOL), s(sT1)))
    a.label("L_issue2")
    for kb in range(3):
        a("s_mul_i32 %s, %s, %s" % (s(sO0), s(sKB), s(sP32)))
        a("s_add_u32 %s, %s, %s" % (s(sO0), s(sO0), s(sCOL)))
        a("s_add_u32 m0, %s, %d" % (s(sLB), kb * 2048))
        a("s_add_u32 %s, %s, 2" % (s(sKB), s(sKB)))
        a("buffer_load_dwordx4 %s, %s, %s offen lds" % (v(vD), s(rW, 4), s(sO0)))
        a("s_add_u32 m0, %s, %d" % (s(sLB), kb * 2048 + 1024))
        a("s_add_u32 %s, %s, %s" % (s(sO0), s(sO0), s(sP32)))
        a("buffer_load_dwordx4 %s, %s, %s offen lds" % (v(vD), s(rW, 4), s(sO0)))
        a("s_cmp_eq_u32 %s, 18" % s(sKB))
        a("s_cselect_b32 %s, 0, %s" % (s(sKB), s(sKB)))
    a("s_add_u32 %s, %s, 6144" % (s(sLB), s(sLB)))
    a("s_add_u32 %s, %s, 1" % (s(sIG), s(sIG)))
    a("s_cmp_eq_u32 %s, 3" % s(sIG))
    a("s_cselect_b32 %s, 0, %s" % (s(sIG), s(sIG)))
    a("s_addc_u32 %s, %s, 0" % (s(sIC), s(sIC)))
    a("s_add_u32 %s, %s, 1" % (s(sG), s(sG)))
    a("s_setpc_b64 %s" % s(sRET, 2))

    a.label("L_loader")
    a("s_setprio 3")
    worklist()
    a("s_lshl_b32 %s, %s, 2" % (s(sT0), s(sRB)))
    a("s_add_u32 %s, %s, %s" % (s(sT0), s(sT0), s(sW4)))
    a("s_mul_i32 %s, %s, 9" % (s(sT0), s(sT0)))
    a("v_add_u32 %s, %s, %s" % (v(vTG), s(sT0), v(vLANE)))
    a("v_mul_u32_u24 %s, 3456, %s" % (v(vTQ), v(vTG)))
    a("v_mul_u32_u24 %s, 9216, %s" % (v(vTG), v(vTG)))
    a("s_mov_b32 %s, 0" % s(sTC))
    a("s_waitcnt lgkmcnt(0)")
    srd(a, rW, sWQ, 576 * 1728 * 2)
    srd(a, rX, sWQ, 576 * 1728 * 2)
    for i in range(opt.get("k1_t0", 1)):
        a("s_call_b64 %s, L_touch" % s(sRET, 2))
    a("s_lshl_b32 %s, s2, 2" % s(sT0))
    a("s_add_u32 %s, %s, %s" % (s(sT0), s(sT0), s(sW4)))
    a("s_cmp_lg_u32 %s, 0" % s(sT0))
    a("s_cbranch_scc1 L_notag")
    a("s_memrealtime s[94:95]")
    a("v_mov_b32 %s, 0" % v(vT[2]))
    a("s_waitcnt lgkmcnt(0)")
    a("s_or_b32 s94, s94, 1")
    a("v_mov_b32 %s, s94" % v(vT[3]))
    a("s_mov_b64 exec, 1")
    a("global_store_dword %s, %s, %s sc1" % (v(vT[2]), v(vT[3]), s(sDBG, 2)))
    a("s_mov_b64 exec, -1")
    a.label("L_notag")
    a("s_setprio %d" % opt.get("ld_prio", 0))
    a("v_mov_b32 %s, 0" % v(vT[2]))
    a("v_lshlrev_b32 %s, 2, %s" % (v(vT[3]), v(vLANE)))
    a("ds_write_b32 %s, %s offset:%d" % (v(vT[3]), v(vT[2]), CNT))
    srd(a, rWS, sWS, WS_BYTES)
    a("v_bfe_u32 %s, %s, 2, 3" % (v(vT[5]), v(vLANE)))
    a("s_lshl_b32 %s, %s, 3" % (s(sT0), s(sW4)))
    a("v_add_u32 %s, %s, %s" % (v(vT[5]), s(sT0), v(vT[5])))
    a("s_and_b32 %s, %s, 1" % (s(sT0), s(sW4)))
    a("s_lshl_b32 %s, %s, 1" % (s(sT0), s(sT0)))
    a("v_and_b32 %s, 3, %s" % (v(vT[6]), v(vLANE)))
    a("v_xor_b32 %s, %s, %s" % (v(vT[6]), s(sT0), v(vT[6])))
    a("v_lshlrev_b32 %s, 4, %s" % (v(vT[6]), v(vT[6])))
    a("v_lshrrev_b32 %s, 5, %s" % (v(vT[7]), v(vLANE)))
    a("v_lshl_add_u32 %s, %s, 6, %s" % (v(vT[6]), v(vT[7]), v(vT[6])))
    a("v_mul_u32_u24 %s, 3456, %s" % (v(vD), v(vT[5])))
    a("v_add_u32 %s, %s, %s" % (v(vD), v(vD), v(vT[6])))
    a("v_mul_u32_u24 %s, 9216, %s" % (v(vDG), v(vT[5])))
    a("v_add_u32 %s, %s, %s" % (v(vDG), v(vDG), v(vT[6])))
    a("s_mov_b32 %s, %d" % (s(sP32), 32 * 3456))
    a("s_mov_b32 %s, 0" % s(sIC))
    a("s_mov_b32 %s, 0" % s(sIG))
    a("s_mov_b32 %s, 0" % s(sG))
    a("s_lshl_b32 %s, %s, 1" % (s(sKB), s(sROT)))
    a("s_mul_i32 %s, %s, %d" % (s(sLBEG), s(sW4), QTR))
    a("s_add_u32 %s, %s, %d" % (s(sLBEG), s(sLBEG), LB0))
    PFM = opt.get("k1_pfm", 11)
    sPM, sPMO, sPMW = 72, 73, 74
    rPD = 28
    srd(a, rWO, sWO, 576 * 576 * 2)
    srd(a, rPD, sWD, 4608 * 576 * 2)
    a("v_lshlrev_b32 %s, 7, %s" % (v(vPX), v(vLANE)))
    a("s_lshl_b32 %s, s2, 2" % s(sT0))
    a("s_add_u32 %s, %s, %s" % (s(sT0), s(sT0), s(sW4)))
    a("s_mul_i32 %s, %s, %d" % (s(sPMO), s(sT0), 41 * 128))
    a("s_mul_i32 %s, %s, %d" % (s(sPMW), s(sT0), 6 * 128))
    TR0, TRP, TRN = opt.get("k1_tr", (0, 9, 0))
    a("s_mov_b32 %s, %d" % (s(sTN), TR0))
    def issue():
        a("s_call_b64 %s, L_issue" % s(sRET, 2))
    a("s_waitcnt lgkmcnt(0)")
    st.stamp()
    a("s_barrier")
    issue(); issue()
    a("s_waitcnt vmcnt(6)")
    a("s_barrier")
    issue(); issue()
    a("s_waitcnt vmcnt(12)")
    a("s_barrier")
    issue(); issue()
    a.label("L_ld")
    a("s_waitcnt vmcnt(18)")
    if opt.get("diag_ld", 0): st.stamp()
    a("s_barrier")
    issue()
    if TRN:
        a("s_cmp_lg_u32 %s, %s" % (s(sG), s(sTN)))
        a("s_cbranch_scc1 L_notr")
        a("s_add_u32 %s, %s, %d" % (s(sTN), s(sTN), TRP))
        for i in range(TRN):
            a("s_call_b64 %s, L_touch" % s(sRET, 2))
        a.label("L_notr")
    a("s_cmp_lg_u32 %s, 16" % s(sG))
    a("s_cbranch_scc1 L_notg")
    tag_issue()
    a.label("L_notg")
    a("s_cmp_lt_u32 %s, %s" % (s(sG), s(sNG)))
    a("s_cbranch_scc1 L_ld")
    a("s_waitcnt lgkmcnt(0)")
    tag_check("L_tg3")
    a("s_cmp_lg_u32 %s, 0" % s(sW4))
    a("s_cbranch_scc1 L_noe")
    a("s_cmp_eq_u32 %s, 1" % s(sNP))
    a("s_cbranch_scc1 L_noe")
    own_flag(sT0)
    a("v_mov_b32 %s, %s" % (v(vT[0]), s(sT0)))
    a("v_mov_b32 %s, %s" % (v(vT[1]), s(sTAG)))
    a("s_mov_b64 exec, 1")
    a("buffer_store_dword %s, %s, %s, 0 offen sc1" % (v(vT[1]), v(vT[0]), s(rWS, 4)))
    a.label("L_noe")
    a("s_mov_b64 exec, -1")
    a("s_mov_b32 exec_hi, 0x1ff")
    a("buffer_load_dword v20, %s, %s, %s offen" % (v(vPX), s(rPD, 4), s(sPMO)))
    a("s_mov_b64 exec, 63")
    a("buffer_load_dword v21, %s, %s, %s offen" % (v(vPX), s(rWO, 4), s(sPMW)))
    a("s_mov_b64 exec, -1")
    a("s_waitcnt vmcnt(20)")
    a("s_barrier")
    a("s_waitcnt vmcnt(14)")
    a("s_barrier")
    NL2 = opt.get("k1_l2", 0)
    if NL2:
        a("s_lshl_b32 %s, %s, 2" % (s(sT0), s(sSLOT)))
        a("s_add_u32 %s, %s, %s" % (s(sT0), s(sT0), s(sW4)))
        a("s_lshl_b32 %s, %s, 13" % (s(sT0), s(sT0)))
        for i in range(NL2):
            a("buffer_load_dword v20, %s, %s, %s offen" % (v(vPX), s(rPD, 4), s(sT0)))
            a("s_add_u32 %s, %s, %d" % (s(sT0), s(sT0), 1 << 20))
    a("s_waitcnt vmcnt(%d)" % (2 + NL2))
    a("s_barrier")

    a.label("L_attn")
    a("s_setprio %d" % opt.get("a_prio0", 3))
    st.stamp()
    sA, sCG0, sSFT, sMIN, sOB, sAB, sQT, sRT16 = sW4, 4, 5, 6, 7, 8, 9, 10
    a("s_bitcmp1_b32 %s, 0" % s(sNCH))
    a("s_cselect_b32 %s, %d, 0" % (s(sAB), BUF))
    a("s_add_u32 %s, %s, %d" % (s(sAB), s(sAB), LB0))
    T = [10, 11, 12, 13, 14, 9]
    a("v_mov_b32 %s, %d" % (v(T[2]), C_GO))
    a("s_cmp_lg_u32 %s, 0" % s(sW4))
    a("s_cbranch_scc1 L_wgo")
    tile_of()
    rb_lanes(T[3], T[4], F_E)
    a("v_lshrrev_b32 %s, 4, %s" % (v(T[0]), v(vLANE)))
    a("s_lshl_b32 %s, %s, 1" % (s(sT0), s(sXCD)))
    a("s_sub_u32 %s, %s, 2" % (s(sT0), s(sT0)))
    a("v_add_u32 %s, %s, %s" % (v(T[0]), s(sT0), v(T[0])))
    a("v_max_i32 %s, 0, %s" % (v(T[0]), v(T[0])))
    a("v_lshl_add_u32 %s, %s, 6, %s" % (v(T[0]), v(T[0]), v(T[4])))
    a("v_lshlrev_b32 %s, 2, %s" % (v(T[0]), v(T[0])))
    a("v_add_u32 %s, %d, %s" % (v(T[0]), F_E, v(T[0])))
    poll(T[1], T[0])
    poll(T[4], T[3])
    a("s_waitcnt vmcnt(0)")
    flag_wait("L_fq", T[1], T[0])
    flag_wait("L_ft", T[4], T[3])
    a("v_mov_b32 %s, 1" % v(T[1]))
    a("s_mov_b64 exec, 1")
    a("ds_write_b32 %s, %s" % (v(T[2]), v(T[1])))
    a("s_mov_b64 exec, -1")
    lds_wait("L_wgo", T[2], T[1], "1", 4)
    st.stamp()
    sM = [52 + 2 * r for r in range(16)]
    sK = [84 + 2 * i for i in range(8)]
    vL16, vKB, vVB, vOOFF, vNINF, vOL = 2, 3, 4, 5, 6, 7
    vMX, vMX2, vC = 224, 226, 228
    S0, O0, Q0, KF0, VF0 = 16, 160, 176, 192, 208
    def SR(t): return S0 + 16 * t
    a("s_mul_i32 %s, %s, 18" % (s(sT0), s(sSLOT)))
    a("s_lshr_b32 %s, %s, 4" % (s(sCG0), s(sT0)))
    a("s_and_b32 %s, %s, 15" % (s(sSFT), s(sT0)))
    a("v_lshlrev_b32 %s, 4, %s" % (v(vL16), v(vLANE)))
    for j in range(4):
        a("s_lshl_b32 %s, %s, 3" % (s(sT0), s(sXCD)))
        a("s_lshl_b32 %s, %s, 2" % (s(sT1), s(sA)))
        a("s_add_u32 %s, %s, %d" % (s(sT1), s(sT1), j))
        a("s_add_u32 %s, %s, %s" % (s(sT0), s(sT0), s(sT1)))
        a("s_sub_i32 %s, %s, 8" % (s(sT0), s(sT0)))
        a("s_max_i32 %s, %s, 0" % (s(sT0), s(sT0)))
        a("s_mul_i32 %s, %s, 108" % (s(sT0), s(sT0)))
        a("s_add_u32 %s, %s, %s" % (s(sT0), s(sT0), s(sCG0)))
        a("s_lshl_b32 %s, %s, 10" % (s(sT0), s(sT0)))
        a("s_add_u32 %s, %s, %d" % (s(sT2), s(sT0), QKV_BASE + 36 * 1024))
        a("s_add_u32 %s, %s, %d" % (s(sT3), s(sT0), QKV_BASE + 72 * 1024))
        a("s_lshl_b32 %s, %s, 12" % (s(sT1), s(sT1)))
        a("s_add_u32 m0, %s, %s" % (s(sT1), s(sAB)))
        a("s_add_u32 %s, %s, 2048" % (s(sT1), s(sT1)))
        a("buffer_load_dwordx4 %s, %s, %s offen sc1 lds" % (v(vL16), s(rWS, 4), s(sT2)))
        a("buffer_load_dwordx4 %s, %s, %s offen offset:1024 sc1 lds" % (v(vL16), s(rWS, 4), s(sT2)))
        a("s_add_u32 m0, %s, %s" % (s(sT1), s(sAB)))
        a("s_nop 0")
        a("buffer_load_dwordx4 %s, %s, %s offen sc1 lds" % (v(vL16), s(rWS, 4), s(sT3)))
        a("buffer_load_dwordx4 %s, %s, %s offen offset:1024 sc1 lds" % (v(vL16), s(rWS, 4), s(sT3)))
    a("s_lshl_b32 %s, %s, 3" % (s(sT0), s(sXCD)))
    a("s_lshl_b32 %s, %s, 1" % (s(sT1), s(sA)))
    a("s_add_u32 %s, %s, %s" % (s(sT0), s(sT0), s(sT1)))
    a("s_lshl_b32 %s, %s, 1" % (s(sRT16), s(sT0)))
    a("s_mul_i32 %s, %s, 108" % (s(sT0), s(sT0)))
    a("s_add_u32 %s, %s, %s" % (s(sT0), s(sT0), s(sCG0)))
    a("s_lshl_b32 %s, %s, 10" % (s(sT0), s(sT0)))
    a("s_add_u32 %s, %s, %d" % (s(sT0), s(sT0), QKV_BASE))
    a("s_add_u32 %s, %s, %d" % (s(sT1), s(sT0), 108 * 1024))
    for qt in range(2):
        for p in range(2):
            a("buffer_load_dwordx4 %s, %s, %s, %s offen offset:%d sc1" % (v(Q0 + 8 * qt + 4 * p, 4), v(vL16), s(rWS, 4), s(sT0 + qt), 1024 * p))
    a("v_lshrrev_b32 %s, 5, %s" % (v(T[0]), v(vLANE)))
    a("v_lshlrev_b32 %s, 2, %s" % (v(T[0]), v(T[0])))
    a("v_and_b32 %s, 31, %s" % (v(T[1]), v(vLANE)))
    a("v_sub_u32 %s, %s, %s" % (v(T[2]), v(T[1]), v(T[0])))
    for r in range(16):
        a("v_cmp_le_i32 %s, %d, %s" % (s(sM[r], 2), (r & 3) + 8 * (r >> 2), v(T[2])))
    a("v_lshlrev_b32 %s, 1, %s" % (v(T[2]), v(T[0])))
    a("v_subrev_u32 %s, %s, %s" % (v(T[2]), s(sSFT), v(T[2])))
    for p in range(2):
        for dw in range(4):
            a("v_add_u32 %s, %d, %s" % (v(T[3]), 16 * p + 2 * dw, v(T[2])))
            a("v_cmp_gt_u32 %s, 18, %s" % (s(sK[4 * p + dw], 2), v(T[3])))
    a("s_lshl_b32 %s, %s, 13" % (s(sT2), s(sA)))
    a("s_add_u32 %s, %s, %s" % (s(sT2), s(sT2), s(sAB)))
    a("v_add_u32 %s, %s, %s" % (v(vKB), s(sT2), v(vL16)))
    a("s_lshr_b32 %s, %s, 2" % (s(sT3), s(sSFT)))
    a("v_bfe_u32 %s, %s, 4, 1" % (v(T[3]), v(vLANE)))
    a("v_and_b32 %s, 3, %s" % (v(T[4]), v(vLANE)))
    a("v_lshl_add_u32 %s, %s, 2, %s" % (v(T[3]), v(T[3]), v(T[4])))
    a("v_min_u32 %s, 5, %s" % (v(T[3]), v(T[3])))
    a("v_add_u32 %s, %s, %s" % (v(T[3]), s(sT3), v(T[3])))
    a("v_bfe_u32 %s, %s, 1, 2" % (v(T[4]), v(T[3])))
    a("v_lshlrev_b32 %s, 9, %s" % (v(T[4]), v(T[4])))
    a("v_and_b32 %s, 1, %s" % (v(T[3]), v(T[3])))
    a("v_lshl_add_u32 %s, %s, 3, %s" % (v(T[3]), v(T[3]), v(T[4])))
    a("v_bfe_u32 %s, %s, 2, 2" % (v(T[4]), v(vLANE)))
    a("v_add_u32 %s, %s, %s" % (v(T[4]), v(T[4]), v(T[0])))
    a("v_lshl_add_u32 %s, %s, 4, %s" % (v(T[3]), v(T[4]), v(T[3])))
    a("v_add_u32 %s, %s, %s" % (v(vVB), s(sT2), v(T[3])))
    a("s_mul_i32 %s, %s, 3" % (s(sT0), s(sSLOT)))
    a("v_lshrrev_b32 %s, 5, %s" % (v(T[3]), v(vLANE)))
    a("v_add_u32 %s, %s, %s" % (v(T[3]), s(sT0), v(T[3])))
    a("v_lshrrev_b32 %s, 2, %s" % (v(T[4]), v(T[3])))
    a("v_mul_u32_u24 %s, 5120, %s" % (v(T[4]), v(T[4])))
    a("v_and_b32 %s, 3, %s" % (v(T[3]), v(T[3])))
    a("v_lshl_add_u32 %s, %s, 8, %s" % (v(T[3]), v(T[3]), v(T[4])))
    a("v_and_b32 %s, 15, %s" % (v(T[4]), v(vLANE)))
    a("v_lshl_add_u32 %s, %s, 4, %s" % (v(vOL), v(T[4]), v(T[3])))
    a("s_add_u32 %s, %s, 2" % (s(sT1), s(sT0)))
    a("s_lshr_b32 %s, %s, 2" % (s(sOB), s(sT1)))
    a("s_lshr_b32 %s, %s, 2" % (s(sMIN), s(sT0)))
    a("s_sub_u32 %s, %s, %s" % (s(sOB), s(sOB), s(sMIN)))
    a("s_mul_i32 %s, %s, %d" % (s(sOB), s(sOB), 5120 - 1024))
    a("s_add_u32 %s, %s, %d" % (s(sOB), s(sOB), H_BASE + 144 * 5120 + 512))
    a("v_mov_b32 %s, 0xff800000" % v(vNINF))
    a("v_mov_b32 %s, 0x%x" % (v(vC), fbits(18 ** -0.5 * math.log2(math.e))))
    a("s_add_u32 %s, %s, 5" % (s(sT3), s(sT3)))
    a("s_bfe_u32 %s, %s, 0x20001" % (s(sT0), s(sT3)))
    a("s_lshl_b32 %s, %s, 9" % (s(sT0), s(sT0)))
    a("s_and_b32 %s, %s, 1" % (s(sT1), s(sT3)))
    a("s_lshl_b32 %s, %s, 3" % (s(sT1), s(sT1)))
    a("s_add_u32 %s, %s, %s" % (s(sT0), s(sT0), s(sT1)))
    a("s_lshl_b32 %s, %s, 14" % (s(sT1), s(sA)))
    a("s_add_u32 %s, %s, %s" % (s(sT0), s(sT0), s(sT1)))
    a("s_add_u32 %s, %s, %s" % (s(sT0), s(sT0), s(sAB)))
    a("s_add_u32 %s, %s, 2048" % (s(sT0), s(sT0)))
    a("v_lshlrev_b32 %s, 4, %s" % (v(T[3]), v(T[1])))
    a("v_add3_u32 %s, %s, %s, %s" % (v(T[3]), v(T[3]), v(T[0]), s(sT0)))
    a("v_mov_b32 %s, 0x3f803f80" % v(T[4]))
    a("v_mov_b32 %s, %d" % (v(T[5]), C_A0))
    a("v_mov_b32 %s, 1" % v(vMX))
    a("s_lshl_b32 %s, %s, 1" % (s(sMIN), s(sA)))
    a("s_sub_u32 %s, 8, %s" % (s(sMIN), s(sMIN)))
    a("s_cmp_lg_u32 %s, 0" % s(sXCD))
    a("s_cselect_b32 %s, 0, %s" % (s(sMIN), s(sMIN)))
    a("s_waitcnt vmcnt(0)")
    for j in range(4):
        a("ds_write_b32 %s, %s offset:%d" % (v(T[3]), v(T[4]), j * 4096))
    a("s_mov_b64 exec, 1")
    a("ds_add_u32 %s, %s" % (v(T[5]), v(vMX)))
    a("s_mov_b64 exec, -1")
    for qt in range(2):
        for i in range(8):
            a("v_cndmask_b32 %s, 0, %s, %s" % (v(Q0 + 8 * qt + i), v(Q0 + 8 * qt + i), s(sK[i], 2)))
    a("s_bitcmp1_b32 %s, 0" % s(sSLOT))
    a("s_cselect_b32 %s, 0, -1" % s(sK[0]))
    a("s_mov_b32 %s, -1" % s(sK[0] + 1))
    a("s_cselect_b64 %s, -1, 0" % s(sK[1], 2))
    a("s_mov_b32 %s, 0" % s(sQT))
    lds_wait("L_wa", T[5], vMX, "4", 1)
    a("s_setprio %d" % opt.get("a_prio", 0))
    a.label("L_aq")
    st.stamp()
    Q = Q0
    def krd(t):
        for p in range(2):
            a("ds_read_b128 %s, %s offset:%d" % (v(KF0 + 8 * (t & 1) + 4 * p, 4), v(vKB), t * 4096 + 1024 * p))
    def vrd(t):
        for hf in range(2):
            for aa in range(2):
                a("ds_read_b64_tr_b16 %s, %s offset:%d" % (v(VF0 + 8 * (t & 1) + 4 * hf + 2 * aa, 2), v(vVB), t * 4096 + 2048 + hf * 256 + aa * 128))
    def mx(t, first=False):
        R = SR(t)
        for i in range(0, 16, 4):
            if first and i == 0:
                a("v_max_f32 %s, %s, %s" % (v(vMX), v(R), v(R + 1)))
                a("v_max_f32 %s, %s, %s" % (v(vMX2), v(R + 2), v(R + 3)))
            else:
                a("v_max3_f32 %s, %s, %s, %s" % (v(vMX), v(R + i), v(R + i + 1), v(vMX)))
                a("v_max3_f32 %s, %s, %s, %s" % (v(vMX2), v(R + i + 2), v(R + i + 3), v(vMX2)))
    def fix(t):
        if t == 0:
            for r in range(16):
                a("v_cndmask_b32 %s, %s, %s, %s" % (v(SR(0) + r), v(SR(0) + r), v(vNINF), s(sM[r], 2)))
        if t == 8:
            for r in range(16):
                a("v_cndmask_b32 %s, %s, %s, %s" % (v(SR(8) + r), v(vNINF), v(SR(8) + r), s(sM[r], 2)))
        else:
            l = a.newlabel("inv")
            a("s_cmp_le_u32 %s, %d" % (s(sMIN), t))
            a("s_cbranch_scc1 %s" % l)
            for r in range(16):
                a("v_mov_b32 %s, %s" % (v(SR(t) + r), v(vNINF)))
            a.label(l)
        mx(t, t == 0)
    krd(0)
    for t in range(9):
        if t < 8:
            krd(t + 1)
            a("s_waitcnt lgkmcnt(2)")
        else:
            a("s_waitcnt lgkmcnt(0)")
        kf = KF0 + 8 * (t & 1)
        a("v_mfma_f32_32x32x16_bf16 %s, %s, %s, 0" % (v(SR(t), 16), v(kf, 4), v(Q, 4)))
        a("v_mfma_f32_32x32x16_bf16 %s, %s, %s, %s" % (v(SR(t), 16), v(kf + 4, 4), v(Q + 4, 4), v(SR(t), 16)))
        if t == 2:
            a("s_nop 1")
        if t >= 2:
            fix(t - 2)
    vrd(0)
    vrd(1)
    fix(7)
    fix(8)
    a("v_max_f32 %s, %s, %s" % (v(vMX), v(vMX), v(vMX2)))
    a("v_mov_b32 %s, %s" % (v(vMX2), v(vMX)))
    a("s_nop 1")
    a("v_permlane32_swap_b32 %s, %s" % (v(vMX), v(vMX2)))
    a("s_nop 1")
    a("v_max_f32 %s, %s, %s" % (v(vMX), v(vMX), v(vMX2)))
    a("v_mul_f32 %s, -%s, %s" % (v(vMX), v(vC), v(vMX)))
    for t in range(9):
        R = SR(t)
        for r in range(0, 16, 2):
            a("v_pk_fma_f32 %s, %s, %s, %s op_sel_hi:[1,0,0]" % (v(R + r, 2), v(R + r, 2), v(vC, 2), v(vMX, 2)))
        for r in range(16):
            a("v_exp_f32 %s, %s" % (v(R + r), v(R + r)))
        a("s_nop 0")
        for j in range(8):
            a("v_cvt_pk_bf16_f32 %s, %s, %s" % (v(R + j), v(R + 2 * j), v(R + 2 * j + 1)))
        a("s_waitcnt lgkmcnt(%d)" % (4 if t < 8 else 0))
        a("s_nop 0")
        vf = VF0 + 8 * (t & 1)
        c = "0" if t == 0 else v(O0, 16)
        a("v_mfma_f32_32x32x16_bf16 %s, %s, %s, %s" % (v(O0, 16), v(vf, 4), v(R, 4), c))
        a("v_mfma_f32_32x32x16_bf16 %s, %s, %s, %s" % (v(O0, 16), v(vf + 4, 4), v(R + 4, 4), v(O0, 16)))
        if t + 2 < 9:
            vrd(t + 2)
    a("v_bfe_u32 %s, %s, 4, 1" % (v(T[1]), v(vLANE)))
    a("v_add_u32 %s, %s, %s" % (v(T[1]), s(sRT16), v(T[1])))
    a("v_mul_u32_u24 %s, 205, %s" % (v(T[2]), v(T[1])))
    a("v_lshrrev_b32 %s, 10, %s" % (v(T[2]), v(T[2])))
    a("v_mul_u32_u24 %s, %d, %s" % (v(T[2]), NKS * 5 - 5, v(T[2])))
    a("v_add_u32 %s, %s, %s" % (v(T[1]), v(T[1]), v(T[2])))
    a("v_lshl_add_u32 %s, %s, 10, %s" % (v(vOOFF), v(T[1]), v(vOL)))
    for i in range(8):
        a("v_mov_b32 %s, %s" % (v(Q0 + i), v(Q0 + 8 + i)))
    a("v_add_u32 %s, 4096, %s" % (v(vKB), v(vKB)))
    a("v_add_u32 %s, 4096, %s" % (v(vVB), v(vVB)))
    a("s_add_u32 %s, %s, 2" % (s(sRT16), s(sRT16)))
    a("s_sub_u32 %s, %s, 1" % (s(sMIN), s(sMIN)))
    a("s_cselect_b32 %s, 0, %s" % (s(sMIN), s(sMIN)))
    a("v_rcp_f32 %s, %s" % (v(T[0]), v(O0 + 12)))
    a("s_nop 0")
    for r in range(12):
        a("v_mul_f32 %s, %s, %s" % (v(O0 + r), v(O0 + r), v(T[0])))
    for j in range(6):
        a("v_cvt_pk_bf16_f32 %s, %s, %s" % (v(O0 + j), v(O0 + 2 * j), v(O0 + 2 * j + 1)))
    a("v_cndmask_b32 %s, 0, %s, %s" % (v(O0), v(O0), s(sK[0], 2)))
    a("v_cndmask_b32 %s, 0, %s, %s" % (v(O0 + 5), v(O0 + 5), s(sK[1], 2)))
    a("v_mov_b32 %s, 0" % v(O0 + 6))
    a("v_mov_b32 %s, 0" % v(O0 + 7))
    a("s_setprio 3")
    a("s_mov_b32 %s, %d" % (s(sT0), H_BASE + 144 * 5120))
    a("buffer_store_dwordx4 %s, %s, %s, %s offen sc1" % (v(O0, 4), v(vOOFF), s(rWS, 4), s(sT0)))
    a("s_mov_b32 exec_hi, 0")
    a("buffer_store_dwordx4 %s, %s, %s, %s offen sc1" % (v(O0 + 4, 4), v(vOOFF), s(rWS, 4), s(sOB)))
    a("s_mov_b64 exec, -1")
    a("s_setprio %d" % opt.get("a_prio", 0))
    a("s_add_u32 %s, %s, 1" % (s(sQT), s(sQT)))
    a("s_cmp_lt_u32 %s, 2" % s(sQT))
    a("s_cbranch_scc1 L_aq")
    a("s_setprio 3")
    st.stamp()
    a("s_waitcnt vmcnt(0)")
    st.stamp()
    a("v_mov_b32 %s, %d" % (v(T[0]), C_A1))
    a("v_mov_b32 %s, 1" % v(T[1]))
    a("s_lshl_b32 %s, %s, 6" % (s(sT1), s(sXCD)))
    a("s_add_u32 %s, %s, %s" % (s(sT1), s(sT1), s(sSLOT)))
    a("s_lshl_b32 %s, %s, 2" % (s(sT1), s(sT1)))
    a("s_add_u32 %s, %s, %d" % (s(sT1), s(sT1), F_A))
    a("v_mov_b32 %s, %s" % (v(T[3]), s(sT1)))
    a("v_mov_b32 %s, %s" % (v(T[4]), s(sTAG)))
    a("s_mov_b64 exec, 1")
    a("ds_add_rtn_u32 %s, %s, %s" % (v(T[2]), v(T[0]), v(T[1])))
    a("s_waitcnt lgkmcnt(0)")
    a("v_readfirstlane_b32 %s, %s" % (s(sT0), v(T[2])))
    a("s_cmp_lg_u32 %s, 3" % s(sT0))
    a("s_cbranch_scc1 L_fin")
    a("buffer_store_dword %s, %s, %s, 0 offen sc1" % (v(T[4]), v(T[3]), s(rWS, 4)))
    a.label("L_fin")
    if st.on:
        a("s_mov_b64 exec, -1")
        a("v_mov_b32 v0, %s" % v(vLANE))
        a("s_waitcnt vmcnt(0)")
    st.stamp(); st.stamp(True); st.dump(sWAVE, sWS, 254)
    a.label("L_end")
    a("s_endpgm")
    a.label("L_code_end")
    return a.text(), kdesc(F_NAME, 256, 102)
```

```python
import sys, json
from common import *
from f1 import *
HEADER = open("parallel_sum__sliding_block__glu_gated_bilinear__prompt.s.ref").read().split("; Override launch geometry")[0]
def generate(opt):
    t, d = gen_f1(opt)
    out = HEADER
    if opt.get("as_list", 0):
        out += "; @launch kernel=%s grid=(256,1,1) block=(512,1,1) lds=%d\n" % (F_NAME, F_LDS)
    else:
        out += "; @launch grid=(256,1,1) block=(512,1,1) lds=%d\n" % F_LDS
    out += '.amdgcn_target "amdgcn-amd-amdhsa--gfx950"\n'
    return out + t + d
if __name__ == "__main__":
    path = sys.argv[1] if len(sys.argv) > 1 else "parallel_sum__sliding_block__glu_gated_bilinear__prompt.s"
    opt = json.loads(sys.argv[2]) if len(sys.argv) > 2 else {}
    open(path, "w").write(generate(opt))
    print("wrote", path)
```

```python
from common import *
import math, struct

F_NAME = "parallel_sum__sliding_block__glu_gated_bilinear__prompt_kernel"
BUF = 73728
QTR = 18432
CNT = 0
LB0 = 4096
C_E, C_L, C_A0, C_A1, C_GO, C_TAG = CNT + 32, CNT + 36, CNT + 40, CNT + 44, CNT + 48, CNT + 52
C_PROD = CNT + 256
C_CONS = CNT + 64
F_LDS = LB0 + 2 * BUF
PART = 21760
F_E, F_L, F_A, F_Q = FL_BASE, FL_BASE + 4096, FL_BASE + 8192, FL_BASE + 12288
SPIN = 100000

def fbits(x):
    return struct.unpack("<I", struct.pack("<f", x))[0]

def gen_f1(opt):
    global BUF, QTR
    if opt.get("x_oldlayout", 0):
        BUF, QTR = 18432, 36864
    a = Asm()
    a.raw(khead(F_NAME))
    sX, sWQ, sWG, sWU, sDBG, sWS, sWO, sWD, sOUT = 4, 6, 8, 10, 12, 14, 44, 48, 50
    rX, rW, rWO, rOUT, rWS = 16, 20, 24, 28, 32
    sWAVE, sW4, sXCD, sSLOT = 36, 37, 38, 39
    sT0, sT1, sT2, sT3 = 40, 41, 42, 43
    sSPIN = 47
    sRET = 98
    sRB, sCG, sROT, sNQ, sNP, sQ0, sP0, sNCH, sNG = 52, 53, 54, 55, 56, 57, 58, 60, 71
    vLANE = 1

    a("s_cmp_ge_u32 s2, 256")
    a("s_cbranch_scc1 L_end")
    a("s_load_dwordx4 s[4:7], s[0:1], %d" % KA_X)
    a("s_load_dwordx4 s[8:11], s[0:1], %d" % KA_WG)
    a("s_load_dwordx4 s[12:15], s[0:1], %d" % KA_DBG)
    a("s_load_dwordx2 s[44:45], s[0:1], %d" % KA_WO)
    a("s_load_dwordx4 s[48:51], s[0:1], %d" % KA_WD)
    a("s_memrealtime s[92:93]")
    if opt.get("code_pf", 1):
        a("s_getpc_b64 s[96:97]")
        a("s_lshr_b32 s3, s2, 3")
        a("s_lshl_b32 s3, s3, 11")
        a("v_lshl_add_u32 v14, v0, 7, s3")
        a("v_min_u32 v14, L_code_end-%s-192, v14" % F_NAME)
        a("v_cmp_gt_u32 vcc, 16, v0")
        a("s_and_saveexec_b64 s[88:89], vcc")
        a("s_cbranch_execz L_nocpf")
        a("global_load_dword v255, v14, s[96:97]")
        a.label("L_nocpf")
        a("s_mov_b64 exec, s[88:89]")
    st = Stamper(a, opt.get("diag", 0), 15, 100, 0, scnt=46)
    st.init(); st.stamp(True); st.stamp()
    vT = list(range(236, 252))
    a("v_and_b32 %s, 63, v0" % v(vLANE))
    a("v_lshrrev_b32 %s, 6, v0" % v(vT[0]))
    a("s_and_b32 %s, s2, 7" % s(sXCD))
    a("s_lshr_b32 %s, s2, 3" % s(sSLOT))
    a("v_readfirstlane_b32 %s, %s" % (s(sWAVE), v(vT[0])))
    LR = opt.get("k1_lrb", 3)
    RBX, CGX = 1 << LR, 32 >> LR
    sRBL = 79
    a("s_and_b32 %s, %s, %d" % (s(sRBL), s(sSLOT), RBX - 1))
    a("s_lshr_b32 %s, %s, %d" % (s(sT1), s(sSLOT), LR))
    a("s_and_b32 %s, %s, %d" % (s(sT2), s(sXCD), 16 // RBX - 1))
    a("s_lshr_b32 %s, %s, %d" % (s(sT0), s(sXCD), 4 - LR))
    a("s_lshl_b32 %s, %s, %d" % (s(sRB), s(sT2), LR))
    a("s_add_u32 %s, %s, %s" % (s(sRB), s(sRB), s(sRBL)))
    a("s_lshl_b32 %s, %s, %d" % (s(sCG), s(sT0), 5 - LR))
    a("s_add_u32 %s, %s, %s" % (s(sCG), s(sCG), s(sT1)))
    mr, mc, mx = opt.get("k1_rot", {4: (1, 4, 1), 3: (1, 2, 1), 2: (2, 1, 0)}[LR])
    a("s_mul_i32 %s, %s, %d" % (s(sT3), s(sRBL), mr))
    a("s_mul_i32 %s, %s, %d" % (s(sT1), s(sT1), mc))
    a("s_mul_i32 %s, %s, %d" % (s(sT0), s(sT0), mx))
    a("s_add_u32 %s, %s, %s" % (s(sROT), s(sT3), s(sT1)))
    a("s_add_u32 %s, %s, %s" % (s(sROT), s(sROT), s(sT0)))
    a("s_mul_i32 %s, %s, 57" % (s(sT0), s(sROT)))
    a("s_lshr_b32 %s, %s, 9" % (s(sT0), s(sT0)))
    a("s_mul_i32 %s, %s, 9" % (s(sT0), s(sT0)))
    a("s_sub_u32 %s, %s, %s" % (s(sROT), s(sROT), s(sT0)))
    a("s_and_b32 %s, %s, 3" % (s(sW4), s(sWAVE)))
    sNE, sL0 = 94, 95
    def worklist():
        a("s_lshr_b32 %s, %s, 1" % (s(sT0), s(sCG)))
        a("s_cmp_lt_u32 %s, 3" % s(sT0))
        a("s_cselect_b32 %s, 3, 2" % s(sNQ))
        a("s_min_u32 %s, %s, 3" % (s(sQ0), s(sT0)))
        a("s_lshl_b32 %s, %s, 1" % (s(sT1), s(sT0)))
        a("s_add_u32 %s, %s, %s" % (s(sQ0), s(sQ0), s(sT1)))
        a("s_add_u32 %s, %s, 8" % (s(sQ0), s(sQ0)))
        a("s_add_u32 %s, %s, 24" % (s(sP0), s(sT1)))
        a("s_mul_i32 %s, %s, 3" % (s(sT1), s(sT0)))
        a("s_bitcmp0_b32 %s, 0" % s(sCG))
        a("s_cselect_b32 %s, 1, %s" % (s(sNQ), s(sNQ)))
        a("s_cselect_b32 %s, %s, %s" % (s(sQ0), s(sT0), s(sQ0)))
        a("s_cselect_b32 %s, %s, %s" % (s(sP0), s(sT1), s(sP0)))
        a("s_cselect_b32 %s, 3, 2" % s(sNE))
        a("s_lshl_b32 %s, %s, 1" % (s(sL0), s(sCG)))
        a("s_add_u32 %s, %s, 40" % (s(sL0), s(sL0)))
        a("s_sub_u32 %s, %s, %s" % (s(sL0), s(sL0), s(sNE)))
        a("s_lshl_b32 %s, %s, 1" % (s(sNCH), s(sNE)))
        a("s_add_u32 %s, %s, 4" % (s(sNCH), s(sNCH)))
        a("s_add_u32 %s, %s, %s" % (s(sNCH), s(sNCH), s(sNQ)))
        a("s_mul_i32 %s, %s, 3" % (s(sNG), s(sNCH)))
    def pair_of(sj):
        a("s_cmp_lt_u32 %s, %s" % (s(sj), s(sNE)))
        a("s_cselect_b32 %s, %s, %s" % (s(sT2), s(sP0), s(sL0)))
        a("s_add_u32 %s, %s, %s" % (s(sj), s(sj), s(sT2)))
    sRT, sCT = 80, 81
    def tile_of():
        a("s_mul_i32 %s, %s, 29" % (s(sT0), s(sXCD)))
        a("s_min_u32 %s, %s, 2" % (s(sT1), s(sXCD)))
        a("s_add_u32 %s, %s, %s" % (s(sT0), s(sT0), s(sT1)))
        a("s_add_u32 %s, %s, %s" % (s(sT0), s(sT0), s(sSLOT)))
        a("s_min_u32 %s, %s, 233" % (s(sT0), s(sT0)))
        a("s_mul_i32 %s, %s, 7282" % (s(sRT), s(sT0)))
        a("s_lshr_b32 %s, %s, 16" % (s(sRT), s(sRT)))
        a("s_mul_i32 %s, %s, 9" % (s(sT1), s(sRT)))
        a("s_sub_u32 %s, %s, %s" % (s(sCT), s(sT0), s(sT1)))
        a("s_mul_i32 %s, %s, 80" % (s(sT0), s(sRT)))
        a("s_add_u32 %s, %s, 79" % (s(sT1), s(sT0)))
        a("s_min_u32 %s, %s, 2047" % (s(sT1), s(sT1)))
        a("s_lshr_b32 %s, %s, 7" % (s(sT2), s(sT0)))
        a("s_lshr_b32 %s, %s, 7" % (s(sT3), s(sT1)))
        a("s_lshl_b32 %s, %s, 2" % (s(sT2), s(sT2)))
        a("s_lshl_b32 %s, %s, 2" % (s(sT3), s(sT3)))
    def lds_wait(name, vaddr, vtmp, sneed, sleep=1):
        a.label(name)
        a("ds_read_b32 %s, %s" % (v(vtmp), v(vaddr)))
        a("s_waitcnt lgkmcnt(0)")
        a("v_cmp_gt_u32 vcc, %s, %s" % (sneed, v(vtmp)))
        a("s_cbranch_vccz %s_ok" % name)
        if sleep: a("s_sleep %d" % sleep)
        a("s_branch %s" % name)
        a.label(name + "_ok")
    sTAG = 3
    def poll(vval, voff):
        a("buffer_load_dword %s, %s, %s, 0 offen sc1" % (v(vval), v(voff), s(rWS, 4)))
    def flag_wait(name, vval, voff):
        a("s_mov_b32 %s, %d" % (s(sSPIN), SPIN))
        a.label(name)
        a("v_cmp_ne_u32 vcc, %s, %s" % (s(sTAG), v(vval)))
        a("s_cbranch_vccz %s_ok" % name)
        a("s_sub_u32 %s, %s, 1" % (s(sSPIN), s(sSPIN)))
        a("s_cbranch_scc1 %s_ok" % name)
        a("s_sleep %d" % opt.get("poll_sleep", 16))
        poll(vval, voff)
        a("s_waitcnt vmcnt(0)")
        a("s_branch %s" % name)
        a.label(name + "_ok")
    def tag_issue():
        a("s_load_dword %s, %s, 0" % (s(sTAG), s(sDBG, 2)))
    def tag_check(name):
        a("s_mov_b32 %s, %d" % (s(sSPIN), SPIN))
        a("s_sub_u32 %s, s92, %s" % (s(sT0), s(sTAG)))
        a("s_cmp_gt_i32 %s, 2000" % s(sT0))
        a("s_cselect_b32 %s, 0, %s" % (s(sTAG), s(sTAG)))
        a.label(name)
        a("s_cmp_lg_u32 %s, 0" % s(sTAG))
        a("s_cbranch_scc1 %s_ok" % name)
        a("s_sub_u32 %s, %s, 1" % (s(sSPIN), s(sSPIN)))
        a("s_cbranch_scc1 %s_ok" % name)
        a("s_load_dword %s, %s, 0 glc" % (s(sTAG), s(sDBG, 2)))
        a("s_waitcnt lgkmcnt(0)")
        a("s_sleep 8")
        a("s_branch %s" % name)
        a.label(name + "_ok")
    def own_flag(sd):
        a("s_lshl_b32 %s, %s, 6" % (s(sd), s(sRB)))
        a("s_add_u32 %s, %s, %s" % (s(sd), s(sd), s(sCG)))
        a("s_lshl_b32 %s, %s, 2" % (s(sd), s(sd)))
        a("s_add_u32 %s, %s, %d" % (s(sd), s(sd), F_E))
    def rb_lanes(vd, vt, base):
        a("v_mov_b32 %s, %s" % (v(vd), s(sT2)))
        a("v_mov_b32 %s, %s" % (v(vt), s(sT3)))
        a("s_mov_b32 vcc_lo, 0xffff0000")
        a("s_mov_b32 vcc_hi, 0xffff0000")
        a("v_cndmask_b32 %s, %s, %s, vcc" % (v(vd), v(vd), v(vt)))
        a("v_and_b32 %s, 15, %s" % (v(vt), v(vLANE)))
        a("v_lshl_add_u32 %s, %s, 4, %s" % (v(vd), v(vd), v(vt)))
        a("v_lshlrev_b32 %s, 2, %s" % (v(vd), v(vd)))
        a("v_add_u32 %s, %d, %s" % (v(vd), base, v(vd)))
    a("s_cmp_ge_u32 %s, 4" % s(sWAVE))
    a("s_cbranch_scc1 L_loader")

    sI, sEP0, sEP1, sHB0, sHB1, sQB, sE2, sXO, sXC, sXL, sNEED = 59, 61, 62, 63, 64, 65, 66, 67, 68, 69, 70
    vTR = [[2, 3], [4, 5]]
    vL16 = 6
    vR, vR2 = [7, 8], [9, 10]
    vPA, vPV, vCA, vCV = 11, 12, 13, 14
    X0 = 16
    ACC = [160, 192]
    WF0 = 224
    NF, PD = 8, 7
    def X(m, ks): return X0 + 8 * ks + 4 * m
    def WF(q): return WF0 + 4 * (q % NF)
    def TL(A, nt, m): return A + (m * 4 + nt) * 4
    a("s_lshl_b32 %s, %s, 7" % (s(sT0), s(sRB)))
    a("s_lshl_b32 %s, %s, 5" % (s(sT1), s(sWAVE)))
    a("s_add_u32 %s, %s, %s" % (s(sT0), s(sT0), s(sT1)))
    a("s_mul_i32 %s, %s, 1152" % (s(sXO), s(sT0)))
    a("s_lshl_b32 %s, %s, 7" % (s(sXC), s(sROT)))
    a("s_mul_i32 %s, %s, %d" % (s(sXL), s(sWAVE), QTR))
    a("s_add_u32 %s, %s, %d" % (s(sXL), s(sXL), LB0 + BUF))
    vXO = [vT[0], vT[3]]
    a("v_lshrrev_b32 %s, 3, %s" % (v(vT[1]), v(vLANE)))
    a("v_and_b32 %s, 7, %s" % (v(vT[2]), v(vLANE)))
    a("v_mul_u32_u24 %s, 1152, %s" % (v(vT[4]), v(vT[1])))
    a("v_lshrrev_b32 %s, 4, %s" % (v(vT[5]), v(vLANE)))
    a("v_xor_b32 %s, %s, %s" % (v(vT[6]), v(vT[2]), v(vT[5])))
    a("v_lshl_add_u32 %s, %s, 4, %s" % (v(vXO[0]), v(vT[6]), v(vT[4])))
    a("v_xor_b32 %s, 4, %s" % (v(vT[6]), v(vT[6])))
    a("v_lshl_add_u32 %s, %s, 4, %s" % (v(vXO[1]), v(vT[6]), v(vT[4])))
    a("v_add_u32 %s, %d, %s" % (v(vXO[1]), 8 * 1152, v(vXO[1])))
    a("s_waitcnt lgkmcnt(0)")
    srd(a, rX, sX, 2048 * 576 * 2)
    def xdma(i):
        sl = (i % 4) * 4096
        a("s_add_u32 %s, %s, %s" % (s(sT2), s(sXO), s(sXC)))
        a("s_add_u32 m0, %s, %d" % (s(sXL), sl))
        a("s_add_u32 %s, %s, %d" % (s(sT3), s(sT2), 16 * 1152))
        a("buffer_load_dwordx4 %s, %s, %s offen lds" % (v(vXO[0]), s(rX, 4), s(sT2)))
        a("s_add_u32 m0, %s, %d" % (s(sXL), sl + 1024))
        a("s_add_u32 %s, %s, 128" % (s(sXC), s(sXC)))
        a("buffer_load_dwordx4 %s, %s, %s offen lds" % (v(vXO[1]), s(rX, 4), s(sT2)))
        a("s_add_u32 m0, %s, %d" % (s(sXL), sl + 2048))
        a("s_cmp_eq_u32 %s, 1152" % s(sXC))
        a("buffer_load_dwordx4 %s, %s, %s offen lds" % (v(vXO[0]), s(rX, 4), s(sT3)))
        a("s_cselect_b32 %s, 0, %s" % (s(sXC), s(sXC)))
        a("s_add_u32 m0, %s, %d" % (s(sXL), sl + 3072))
        a("s_nop 0")
        a("buffer_load_dwordx4 %s, %s, %s offen lds" % (v(vXO[1]), s(rX, 4), s(sT3)))
    xdma(0); xdma(1)
    srd(a, rWS, sWS, WS_BYTES)
    worklist()
    a("v_lshlrev_b32 %s, 4, %s" % (v(vL16), v(vLANE)))
    vRA = [vT[7], vT[8]]
    a("v_and_b32 %s, 15, %s" % (v(vT[6]), v(vLANE)))
    a("v_lshrrev_b32 %s, 1, %s" % (v(vT[9]), v(vT[6])))
    a("v_xor_b32 %s, %s, %s" % (v(vT[9]), v(vT[9]), v(vT[5])))
    a("v_lshlrev_b32 %s, 4, %s" % (v(vT[9]), v(vT[9])))
    a("v_lshl_add_u32 %s, %s, 7, %s" % (v(vT[9]), v(vT[6]), v(vT[9])))
    a("v_add_u32 %s, %s, %s" % (v(vRA[0]), s(sXL), v(vT[9])))
    a("v_xor_b32 %s, 64, %s" % (v(vT[9]), v(vT[9])))
    a("v_add_u32 %s, %s, %s" % (v(vRA[1]), s(sXL), v(vT[9])))
    SEL, ONE = 224, 232
    a("v_lshrrev_b32 %s, 2, %s" % (v(vT[9]), v(vT[6])))
    a("v_cmp_eq_u32 vcc, %s, %s" % (v(vT[9]), v(vT[5])))
    a("v_and_b32 %s, 1, %s" % (v(vT[9]), v(vLANE)))
    a("v_lshlrev_b32 %s, 4, %s" % (v(vT[9]), v(vT[9])))
    a("v_mov_b32 %s, 0x3f80" % v(vT[1]))
    a("v_lshlrev_b32 %s, %s, %s" % (v(vT[9]), v(vT[9]), v(vT[1])))
    a("v_cndmask_b32 %s, 0, %s, vcc" % (v(vT[9]), v(vT[9])))
    for r, c in ((72, 0xcccccccc), (73, 0xcccccccc), (74, 0xaaaaaaaa), (75, 0xaaaaaaaa), (76, 0x00f0000f), (77, 0xf0000f00)):
        a("s_mov_b32 s%d, 0x%x" % (r, c))
    a("v_cndmask_b32 %s, %s, 0, s[72:73]" % (v(SEL + 2), v(vT[9])))
    a("v_cndmask_b32 %s, 0, %s, s[72:73]" % (v(SEL + 3), v(vT[9])))
    for r in (0, 1, 4, 5):
        a("v_mov_b32 %s, 0" % v(SEL + r))
    for r in range(4):
        a("v_mov_b32 %s, 0x3f803f80" % v(ONE + r))
    a("v_mul_u32_u24 %s, %d, %s" % (v(vT[9]), QTR, v(vT[5])))
    a("v_add_u32 %s, %d, %s" % (v(vT[9]), LB0, v(vT[9])))
    a("v_bfe_u32 %s, %s, 2, 2" % (v(vT[6]), v(vLANE)))
    a("v_lshl_add_u32 %s, %s, 6, %s" % (v(vT[9]), v(vT[6]), v(vT[9])))
    a("v_and_b32 %s, 3, %s" % (v(vT[6]), v(vLANE)))
    a("v_lshl_add_u32 %s, %s, 3, %s" % (v(vT[9]), v(vT[6]), v(vT[9])))
    a("v_and_b32 %s, 1, %s" % (v(vT[6]), v(vT[5])))
    a("v_lshl_add_u32 %s, %s, 5, %s" % (v(vTR[0][0]), v(vT[6]), v(vT[9])))
    a("v_xor_b32 %s, 32, %s" % (v(vTR[0][1]), v(vTR[0][0])))
    a("v_add_u32 %s, %d, %s" % (v(vTR[1][0]), BUF, v(vTR[0][0])))
    a("v_add_u32 %s, %d, %s" % (v(vTR[1][1]), BUF, v(vTR[0][1])))

    xdma(2); xdma(3)
    if opt.get("diag", 0) == 1: st.stamp()
    for m, sH in ((0, sHB0), (1, sHB1)):
        a("s_lshl_b32 %s, %s, 3" % (s(sT0), s(sRB)))
        a("s_lshl_b32 %s, %s, 1" % (s(sT1), s(sWAVE)))
        a("s_add_u32 %s, %s, %s" % (s(sT0), s(sT0), s(sT1)))
        a("s_add_u32 %s, %s, %d" % (s(sT0), s(sT0), m))
        a("s_mul_i32 %s, %s, 205" % (s(sT1), s(sT0)))
        a("s_lshr_b32 %s, %s, 10" % (s(sT1), s(sT1)))
        a("s_mul_i32 %s, %s, %d" % (s(sT1), s(sT1), NKS * 5 - 5))
        a("s_add_u32 %s, %s, %s" % (s(sT0), s(sT0), s(sT1)))
        a("s_lshl_b32 %s, %s, 10" % (s(sH), s(sT0)))
        a("s_mul_i32 %s, %s, 10240" % (s(sT1), s(sP0)))
        a("s_add_u32 %s, %s, %s" % (s(sH), s(sH), s(sT1)))
        if H_BASE: a("s_add_u32 %s, %s, %d" % (s(sH), s(sH), H_BASE))
    sFO = 91
    own_flag(sFO)
    sJMP = 78
    a("s_sub_u32 %s, %s, %s" % (s(sJMP), s(sL0), s(sP0)))
    a("s_mul_i32 %s, %s, 10240" % (s(sJMP), s(sJMP)))
    a("s_lshl_b32 %s, %s, 2" % (s(sT0), s(sRB)))
    a("s_add_u32 %s, %s, %s" % (s(sT0), s(sT0), s(sWAVE)))
    a("s_mul_i32 %s, %s, 108" % (s(sT0), s(sT0)))
    a("s_lshl_b32 %s, %s, 2" % (s(sT1), s(sQ0)))
    a("s_add_u32 %s, %s, %s" % (s(sT0), s(sT0), s(sT1)))
    a("s_lshl_b32 %s, %s, 10" % (s(sQB), s(sT0)))
    a("s_add_u32 %s, %s, %d" % (s(sQB), s(sQB), QKV_BASE))
    SUM, GRM = [160, 164], [208, 212]
    def cstat(i):
        for e in range(2):
            for m in range(2):
                x = v(X(m, 2 * i + e), 4)
                first = i == 0 and e == 0
                a("v_mfma_f32_16x16x32_bf16 %s, %s, %s, %s" % (v(SUM[m], 4), v(ONE, 4), x, "0" if first else v(SUM[m], 4)))
                a("v_mfma_f32_16x16x32_bf16 %s, %s, %s, %s" % (v(GRM[m], 4), x, x, "0" if first else v(GRM[m], 4)))
    for i in range(9):
        issued = min(9, max(4, i + 3))
        a("s_waitcnt vmcnt(%d)" % (4 * (issued - i - 1)))
        for e in range(2):
            for m in range(2):
                a("ds_read_b128 %s, %s offset:%d" % (v(X(m, 2 * i + e), 4), v(vRA[e]), (i % 4) * 4096 + m * 2048))
        if i > 0:
            a("s_waitcnt lgkmcnt(4)")
            if i + 3 < 9:
                xdma(i + 3)
            cstat(i - 1)
    a("s_waitcnt lgkmcnt(0)")
    a("s_barrier")
    cstat(8)
    st.stamp()
    a("s_nop 6")
    inv = 0x3ae38e39
    MEAN = [168, 169]
    for m in range(2):
        a("v_mul_f32 %s, 0x%x, %s" % (v(MEAN[m]), inv, v(SUM[m])))
    a("v_cvt_pk_bf16_f32 v170, %s, %s" % (v(MEAN[0]), v(MEAN[1])))
    a("v_xor_b32 v170, 0x80008000, v170")
    for r in range(4):
        a("v_lshlrev_b32 %s, 16, v170" % v(SUM[0] + r))
    for r in range(4):
        a("v_and_b32 %s, 0xffff0000, v170" % v(SUM[1] + r))
    vc = []
    for m in range(2):
        G = GRM[m]
        vc.append("v_cndmask_b32 %s, %s, %s, s[74:75]" % (v(G), v(G), v(G + 1)))
        vc.append("v_cndmask_b32 %s, %s, %s, s[74:75]" % (v(G + 2), v(G + 2), v(G + 3)))
    def both(f):
        for m in range(2): vc.append(f(GRM[m], m))
    both(lambda G, m: "v_cndmask_b32 %s, %s, %s, s[72:73]" % (v(G), v(G), v(G + 2)))
    both(lambda G, m: "v_cndmask_b32 %s, 0, %s, s[76:77]" % (v(G), v(G)))
    for sw in ("v_permlane16_swap_b32", "v_permlane32_swap_b32"):
        both(lambda G, m: "v_mov_b32 %s, %s" % (v(G + 1), v(G)))
        both(lambda G, m: "%s %s, %s" % (sw, v(G), v(G + 1)))
        both(lambda G, m: "v_add_f32 %s, %s, %s" % (v(G), v(G), v(G + 1)))
    both(lambda G, m: "v_mul_f32 %s, 0x%x, %s" % (v(G), inv, v(G)))
    both(lambda G, m: "v_fma_f32 %s, -%s, %s, %s" % (v(G), v(MEAN[m]), v(MEAN[m]), v(G)))
    both(lambda G, m: "v_max_f32 %s, 0, %s" % (v(G), v(G)))
    for op in ("add", "sqrt", "rcp"):
        both(lambda G, m: "v_cvt_pk_bf16_f32 %s, %s, %s" % (v(G), v(G), v(G)))
        both(lambda G, m: "v_and_b32 %s, 0xffff0000, %s" % (v(G), v(G)))
        if op == "add": both(lambda G, m: "v_add_f32 %s, 0x3727c5ac, %s" % (v(G), v(G)))
        elif op == "sqrt": both(lambda G, m: "v_sqrt_f32 %s, %s" % (v(G), v(G)))
        else: both(lambda G, m: "v_rcp_f32 %s, %s" % (v(vR[m]), v(G)))
    both(lambda G, m: "v_mul_f32 %s, %s, %s" % (v(vR2[m]), v(vR[m]), v(vR[m])))
    frs = [(m, ks) for ks in range(18) for m in range(2)]
    def DT(n): return 176 + 8 * (n % 4)
    def app_m(n, h):
        m, ks = frs[n]
        a("v_mfma_f32_16x16x32_bf16 %s, %s, %s, %s" % (v(DT(n) + 4 * h, 4), v(SEL + 2 - 2 * h, 4), v(X(m, ks), 4), v(SUM[m], 4)))
    def app_c(n, h):
        m, ks = frs[n]
        for d in (2 * h, 2 * h + 1):
            a("v_cvt_pk_bf16_f32 %s, %s, %s" % (v(X(m, ks) + d), v(DT(n) + 2 * d), v(DT(n) + 2 * d + 1)))
    for n in range(3):
        app_m(n, 0); app_m(n, 1)
    a("s_nop 3")
    for n in range(36):
        for h in range(2):
            app_c(n, h)
            if n + 3 < 36:
                app_m(n + 3, h)
            if vc and n >= 10:
                a(vc.pop(0))
    assert not vc

    def rd(q, bf):
        ks, nt = q >> 2, q & 3
        off = ks * 1024 + (nt >> 1) * 512
        return ["ds_read_b64_tr_b16 %s, %s offset:%d" % (v(WF(q), 2), v(vTR[bf][nt & 1]), off),
                "ds_read_b64_tr_b16 %s, %s offset:%d" % (v(WF(q) + 2, 2), v(vTR[bf][nt & 1]), off + 256)]

    def epi_tail(B, typ):
        ops = []
        if typ == "u":
            for m, sE in ((0, sEP0), (1, sEP1)):
                for kk in range(2):
                    R = TL(B, 2 * kk, m)
                    for j in range(4):
                        ops.append("v_cvt_pk_bf16_f32 %s, %s, %s" % (v(R + j), v(R + 2 * j), v(R + 2 * j + 1)))
                    if kk == 0:
                        ops.append("buffer_store_dwordx4 %s, %s, %s, %s offen sc1" % (v(R, 4), v(vL16), s(rWS, 4), s(sE)))
                    else:
                        ops.append("s_add_u32 %s, %s, 5120" % (s(sE2), s(sE)))
                        ops.append("buffer_store_dwordx4 %s, %s, %s, %s offen sc1" % (v(R, 4), v(vL16), s(rWS, 4), s(sE2)))
        elif typ == "n":
            for m in range(2):
                for r in range(16):
                    R = TL(B, 0, m) + r
                    ops.append("v_mul_f32 %s, %s, %s" % (v(R), v(vR2[m]), v(R)))
        elif typ == "q":
            for nt in range(4):
                P, Q = TL(B, nt, 0), TL(B, nt, 1)
                for r in range(4):
                    ops.append("v_mul_f32 %s, %s, %s" % (v(P + r), v(vR[0]), v(P + r)))
                    ops.append("v_mul_f32 %s, %s, %s" % (v(Q + r), v(vR[1]), v(Q + r)))
                ops.append("v_cvt_pk_bf16_f32 %s, %s, %s" % (v(P), v(P), v(P + 1)))
                ops.append("v_cvt_pk_bf16_f32 %s, %s, %s" % (v(P + 1), v(P + 2), v(P + 3)))
                ops.append("v_cvt_pk_bf16_f32 %s, %s, %s" % (v(P + 2), v(Q), v(Q + 1)))
                ops.append("v_cvt_pk_bf16_f32 %s, %s, %s" % (v(P + 3), v(Q + 2), v(Q + 3)))
                ops.append("s_nop 1")
                ops.append("v_permlane16_swap_b32 %s, %s" % (v(P), v(P + 2)))
                ops.append("v_permlane16_swap_b32 %s, %s" % (v(P + 1), v(P + 3)))
                ops.append("buffer_store_dwordx4 %s, %s, %s, %s offen offset:%d sc1" % (v(P, 4), v(vL16), s(rWS, 4), s(sEP0), nt * 1024))
        return ops

    def body(bf, ptyp):
        last = ptyp == "l"
        A, B = ACC[bf], ACC[1 - bf]
        ep = epi_tail(B, "n" if last else ptyp)
        for q in range(72):
            ks, nt = q >> 2, q & 3
            nq = q + PD
            nbf = bf if nq < 72 else 1 - bf
            r2 = rd(nq % 72, nbf)
            extra = {0: [], 1: []}
            if last and nq >= 72:
                r2 = [None, None]
            if last and nq == 71:
                extra[1].append("ds_append %s offset:%d" % (v(vCV), C_CONS))
            if nq % 24 == 0 and not (last and nq > 24):
                a("s_barrier")
            if q % 2 == 0:
                a("s_waitcnt lgkmcnt(%d)" % (min(2 * PD - 4, 2 * (70 - q) + 1) if last and q >= 64 else 2 * PD - 4))
            for m in range(2):
                T = TL(A, nt, m)
                if ks == 0 and ptyp == "u":
                    U = TL(B, nt, m)
                    for r in (0, 2):
                        a("v_pk_mul_f32 %s, %s, %s" % (v(U + r, 2), v(T + r, 2), v(U + r, 2)))
                c = "0" if ks == 0 else v(T, 4)
                a("v_mfma_f32_16x16x32_bf16 %s, %s, %s, %s" % (v(T, 4), v(WF(q), 4), v(X(m, ks), 4), c))
                if opt.get("x_halfrd", 0) and (q // opt["x_halfrd"]) % 2 == 1 and not last: r2[m] = None
                if r2[m]: a(r2[m])
                if extra[m]:
                    for l in extra[m]: a(l)
                elif q >= 6 and ep and not (m == 1 and q % 2 == 1):
                    a(ep.pop(0))
        assert not ep

    st.stamp()
    a("s_barrier")
    st.stamp()
    for q in range(PD):
        for l in rd(q, 0):
            a(l)
    a("s_mov_b32 %s, 0" % s(sI))
    a("s_mov_b32 m0, 0")
    order = [(0, "n"), (1, "u"), (1, "q"), (0, "q"), (0, "u"), (1, "n")]
    def after(bf, typ):
        st.stamp()
        if st.on: a("s_mov_b32 m0, 0")
        a("s_add_u32 %s, %s, 1" % (s(sI), s(sI)))
        a("s_cmp_le_u32 %s, %s" % (s(sI), s(sNQ)))
        a("s_cbranch_scc1 L_wasq%d" % bf)
        if typ == "q":
            a("s_waitcnt vmcnt(0)")
        a("s_cmp_eq_u32 %s, %s" % (s(sI), s(sNEED)))
        a("s_cbranch_scc1 L_b%dl" % (1 - bf))
        a("s_sub_u32 %s, %s, %s" % (s(sT0), s(sI), s(sNQ)))
        a("s_bitcmp1_b32 %s, 0" % s(sT0))
        a("s_cbranch_scc1 L_b%dn" % (1 - bf))
        a("s_add_u32 %s, %s, 1" % (s(sT0), s(sI)))
        a("s_cmp_eq_u32 %s, %s" % (s(sT0), s(sNEED)))
        a("s_cbranch_scc1 L_early%d" % bf)
        a("s_mov_b32 %s, %s" % (s(sEP0), s(sHB0)))
        a("s_mov_b32 %s, %s" % (s(sEP1), s(sHB1)))
        a("s_add_u32 %s, %s, 10240" % (s(sHB0), s(sHB0)))
        a("s_add_u32 %s, %s, 10240" % (s(sHB1), s(sHB1)))
    a("s_sub_u32 %s, %s, 1" % (s(sNEED), s(sNCH)))
    for idx, (bf, typ) in enumerate(order):
        a.label("L_b%d%s" % (bf, typ))
        body(bf, typ)
        after(bf, typ)
        if not (idx + 1 < len(order) and order[idx + 1] == (1 - bf, "u")):
            a("s_branch L_b%du" % (1 - bf))
    sQA, sQZ = 72, 73
    vG2PO, vG2PV = 2, 3
    for bf in range(2):
        a.label("L_wasq%d" % bf)
        a("s_mov_b32 %s, %s" % (s(sEP0), s(sQB)))
        a("s_add_u32 %s, %s, 4096" % (s(sQB), s(sQB)))
        a("s_branch L_b%dq" % (1 - bf))
        a.label("L_early%d" % bf)
        a("s_waitcnt vmcnt(0)")
        a("s_add_u32 %s, %s, %s" % (s(sEP0), s(sHB0), s(sJMP)))
        a("s_add_u32 %s, %s, %s" % (s(sEP1), s(sHB1), s(sJMP)))
        a("s_add_u32 %s, %s, 10240" % (s(sHB0), s(sEP0)))
        a("s_add_u32 %s, %s, 10240" % (s(sHB1), s(sEP1)))
        a("s_branch L_b%du" % (1 - bf))
    for bf in (1, 0):
        a.label("L_b%dl" % bf)
        body(bf, "l")
        st.stamp()
        tag_issue()
        a("s_mov_b32 %s, %s" % (s(sEP0), s(sHB0)))
        a("s_mov_b32 %s, %s" % (s(sEP1), s(sHB1)))
        tile_of()
        rb_lanes(vG2PO, vG2PV, F_E)
        poll(vG2PV, vG2PO)
        a("s_lshr_b32 %s, %s, 3" % (s(sQA), s(sT2)))
        a("s_lshr_b32 %s, %s, 3" % (s(sQZ), s(sT3)))
        for r in range(0, 32, 2):
            a("v_pk_mul_f32 %s, %s, %s" % (v(ACC[bf] + r, 2), v(ACC[1 - bf] + r, 2), v(ACC[bf] + r, 2)))
        for l in epi_tail(ACC[bf], "u"):
            a(l)
        a("s_mov_b32 %s, %d" % (s(sXL), LB0 + bf * BUF))
        if bf == 1:
            a("s_branch L_g2")

    a.label("L_g2")
    st.stamp()
    LEAD = opt.get("k2_lead", 1)
    P = 3
    UNR = 6
    sHB, sWB, sHO, sWOFF, sRING, sCNT, sPT, sC3, sWH = 82, 83, 84, 85, 86, 87, 88, 89, 90
    vDO = [4, 5, 7, 8]
    vG2TR = [9, 10]
    vH, vH3, vH4 = 6, 224, 225
    vAPO = 226
    vLP, vG1, vI4 = 227, 228, 229
    vLA, vGO = 230, 231
    T = [232, 233, 234, 235]
    XR = 236
    ACC0, HF0, WG0 = 16, 96, 176
    def GA(rt, nt): return ACC0 + rt * 16 + nt * 4
    def HF(i, rt): return HF0 + (i % P) * 20 + rt * 4
    def GW(i, nt): return WG0 + (i & 1) * 16 + nt * 4
    def signal_done():
        l = a.newlabel("sig")
        a("v_mov_b32 %s, %d" % (v(T[0]), C_L))
        a("v_mov_b32 %s, 1" % v(T[1]))
        a("v_mov_b32 %s, %s" % (v(T[3]), s(sFO)))
        a("s_mov_b64 exec, 1")
        a("ds_add_rtn_u32 %s, %s, %s" % (v(T[2]), v(T[0]), v(T[1])))
        a("v_mov_b32 %s, %s" % (v(vPV), s(sTAG)))
        a("s_waitcnt lgkmcnt(0)")
        a("v_readfirstlane_b32 %s, %s" % (s(sT0), v(T[2])))
        a("s_cmp_lg_u32 %s, 3" % s(sT0))
        a("s_cbranch_scc1 %s" % l)
        a("s_mov_b32 %s, 4096" % s(sT0))
        a("buffer_store_dword %s, %s, %s, %s offen sc1" % (v(vPV), v(T[3]), s(rWS, 4), s(sT0)))
        a.label(l)
        a("s_mov_b64 exec, -1")
    a("s_waitcnt lgkmcnt(0)")
    tag_check("L_tg2")
    a("s_cmp_lt_u32 %s, 2" % s(sXCD))
    a("s_cselect_b32 %s, 30, 29" % s(sT1))
    a("s_cmp_lt_u32 %s, %s" % (s(sSLOT), s(sT1)))
    a("s_cbranch_scc1 L_g2a")
    a("s_waitcnt vmcnt(0)")
    signal_done()
    a("s_branch L_fin")
    a.label("L_g2a")
    a("v_mov_b32 %s, %s" % (v(vAPO), s(sQA)))
    a("s_mov_b32 exec_lo, 0")
    a("v_mov_b32 %s, %s" % (v(vAPO), s(sQZ)))
    a("s_mov_b64 exec, -1")
    a("v_and_b32 %s, 31, %s" % (v(T[0]), v(vLANE)))
    a("v_lshl_add_u32 %s, %s, 6, %s" % (v(vAPO), v(vAPO), v(T[0])))
    a("v_lshlrev_b32 %s, 2, %s" % (v(vAPO), v(vAPO)))
    a("v_add_u32 %s, %d, %s" % (v(vAPO), F_A, v(vAPO)))
    srd(a, rW, sWD, 4608 * 576 * 2)
    srd(a, rOUT, sOUT, 2048 * 576 * 2)
    a("s_mul_i32 %s, %s, %d" % (s(sHB), s(sRT), NKS))
    a("s_add_u32 %s, %s, %s" % (s(sHB), s(sHB), s(sWAVE)))
    a("s_mul_i32 %s, %s, 5120" % (s(sHB), s(sHB)))
    if H_BASE: a("s_add_u32 %s, %s, %d" % (s(sHB), s(sHB), H_BASE))
    a("s_mul_i32 %s, %s, %d" % (s(sWOFF), s(sWAVE), 32 * 1152))
    a("s_lshl_b32 %s, %s, 7" % (s(sT0), s(sCT)))
    a("s_add_u32 %s, %s, %s" % (s(sWOFF), s(sWOFF), s(sT0)))
    a("s_mov_b32 %s, %s" % (s(sHO), s(sHB)))
    a("s_mul_i32 %s, %s, %d" % (s(sRING), s(sWAVE), QTR))
    a("s_add_u32 %s, %s, %s" % (s(sRING), s(sRING), s(sXL)))
    a("s_cmp_eq_u32 %s, %d" % (s(sRT), NRT - 1))
    a("s_cselect_b32 %s, 0x40000000, 0" % s(sT0))
    a("v_add_u32 %s, %s, %s" % (v(vH3), s(sT0), v(vH)))
    a("v_add_u32 %s, 4096, %s" % (v(vH4), v(vH3)))
    a("v_bfe_u32 %s, %s, 4, 1" % (v(vG1), v(vLANE)))
    a("v_bfe_u32 %s, %s, 2, 2" % (v(vI4), v(vLANE)))
    a("v_lshlrev_b32 %s, 1, %s" % (v(T[1]), v(vG1)))
    a("v_and_b32 %s, 3, %s" % (v(T[2]), v(vLANE)))
    a("v_xor_b32 %s, %s, %s" % (v(T[1]), v(T[1]), v(T[2])))
    a("v_lshlrev_b32 %s, 4, %s" % (v(T[1]), v(T[1])))
    a("v_lshrrev_b32 %s, 5, %s" % (v(T[3]), v(vLANE)))
    a("v_lshl_add_u32 %s, %s, 6, %s" % (v(vLP), v(T[3]), v(T[1])))
    a("v_bfe_u32 %s, %s, 2, 3" % (v(T[0]), v(vLANE)))
    a("v_mul_u32_u24 %s, 1152, %s" % (v(T[1]), v(T[0])))
    a("v_add_u32 %s, %s, %s" % (v(vDO[0]), v(T[1]), v(vLP)))
    for b in range(1, 4):
        a("v_add_u32 %s, %d, %s" % (v(vDO[b]), b * 9216, v(vDO[0])))
    a("v_lshlrev_b32 %s, 10, %s" % (v(T[3]), v(T[3])))
    a("v_lshl_add_u32 %s, %s, 6, %s" % (v(T[3]), v(T[0]), v(T[3])))
    a("v_lshl_add_u32 %s, %s, 5, %s" % (v(T[3]), v(vG1), v(T[3])))
    a("v_lshl_add_u32 %s, %s, 3, %s" % (v(T[3]), v(T[2]), v(T[3])))
    a("v_add_u32 %s, %s, %s" % (v(vG2TR[0]), s(sRING), v(T[3])))
    a("v_xor_b32 %s, 32, %s" % (v(T[3]), v(T[3])))
    a("v_add_u32 %s, %s, %s" % (v(vG2TR[1]), s(sRING), v(T[3])))
    a("v_mov_b32 %s, %d" % (v(vPA), C_CONS))
    a("s_movk_i32 %s, 256" % s(sT0))
    lds_wait("L_w1", vPA, vPV, s(sT0), 0)
    a("s_waitcnt vmcnt(4)")
    flag_wait("L_fe", vG2PV, vG2PO)
    a("v_add_u32 %s, %d, %s" % (v(vG2PO), F_L - F_E, v(vG2PO)))
    st.stamp()

    sHOp = [sHO, 74]
    def m0set(i, b):
        return "s_add_u32 m0, %s, %d" % (s(sRING), (i % P) * 4096 + b * 1024)
    def dma(b):
        return "buffer_load_dwordx4 %s, %s, %s offen lds" % (v(vDO[b]), s(rW, 4), s(sWOFF))
    def hld(i, rt, par):
        return "buffer_load_dwordx4 %s, %s, %s, %s offen offset:%d sc1" % (v(HF(i, rt), 4), v(vH4 if rt == 4 else vH3 if rt == 3 else vH), s(rWS, 4), s(sHOp[par]), (rt & 3) * 1024)
    def trd(i, nt, hf):
        return "ds_read_b64_tr_b16 %s, %s offset:%d" % (v(GW(i, nt) + 2 * hf, 2), v(vG2TR[nt & 1]), (i % P) * 4096 + (nt >> 1) * 512 + hf * 2048)
    def look(par):
        if opt.get("x_wsmall", 0) or opt.get("x_hsmall", 0):
            sg = 1 if par else -1
            return ["s_add_u32 %s, %s, %d" % (s(sWOFF), s(sWOFF), (sg if opt.get("x_wsmall", 0) else 1) * 4 * 32 * 1152),
                    "s_add_u32 %s, %s, %d" % (s(sHOp[par]), s(sHOp[1 - par]), (sg if opt.get("x_hsmall", 0) else 1) * 4 * 5120)]
        return ["s_add_u32 %s, %s, %d" % (s(sWOFF), s(sWOFF), 4 * 32 * 1152),
                "s_add_u32 %s, %s, %d" % (s(sHOp[par]), s(sHOp[1 - par]), 4 * 5120)]
    def gather(j, par):
        ops = ["s_add_u32 %s, %s, %d" % (s(sHOp[par]), s(sHB), (36 + j) * 4 * 5120),
               "s_lshl_b32 %s, %s, 7" % (s(sWOFF), s(sCT)),
               "s_lshl_b32 %s, %s, 2" % (s(sT0), s(sWAVE))]
        for b in range(2):
            U, Hh, Wr = T[0], T[1], T[2]
            ops += ["s_add_u32 %s, %s, %d" % (s(sT1), s(sT0), 16 * j + 2 * b),
                    "v_add_u32 %s, %s, %s" % (v(U), s(sT1), v(vG1)),
                    "v_mul_u32_u24 %s, 171, %s" % (v(Hh), v(U)),
                    "v_lshrrev_b32 %s, 9, %s" % (v(Hh), v(Hh)),
                    "v_mul_u32_u24 %s, 3, %s" % (v(Wr), v(Hh)),
                    "v_sub_u32 %s, %s, %s" % (v(U), v(U), v(Wr)),
                    "v_mul_u32_u24 %s, %s, %s" % (v(U), v(U), v(U)),
                    "v_mul_u32_u24 %s, 18, %s" % (v(Wr), v(Hh)),
                    "v_and_b32 %s, -4, %s" % (v(Wr), v(Wr)),
                    "v_lshl_add_u32 %s, %s, 2, %s" % (v(Wr), v(U), v(Wr)),
                    "v_add_u32 %s, %s, %s" % (v(Wr), v(Wr), v(vI4)),
                    "v_mul_u32_u24 %s, 1152, %s" % (v(Wr), v(Wr)),
                    "v_add_u32 %s, %s, %s" % (v(vDO[b]), v(Wr), v(vLP)),
                    "v_add_u32 %s, %d, %s" % (v(vDO[b + 2]), 8 * 1152, v(vDO[b]))]
        return ops
    def resid():
        return ["s_mul_i32 %s, %s, %d" % (s(sT2), s(sRT), 80 * 1152),
                "s_lshl_b32 %s, %s, 7" % (s(sT0), s(sCT)),
                "s_add_u32 %s, %s, %s" % (s(sT2), s(sT2), s(sT0)),
                "s_lshl_b32 %s, %s, 3" % (s(sT3), s(sWAVE)),
                "v_lshrrev_b32 %s, 3, %s" % (v(T[0]), v(vLANE)),
                "v_add_u32 %s, %s, %s" % (v(T[0]), s(sT3), v(T[0])),
                "v_and_b32 %s, 7, %s" % (v(T[1]), v(vLANE)),
                "v_mul_u32_u24 %s, 272, %s" % (v(T[2]), v(T[0])),
                "v_lshl_add_u32 %s, %s, 5, %s" % (v(vLA), v(T[1]), v(T[2])),
                "v_mul_u32_u24 %s, 1152, %s" % (v(T[2]), v(T[0])),
                "v_lshl_add_u32 %s, %s, 4, %s" % (v(T[2]), v(T[1]), v(T[2])),
                "v_add_u32 %s, %s, %s" % (v(vGO), s(sT2), v(T[2])),
                "s_mov_b32 %s, %d" % (s(sT0), 32 * 1152),
                "s_mov_b32 %s, %d" % (s(sT1), 64 * 1152),
                "buffer_load_dwordx4 %s, %s, %s, 0 offen" % (v(XR, 4), v(vGO), s(rX, 4)),
                "buffer_load_dwordx4 %s, %s, %s, %s offen" % (v(XR + 4, 4), v(vGO), s(rX, 4), s(sT0)),
                "buffer_load_dwordx4 %s, %s, %s, %s offen" % (v(XR + 8, 4), v(vGO), s(rX, 4), s(sT1))]
    for i in range(P):
        for b in range(4):
            a(m0set(i, b)); a("s_nop 0"); a(dma(b))
        for rt in range(5):
            a(hld(i, rt, 0))
        a("s_add_u32 %s, %s, %d" % (s(sWOFF), s(sWOFF), 4 * 32 * 1152))
        a("s_add_u32 %s, %s, %d" % (s(sHO), s(sHO), 4 * 5120))
    for r in range(80):
        a("v_mov_b32 %s, 0" % v(ACC0 + r))
    a("s_waitcnt vmcnt(%d)" % (9 * P - 4))
    for nt in range(4):
        for hf in range(2):
            a(trd(0, nt, hf))
    signal_done()
    st.stamp()
    VM = 5 + 9 * (P - 2)
    def iteration(i, pf, vm, nxt, reads=True):
        par = i & 1
        a("s_waitcnt vmcnt(%d) lgkmcnt(0)" % vm)
        rds = [trd(i + 1, nt, hf) for nt in range(4) for hf in range(2)] if reads else []
        nxt = list(nxt)
        per = (len(nxt) + 11) // 12
        for rt in range(5):
            for nt in range(4):
                if rt == 0 and pf: a(m0set(i, nt))
                a("v_mfma_f32_16x16x32_bf16 %s, %s, %s, %s" % (v(GA(rt, nt), 4), v(GW(i, nt), 4), v(HF(i, rt), 4), v(GA(rt, nt), 4)))
                if rt == 0 and pf: a(dma(nt))
                if rt >= 1 and rds:
                    a(rds.pop(0))
                if rt >= 1:
                    for k in range(per):
                        if nxt: a(nxt.pop(0))
            if pf: a(hld(i, rt, par))
        assert not nxt and not rds
    a("s_mov_b32 %s, 0" % s(sCNT))
    a.label("L_g2loop")
    st.stamp()
    for i in range(UNR):
        if i == 3:
            a("s_cmp_eq_u32 %s, 1" % s(sCNT))
            a("s_cbranch_scc1 L_hk_pl")
            a("s_cmp_eq_u32 %s, 2" % s(sCNT))
            a("s_cbranch_scc1 L_hk_cl")
            a("s_cmp_eq_u32 %s, 4" % s(sCNT))
            a("s_cbranch_scc1 L_hk_pa")
            a.label("L_hk_r")
        iteration(i, True, VM, look((i + 1) & 1))
    a("s_add_u32 %s, %s, 1" % (s(sCNT), s(sCNT)))
    a("s_cmp_lg_u32 %s, 5" % s(sCNT))
    a("s_cbranch_scc1 L_g2loop")
    st.stamp()
    for i in range(30, 42):
        t_next = i + 1 + P
        if t_next < 36: nxt = look((i + 1) & 1)
        elif t_next < 42: nxt = gather(t_next - 36, (i + 1) & 1)
        elif t_next == 42: nxt = []
        elif t_next == 43: nxt = resid()
        else: nxt = []
        if i + P == 36:
            flag_wait("L_fa", vG2PV, vAPO)
            srd(a, rW, sWO, 576 * 576 * 2)
            st.stamp()
        k = i + P - 42
        vm = VM if k <= 0 else (5 + 9 * (P - 2 - k) + 3 if k < P - 1 else 3)
        iteration(i, i + P < 42, vm, nxt, reads=i < 41)
    st.stamp()
    a("s_mul_i32 %s, %s, %d" % (s(sT2), s(sWAVE), PART))
    a("s_add_u32 %s, %s, %d" % (s(sT2), s(sT2), LB0))
    a("v_add_u32 %s, %d, %s" % (v(vLA), LB0, v(vLA)))
    a("v_and_b32 %s, 15, %s" % (v(T[0]), v(vLANE)))
    a("v_mul_u32_u24 %s, 272, %s" % (v(T[0]), v(T[0])))
    a("v_lshrrev_b32 %s, 4, %s" % (v(T[1]), v(vLANE)))
    a("v_lshl_add_u32 %s, %s, 4, %s" % (v(T[0]), v(T[1]), v(T[0])))
    a("v_add_u32 %s, %s, %s" % (v(T[0]), s(sT2), v(T[0])))
    a("v_add_u32 %s, %d, %s" % (v(T[2]), 32 * 272, v(vLA)))
    a("v_add_u32 %s, %d, %s" % (v(T[3]), 64 * 272, v(vLA)))
    a("s_waitcnt vmcnt(0) lgkmcnt(0)")
    a("s_barrier")
    for rt in range(5):
        for nt in range(4):
            a("ds_write_b128 %s, %s offset:%d" % (v(T[0]), v(GA(rt, nt), 4), rt * 16 * 272 + nt * 64))
    a("s_mov_b32 %s, %d" % (s(sT0), 32 * 1152))
    a("s_mov_b32 %s, %d" % (s(sT1), 64 * 1152))
    a("s_waitcnt lgkmcnt(0)")
    a("s_barrier")
    st.stamp()
    def red_rd(r):
        B = 96 + 32 * r
        la = (vLA, T[2], T[3])[r]
        for w in range(4):
            a("ds_read_b128 %s, %s offset:%d" % (v(B + 8 * w, 4), v(la), w * PART))
            a("ds_read_b128 %s, %s offset:%d" % (v(B + 8 * w + 4, 4), v(la), w * PART + 16))
    def red_fin(r, lg):
        B = 96 + 32 * r
        xr = XR + 4 * r
        U = 16
        for d in range(4):
            a("v_lshlrev_b32 %s, 16, %s" % (v(U + 2 * d), v(xr + d)))
            a("v_and_b32 %s, 0xffff0000, %s" % (v(U + 2 * d + 1), v(xr + d)))
        a("s_waitcnt lgkmcnt(%d)" % lg)
        for e in range(0, 8, 2):
            a("v_pk_add_f32 %s, %s, %s" % (v(B + e, 2), v(B + e, 2), v(B + 8 + e, 2)))
            a("v_pk_add_f32 %s, %s, %s" % (v(B + 16 + e, 2), v(B + 16 + e, 2), v(B + 24 + e, 2)))
        for e in range(0, 8, 2):
            a("v_pk_add_f32 %s, %s, %s" % (v(B + e, 2), v(B + e, 2), v(U + e, 2)))
        for e in range(0, 8, 2):
            a("v_pk_add_f32 %s, %s, %s" % (v(B + e, 2), v(B + e, 2), v(B + 16 + e, 2)))
        for d in range(4):
            a("v_cvt_pk_bf16_f32 %s, %s, %s" % (v(B + d), v(B + 2 * d), v(B + 2 * d + 1)))
        a("buffer_store_dwordx4 %s, %s, %s, %s offen" % (v(B, 4), v(vGO), s(rOUT, 4), ("0", s(sT0), s(sT1))[r]))
    red_rd(0); red_rd(1)
    red_fin(0, 8)
    a("s_cmp_ge_u32 %s, 2" % s(sWAVE))
    a("s_cbranch_scc1 L_red2")
    red_rd(2)
    red_fin(1, 8)
    red_fin(2, 0)
    a("s_branch L_fin")
    a.label("L_red2")
    red_fin(1, 0)
    a("s_branch L_fin")

    a.label("L_hk_pl")
    poll(vG2PV, vG2PO)
    a("s_branch L_hk_r")
    a.label("L_hk_cl")
    flag_wait("L_fl", vG2PV, vG2PO)
    a("s_branch L_hk_r")
    a.label("L_hk_pa")
    poll(vG2PV, vAPO)
    a("s_branch L_hk_r")

    sIC, sIG, sLB, sLBEG, sG, sO0, sKB, sP32, sCOL, sFREE = 59, 61, 62, 63, 64, 65, 66, 67, 68, 69
    vDG, vD, vCP, vCT, vPW, vPX, vTQ, vTG = 2, 3, 4, 5, 6, 7, 8, 9
    sTC, sTN = 75, 76
    sTI, sTR, sTB, sTP, sTO = 82, 83, 84, 86, 87
    a.label("L_stouch")
    a("s_cmp_ge_u32 %s, %s" % (s(sTC), s(sNCH)))
    a("s_cbranch_scc1 L_stouch_r")
    a("s_cmp_lg_u32 %s, 0" % s(sTI))
    a("s_cbranch_scc1 L_stouch2")
    a("s_cmp_lt_u32 %s, %s" % (s(sTC), s(sNQ)))
    a("s_cbranch_scc1 L_stouch_q")
    a("s_sub_u32 %s, %s, %s" % (s(sT0), s(sTC), s(sNQ)))
    a("s_lshr_b32 %s, %s, 1" % (s(sT1), s(sT0)))
    pair_of(sT1)
    a("s_bitcmp1_b32 %s, 0" % s(sT0))
    a("s_cselect_b32 %s, %s, %s" % (s(sTB), s(sWU), s(sWG)))
    a("s_cselect_b32 %s, %s, %s" % (s(sTB + 1), s(sWU + 1), s(sWG + 1)))
    a("s_movk_i32 %s, 9216" % s(sTP))
    a("s_branch L_stouch1")
    a.label("L_stouch_q")
    a("s_add_u32 %s, %s, %s" % (s(sT1), s(sTC), s(sQ0)))
    a.label("L_stouch1")
    a("s_lshl_b32 %s, %s, 7" % (s(sT1), s(sT1)))
    a("s_mul_i32 %s, %s, %s" % (s(sTO), s(sTR), s(sTP)))
    a("s_add_u32 %s, %s, %s" % (s(sTO), s(sTO), s(sT1)))
    a("s_add_u32 %s, %s, 60" % (s(sTO), s(sTO)))
    a.label("L_stouch2")
    for i in range(3):
        a("s_load_dwordx2 s[90:91], %s, %s" % (s(sTB, 2), s(sTO)))
        a("s_add_u32 %s, %s, %s" % (s(sTO), s(sTO), s(sTP)))
    a("s_add_u32 %s, %s, 1" % (s(sTI), s(sTI)))
    a("s_cmp_eq_u32 %s, 3" % s(sTI))
    a("s_cselect_b32 %s, 0, %s" % (s(sTI), s(sTI)))
    a("s_addc_u32 %s, %s, 0" % (s(sTC), s(sTC)))
    a.label("L_stouch_r")
    a("s_setpc_b64 %s" % s(sRET, 2))
    a.label("L_touch")
    a("s_cmp_ge_u32 %s, %s" % (s(sTC), s(sNCH)))
    a("s_cbranch_scc1 L_touch_r")
    a("s_mov_b64 exec, 0x1ff")
    a("s_cmp_lt_u32 %s, %s" % (s(sTC), s(sNQ)))
    a("s_cbranch_scc1 L_touch_q")
    a("s_sub_u32 %s, %s, %s" % (s(sT0), s(sTC), s(sNQ)))
    a("s_lshr_b32 %s, %s, 1" % (s(sT1), s(sT0)))
    pair_of(sT1)
    a("s_lshl_b32 %s, %s, 7" % (s(sT1), s(sT1)))
    a("s_bitcmp1_b32 %s, 0" % s(sT0))
    a("s_cselect_b32 %s, %s, %s" % (s(rX), s(sWU), s(sWG)))
    a("s_cselect_b32 %s, %s, %s" % (s(rX + 1), s(sWU + 1), s(sWG + 1)))
    a("s_mov_b32 %s, %d" % (s(rX + 2), 576 * 4608 * 2))
    a("buffer_load_dword v20, %s, %s, %s offen" % (v(vTG), s(rX, 4), s(sT1)))
    a("s_branch L_touch_e")
    a.label("L_touch_q")
    a("s_add_u32 %s, %s, %s" % (s(sT1), s(sTC), s(sQ0)))
    a("s_lshl_b32 %s, %s, 7" % (s(sT1), s(sT1)))
    a("buffer_load_dword v20, %s, %s, %s offen" % (v(vTQ), s(rX, 4), s(sT1)))
    a.label("L_touch_e")
    a("s_mov_b64 exec, -1")
    a("s_add_u32 %s, %s, 1" % (s(sTC), s(sTC)))
    a.label("L_touch_r")
    a("s_setpc_b64 %s" % s(sRET, 2))
    a.label("L_issue")
    a("s_cmp_lg_u32 %s, 0" % s(sIG))
    a("s_cbranch_scc1 L_issue2")
    a("s_bitcmp1_b32 %s, 0" % s(sIC))
    a("s_cselect_b32 %s, %d, 0" % (s(sLB), BUF))
    a("s_add_u32 %s, %s, %s" % (s(sLB), s(sLB), s(sLBEG)))
    a("s_cmp_lt_u32 %s, %s" % (s(sIC), s(sNQ)))
    a("s_cbranch_scc1 L_issueq")
    a("s_sub_u32 %s, %s, %s" % (s(sT0), s(sIC), s(sNQ)))
    a("s_lshr_b32 %s, %s, 1" % (s(sT1), s(sT0)))
    pair_of(sT1)
    a("s_lshl_b32 %s, %s, 7" % (s(sCOL), s(sT1)))
    a("s_bitcmp1_b32 %s, 0" % s(sT0))
    a("s_cselect_b32 %s, %s, %s" % (s(rW), s(sWU), s(sWG)))
    a("s_cselect_b32 %s, %s, %s" % (s(rW + 1), s(sWU + 1), s(sWG + 1)))
    a("s_mov_b32 %s, %d" % (s(rW + 2), 576 * 4608 * 2))
    a("s_mov_b32 %s, %d" % (s(sP32), 32 * 9216))
    a("v_mov_b32 %s, %s" % (v(vD), v(vDG)))
    a("s_branch L_issue2")
    a.label("L_issueq")
    a("s_add_u32 %s, %s, %s" % (s(sT1), s(sIC), s(sQ0)))
    a("s_lshl_b32 %s, %s, 7" % (s(sCOL), s(sT1)))
    a.label("L_issue2")
    if opt.get("x_nodma", 0):
        a("s_cmp_ge_u32 %s, 6" % s(sG))
        a("s_cbranch_scc1 L_issue3")
    for kb in range(3):
        a("s_mul_i32 %s, %s, %s" % (s(sO0), s(sKB), s(sP32)))
        a("s_add_u32 %s, %s, %s" % (s(sO0), s(sO0), s(sCOL)))
        a("s_add_u32 m0, %s, %d" % (s(sLB), kb * 2048))
        a("s_add_u32 %s, %s, 2" % (s(sKB), s(sKB)))
        a("buffer_load_dwordx4 %s, %s, %s offen lds" % (v(vD), s(rW, 4), s(sO0)))
        a("s_add_u32 m0, %s, %d" % (s(sLB), kb * 2048 + 1024))
        a("s_add_u32 %s, %s, %s" % (s(sO0), s(sO0), s(sP32)))
        a("buffer_load_dwordx4 %s, %s, %s offen lds" % (v(vD), s(rW, 4), s(sO0)))
        a("s_cmp_eq_u32 %s, 18" % s(sKB))
        a("s_cselect_b32 %s, 0, %s" % (s(sKB), s(sKB)))
    a.label("L_issue3")
    a("s_add_u32 %s, %s, 6144" % (s(sLB), s(sLB)))
    a("s_add_u32 %s, %s, 1" % (s(sIG), s(sIG)))
    a("s_cmp_eq_u32 %s, 3" % s(sIG))
    a("s_cselect_b32 %s, 0, %s" % (s(sIG), s(sIG)))
    a("s_addc_u32 %s, %s, 0" % (s(sIC), s(sIC)))
    a("s_add_u32 %s, %s, 1" % (s(sG), s(sG)))
    a("s_setpc_b64 %s" % s(sRET, 2))

    a.label("L_loader")
    a("s_setprio 3")
    worklist()
    a("s_lshl_b32 %s, %s, 2" % (s(sT0), s(sRB)))
    a("s_add_u32 %s, %s, %s" % (s(sT0), s(sT0), s(sW4)))
    a("s_mul_i32 %s, %s, 9" % (s(sT0), s(sT0)))
    a("s_mov_b32 %s, %s" % (s(sTR), s(sT0)))
    a("s_mov_b32 %s, 0" % s(sTI))
    a("s_movk_i32 %s, 3456" % s(sTP))
    a("v_add_u32 %s, %s, %s" % (v(vTG), s(sT0), v(vLANE)))
    a("v_mul_u32_u24 %s, 3456, %s" % (v(vTQ), v(vTG)))
    a("v_mul_u32_u24 %s, 9216, %s" % (v(vTG), v(vTG)))
    a("s_mov_b32 %s, 0" % s(sTC))
    a("s_waitcnt lgkmcnt(0)")
    srd(a, rW, sWQ, 576 * 1728 * 2)
    srd(a, rX, sWQ, 576 * 1728 * 2)
    a("s_mov_b32 %s, %s" % (s(sTB), s(sWQ)))
    a("s_mov_b32 %s, %s" % (s(sTB + 1), s(sWQ + 1)))
    for i in range(opt.get("k1_t0", 2)):
        a("s_call_b64 %s, L_touch" % s(sRET, 2))
    if opt.get("tlb", 1):
        a("s_mov_b32 s88, %s" % s(sWS)); a("s_mov_b32 s89, %s" % s(sWS + 1))
        a("s_mov_b32 %s, %s" % (s(sT0), s(sSLOT)))
        for first, ptr in ((15, sWG), (18, sWU), (21, sWD), (24, sOUT), (26, sWO)):
            a("s_sub_u32 %s, %s, %d" % (s(sT1), s(sSLOT), first))
            a("s_cselect_b32 %s, %s, %s" % (s(sT0), s(sT0), s(sT1)))
            a("s_cselect_b32 s88, s88, %s" % s(ptr))
            a("s_cselect_b32 s89, s89, %s" % s(ptr + 1))
        a("s_cmp_ge_u32 %s, 26" % s(sSLOT))
        a("s_cselect_b32 %s, 0, %s" % (s(sT0), s(sT0)))
        a("s_lshl_b32 %s, %s, 21" % (s(sT0), s(sT0)))
        a("s_cmp_lg_u32 %s, 3" % s(sW4))
        a("s_cbranch_scc1 L_notlb")
        a("s_load_dword s90, s[88:89], %s" % s(sT0))
        a.label("L_notlb")
    a("s_lshl_b32 %s, s2, 2" % s(sT0))
    a("s_add_u32 %s, %s, %s" % (s(sT0), s(sT0), s(sW4)))
    a("s_cmp_lg_u32 %s, 0" % s(sT0))
    a("s_cbranch_scc1 L_notag")
    a("v_mov_b32 %s, 0" % v(vT[2]))
    a("s_or_b32 s88, s92, 1")
    a("v_mov_b32 %s, s88" % v(vT[3]))
    a("s_mov_b64 exec, 1")
    a("global_store_dword %s, %s, %s sc1" % (v(vT[2]), v(vT[3]), s(sDBG, 2)))
    a("s_mov_b64 exec, -1")
    a.label("L_notag")
    a("s_setprio %d" % opt.get("ld_prio", 0))
    a("v_mov_b32 %s, 0" % v(vT[2]))
    a("v_lshlrev_b32 %s, 2, %s" % (v(vT[3]), v(vLANE)))
    a("ds_write_b32 %s, %s offset:%d" % (v(vT[3]), v(vT[2]), CNT))
    srd(a, rWS, sWS, WS_BYTES)
    a("v_bfe_u32 %s, %s, 2, 3" % (v(vT[5]), v(vLANE)))
    a("s_lshl_b32 %s, %s, 3" % (s(sT0), s(sW4)))
    a("v_add_u32 %s, %s, %s" % (v(vT[5]), s(sT0), v(vT[5])))
    a("s_and_b32 %s, %s, 1" % (s(sT0), s(sW4)))
    a("s_lshl_b32 %s, %s, 1" % (s(sT0), s(sT0)))
    a("v_and_b32 %s, 3, %s" % (v(vT[6]), v(vLANE)))
    a("v_xor_b32 %s, %s, %s" % (v(vT[6]), s(sT0), v(vT[6])))
    a("v_lshlrev_b32 %s, 4, %s" % (v(vT[6]), v(vT[6])))
    a("v_lshrrev_b32 %s, 5, %s" % (v(vT[7]), v(vLANE)))
    a("v_lshl_add_u32 %s, %s, 6, %s" % (v(vT[6]), v(vT[7]), v(vT[6])))
    a("v_mul_u32_u24 %s, 3456, %s" % (v(vD), v(vT[5])))
    a("v_add_u32 %s, %s, %s" % (v(vD), v(vD), v(vT[6])))
    a("v_mul_u32_u24 %s, 9216, %s" % (v(vDG), v(vT[5])))
    a("v_add_u32 %s, %s, %s" % (v(vDG), v(vDG), v(vT[6])))
    a("s_mov_b32 %s, %d" % (s(sP32), 32 * 3456))
    a("s_mov_b32 %s, 0" % s(sIC))
    a("s_mov_b32 %s, 0" % s(sIG))
    a("s_mov_b32 %s, 0" % s(sG))
    a("s_lshl_b32 %s, %s, 1" % (s(sKB), s(sROT)))
    a("s_mul_i32 %s, %s, %d" % (s(sLBEG), s(sW4), QTR))
    a("s_add_u32 %s, %s, %d" % (s(sLBEG), s(sLBEG), LB0))
    PFM = opt.get("k1_pfm", 11)
    sPM, sPMO, sPMW = 72, 73, 74
    rPD = 28
    srd(a, rWO, sWO, 576 * 576 * 2)
    srd(a, rPD, sWD, 4608 * 576 * 2)
    a("v_lshlrev_b32 %s, 7, %s" % (v(vPX), v(vLANE)))
    a("s_lshl_b32 %s, s2, 2" % s(sT0))
    a("s_add_u32 %s, %s, %s" % (s(sT0), s(sT0), s(sW4)))
    a("s_mul_i32 %s, %s, %d" % (s(sPMO), s(sT0), 41 * 128))
    a("s_mul_i32 %s, %s, %d" % (s(sPMW), s(sT0), 6 * 128))
    TR0, TRP, TRN = opt.get("k1_tr", (0, 9, 0))
    a("s_mov_b32 %s, %d" % (s(sTN), TR0))
    a("v_mov_b32 v22, 0")
    a("v_mov_b32 v23, 0")
    def issue():
        a("s_call_b64 %s, L_issue" % s(sRET, 2))
    def publish(off):
        own_flag(sT0)
        a("v_mov_b32 %s, %s" % (v(vT[0]), s(sT0)))
        a("v_mov_b32 %s, %s" % (v(vT[1]), s(sTAG)))
        a("s_mov_b32 %s, %d" % (s(sT0), off))
        a("s_mov_b64 exec, 1")
        a("buffer_store_dword %s, %s, %s, %s offen sc1" % (v(vT[1]), v(vT[0]), s(rWS, 4), s(sT0)))
        a("s_mov_b64 exec, -1")
    a("s_waitcnt lgkmcnt(0)")
    ST0, STP = opt.get("k1_st", (0, 0))
    st.stamp()
    for i in range(ST0):
        a("s_call_b64 %s, L_stouch" % s(sRET, 2))
    a("s_barrier")
    issue(); issue()
    for i in range(opt.get("k1_st1", 0)):
        a("s_call_b64 %s, L_stouch" % s(sRET, 2))
    a("s_waitcnt vmcnt(6)")
    a("s_barrier")
    issue(); issue()
    a("s_waitcnt vmcnt(12)")
    a("s_barrier")
    issue(); issue()
    a.label("L_ld")
    a("s_waitcnt vmcnt(18)")
    if opt.get("diag_ld", 0): st.stamp()
    a("s_barrier")
    issue()
    for i in range(STP):
        a("s_call_b64 %s, L_stouch" % s(sRET, 2))
    if TRN:
        a("s_cmp_lg_u32 %s, %s" % (s(sG), s(sTN)))
        a("s_cbranch_scc1 L_notr")
        a("s_add_u32 %s, %s, %d" % (s(sTN), s(sTN), TRP))
        for i in range(TRN):
            a("s_call_b64 %s, L_touch" % s(sRET, 2))
        a.label("L_notr")
    a("s_cmp_lg_u32 %s, 8" % s(sG))
    a("s_cbranch_scc1 L_notg")
    a("global_load_dword v22, v23, %s" % s(sDBG, 2))
    a.label("L_notg")
    a("s_lshl_b32 %s, %s, 8" % (s(sT0), s(sW4)))
    a("s_add_u32 %s, %s, %s" % (s(sT0), s(sT0), s(sG)))
    a("s_mul_i32 %s, %s, 3" % (s(sT1), s(sNQ)))
    a("s_add_u32 %s, %s, 10" % (s(sT1), s(sT1)))
    a("s_cmp_lg_u32 %s, %s" % (s(sT0), s(sT1)))
    a("s_cbranch_scc1 L_noq")
    a("v_readfirstlane_b32 %s, v22" % s(sTAG))
    tag_check("L_tg4")
    publish(F_Q - F_E)
    a.label("L_noq")
    a("s_cmp_lt_u32 %s, %s" % (s(sG), s(sNG)))
    a("s_cbranch_scc1 L_ld")
    a("v_readfirstlane_b32 %s, v22" % s(sTAG))
    tag_check("L_tg3")
    a("s_cmp_lg_u32 %s, 0" % s(sW4))
    a("s_cbranch_scc1 L_noe")
    publish(0)
    a.label("L_noe")
    a("s_mov_b64 exec, -1")
    a("s_mov_b32 exec_hi, 0x1ff")
    a("buffer_load_dword v20, %s, %s, %s offen" % (v(vPX), s(rPD, 4), s(sPMO)))
    a("s_mov_b64 exec, 63")
    a("buffer_load_dword v21, %s, %s, %s offen" % (v(vPX), s(rWO, 4), s(sPMW)))
    a("s_mov_b64 exec, -1")
    a("s_waitcnt vmcnt(20)")
    a("s_barrier")
    a("s_waitcnt vmcnt(14)")
    a("s_barrier")
    NL2 = opt.get("k1_l2", 0)
    if NL2:
        a("s_lshl_b32 %s, %s, 2" % (s(sT0), s(sSLOT)))
        a("s_add_u32 %s, %s, %s" % (s(sT0), s(sT0), s(sW4)))
        a("s_lshl_b32 %s, %s, 13" % (s(sT0), s(sT0)))
        for i in range(NL2):
            a("buffer_load_dword v20, %s, %s, %s offen" % (v(vPX), s(rPD, 4), s(sT0)))
            a("s_add_u32 %s, %s, %d" % (s(sT0), s(sT0), 1 << 20))
    T = [10, 11, 12, 13, 14, 9]
    a("v_lshrrev_b32 %s, 4, %s" % (v(T[0]), v(vLANE)))
    a("s_lshl_b32 %s, %s, 1" % (s(sT0), s(sXCD)))
    a("s_sub_u32 %s, %s, 2" % (s(sT0), s(sT0)))
    a("v_add_u32 %s, %s, %s" % (v(T[0]), s(sT0), v(T[0])))
    a("v_max_i32 %s, 0, %s" % (v(T[0]), v(T[0])))
    a("v_and_b32 %s, 15, %s" % (v(T[4]), v(vLANE)))
    a("v_lshl_add_u32 %s, %s, 6, %s" % (v(T[0]), v(T[0]), v(T[4])))
    a("v_lshlrev_b32 %s, 2, %s" % (v(T[0]), v(T[0])))
    a("v_add_u32 %s, %d, %s" % (v(T[0]), F_Q, v(T[0])))
    poll(T[1], T[0])
    a("s_waitcnt vmcnt(%d)" % (3 + NL2))
    a("s_barrier")

    a.label("L_attn")
    a("s_setprio %d" % opt.get("a_prio0", 3))
    st.stamp()
    sA, sCG0, sSFT, sMIN, sOB, sAB, sQT, sRT16 = sW4, 4, 5, 6, 7, 8, 9, 10
    a("s_bitcmp1_b32 %s, 0" % s(sNCH))
    a("s_cselect_b32 %s, %d, 0" % (s(sAB), BUF))
    a("s_add_u32 %s, %s, %d" % (s(sAB), s(sAB), LB0))
    a("s_waitcnt vmcnt(0) lgkmcnt(0)")
    flag_wait("L_fq", T[1], T[0])
    st.stamp()
    sM = [52 + 2 * r for r in range(16)]
    sK = [84 + 2 * i for i in range(8)]
    vL16, vKB, vVB, vOOFF, vNINF, vOL = 2, 3, 4, 5, 6, 7
    vMX, vMX2, vC = 224, 226, 228
    S0, O0, Q0, KF0, VF0 = 16, 160, 176, 192, 208
    def SR(t): return S0 + 16 * t
    a("s_mul_i32 %s, %s, 18" % (s(sT0), s(sSLOT)))
    a("s_lshr_b32 %s, %s, 4" % (s(sCG0), s(sT0)))
    a("s_and_b32 %s, %s, 15" % (s(sSFT), s(sT0)))
    a("v_lshlrev_b32 %s, 4, %s" % (v(vL16), v(vLANE)))
    for j in range(4):
        a("s_lshl_b32 %s, %s, 3" % (s(sT0), s(sXCD)))
        a("s_lshl_b32 %s, %s, 2" % (s(sT1), s(sA)))
        a("s_add_u32 %s, %s, %d" % (s(sT1), s(sT1), j))
        a("s_add_u32 %s, %s, %s" % (s(sT0), s(sT0), s(sT1)))
        a("s_sub_i32 %s, %s, 8" % (s(sT0), s(sT0)))
        a("s_max_i32 %s, %s, 0" % (s(sT0), s(sT0)))
        a("s_mul_i32 %s, %s, 108" % (s(sT0), s(sT0)))
        a("s_add_u32 %s, %s, %s" % (s(sT0), s(sT0), s(sCG0)))
        a("s_lshl_b32 %s, %s, 10" % (s(sT0), s(sT0)))
        a("s_add_u32 %s, %s, %d" % (s(sT2), s(sT0), QKV_BASE + 36 * 1024))
        a("s_add_u32 %s, %s, %d" % (s(sT3), s(sT0), QKV_BASE + 72 * 1024))
        a("s_lshl_b32 %s, %s, 12" % (s(sT1), s(sT1)))
        a("s_add_u32 m0, %s, %s" % (s(sT1), s(sAB)))
        a("s_add_u32 %s, %s, 2048" % (s(sT1), s(sT1)))
        a("buffer_load_dwordx4 %s, %s, %s offen sc1 lds" % (v(vL16), s(rWS, 4), s(sT2)))
        a("buffer_load_dwordx4 %s, %s, %s offen offset:1024 sc1 lds" % (v(vL16), s(rWS, 4), s(sT2)))
        a("s_add_u32 m0, %s, %s" % (s(sT1), s(sAB)))
        a("s_nop 0")
        a("buffer_load_dwordx4 %s, %s, %s offen sc1 lds" % (v(vL16), s(rWS, 4), s(sT3)))
        a("buffer_load_dwordx4 %s, %s, %s offen offset:1024 sc1 lds" % (v(vL16), s(rWS, 4), s(sT3)))
    a("s_lshl_b32 %s, %s, 3" % (s(sT0), s(sXCD)))
    a("s_lshl_b32 %s, %s, 1" % (s(sT1), s(sA)))
    a("s_add_u32 %s, %s, %s" % (s(sT0), s(sT0), s(sT1)))
    a("s_lshl_b32 %s, %s, 1" % (s(sRT16), s(sT0)))
    a("s_mul_i32 %s, %s, 108" % (s(sT0), s(sT0)))
    a("s_add_u32 %s, %s, %s" % (s(sT0), s(sT0), s(sCG0)))
    a("s_lshl_b32 %s, %s, 10" % (s(sT0), s(sT0)))
    a("s_add_u32 %s, %s, %d" % (s(sT0), s(sT0), QKV_BASE))
    a("s_add_u32 %s, %s, %d" % (s(sT1), s(sT0), 108 * 1024))
    for qt in range(2):
        for p in range(2):
            a("buffer_load_dwordx4 %s, %s, %s, %s offen offset:%d sc1" % (v(Q0 + 8 * qt + 4 * p, 4), v(vL16), s(rWS, 4), s(sT0 + qt), 1024 * p))
    a("v_lshrrev_b32 %s, 5, %s" % (v(T[0]), v(vLANE)))
    a("v_lshlrev_b32 %s, 2, %s" % (v(T[0]), v(T[0])))
    a("v_and_b32 %s, 31, %s" % (v(T[1]), v(vLANE)))
    a("v_sub_u32 %s, %s, %s" % (v(T[2]), v(T[1]), v(T[0])))
    for r in range(16):
        a("v_cmp_le_i32 %s, %d, %s" % (s(sM[r], 2), (r & 3) + 8 * (r >> 2), v(T[2])))
    a("v_lshlrev_b32 %s, 1, %s" % (v(T[2]), v(T[0])))
    a("v_subrev_u32 %s, %s, %s" % (v(T[2]), s(sSFT), v(T[2])))
    for p in range(2):
        for dw in range(4):
            a("v_add_u32 %s, %d, %s" % (v(T[3]), 16 * p + 2 * dw, v(T[2])))
            a("v_cmp_gt_u32 %s, 18, %s" % (s(sK[4 * p + dw], 2), v(T[3])))
    a("s_lshl_b32 %s, %s, 13" % (s(sT2), s(sA)))
    a("s_add_u32 %s, %s, %s" % (s(sT2), s(sT2), s(sAB)))
    a("v_add_u32 %s, %s, %s" % (v(vKB), s(sT2), v(vL16)))
    a("s_lshr_b32 %s, %s, 2" % (s(sT3), s(sSFT)))
    a("v_bfe_u32 %s, %s, 4, 1" % (v(T[3]), v(vLANE)))
    a("v_and_b32 %s, 3, %s" % (v(T[4]), v(vLANE)))
    a("v_lshl_add_u32 %s, %s, 2, %s" % (v(T[3]), v(T[3]), v(T[4])))
    a("v_min_u32 %s, 5, %s" % (v(T[3]), v(T[3])))
    a("v_add_u32 %s, %s, %s" % (v(T[3]), s(sT3), v(T[3])))
    a("v_bfe_u32 %s, %s, 1, 2" % (v(T[4]), v(T[3])))
    a("v_lshlrev_b32 %s, 9, %s" % (v(T[4]), v(T[4])))
    a("v_and_b32 %s, 1, %s" % (v(T[3]), v(T[3])))
    a("v_lshl_add_u32 %s, %s, 3, %s" % (v(T[3]), v(T[3]), v(T[4])))
    a("v_bfe_u32 %s, %s, 2, 2" % (v(T[4]), v(vLANE)))
    a("v_add_u32 %s, %s, %s" % (v(T[4]), v(T[4]), v(T[0])))
    a("v_lshl_add_u32 %s, %s, 4, %s" % (v(T[3]), v(T[4]), v(T[3])))
    a("v_add_u32 %s, %s, %s" % (v(vVB), s(sT2), v(T[3])))
    a("s_mul_i32 %s, %s, 3" % (s(sT0), s(sSLOT)))
    a("v_lshrrev_b32 %s, 5, %s" % (v(T[3]), v(vLANE)))
    a("v_add_u32 %s, %s, %s" % (v(T[3]), s(sT0), v(T[3])))
    a("v_lshrrev_b32 %s, 2, %s" % (v(T[4]), v(T[3])))
    a("v_mul_u32_u24 %s, 5120, %s" % (v(T[4]), v(T[4])))
    a("v_and_b32 %s, 3, %s" % (v(T[3]), v(T[3])))
    a("v_lshl_add_u32 %s, %s, 8, %s" % (v(T[3]), v(T[3]), v(T[4])))
    a("v_and_b32 %s, 15, %s" % (v(T[4]), v(vLANE)))
    a("v_lshl_add_u32 %s, %s, 4, %s" % (v(vOL), v(T[4]), v(T[3])))
    a("s_add_u32 %s, %s, 2" % (s(sT1), s(sT0)))
    a("s_lshr_b32 %s, %s, 2" % (s(sOB), s(sT1)))
    a("s_lshr_b32 %s, %s, 2" % (s(sMIN), s(sT0)))
    a("s_sub_u32 %s, %s, %s" % (s(sOB), s(sOB), s(sMIN)))
    a("s_mul_i32 %s, %s, %d" % (s(sOB), s(sOB), 5120 - 1024))
    a("s_add_u32 %s, %s, %d" % (s(sOB), s(sOB), H_BASE + 144 * 5120 + 512))
    a("v_mov_b32 %s, 0xff800000" % v(vNINF))
    a("v_mov_b32 %s, 0x%x" % (v(vC), fbits(18 ** -0.5 * math.log2(math.e))))
    a("s_add_u32 %s, %s, 5" % (s(sT3), s(sT3)))
    a("s_bfe_u32 %s, %s, 0x20001" % (s(sT0), s(sT3)))
    a("s_lshl_b32 %s, %s, 9" % (s(sT0), s(sT0)))
    a("s_and_b32 %s, %s, 1" % (s(sT1), s(sT3)))
    a("s_lshl_b32 %s, %s, 3" % (s(sT1), s(sT1)))
    a("s_add_u32 %s, %s, %s" % (s(sT0), s(sT0), s(sT1)))
    a("s_lshl_b32 %s, %s, 14" % (s(sT1), s(sA)))
    a("s_add_u32 %s, %s, %s" % (s(sT0), s(sT0), s(sT1)))
    a("s_add_u32 %s, %s, %s" % (s(sT0), s(sT0), s(sAB)))
    a("s_add_u32 %s, %s, 2048" % (s(sT0), s(sT0)))
    a("v_lshlrev_b32 %s, 4, %s" % (v(T[3]), v(T[1])))
    a("v_add3_u32 %s, %s, %s, %s" % (v(T[3]), v(T[3]), v(T[0]), s(sT0)))
    a("v_mov_b32 %s, 0x3f803f80" % v(T[4]))
    a("v_mov_b32 %s, %d" % (v(T[5]), C_A0))
    a("v_mov_b32 %s, 1" % v(vMX))
    a("s_lshl_b32 %s, %s, 1" % (s(sMIN), s(sA)))
    a("s_sub_u32 %s, 8, %s" % (s(sMIN), s(sMIN)))
    a("s_cmp_lg_u32 %s, 0" % s(sXCD))
    a("s_cselect_b32 %s, 0, %s" % (s(sMIN), s(sMIN)))
    a("s_waitcnt vmcnt(0)")
    for j in range(4):
        a("ds_write_b32 %s, %s offset:%d" % (v(T[3]), v(T[4]), j * 4096))
    a("s_mov_b64 exec, 1")
    a("ds_add_u32 %s, %s" % (v(T[5]), v(vMX)))
    a("s_mov_b64 exec, -1")
    for qt in range(2):
        for i in range(8):
            a("v_cndmask_b32 %s, 0, %s, %s" % (v(Q0 + 8 * qt + i), v(Q0 + 8 * qt + i), s(sK[i], 2)))
    a("s_bitcmp1_b32 %s, 0" % s(sSLOT))
    a("s_cselect_b32 %s, 0, -1" % s(sK[0]))
    a("s_mov_b32 %s, -1" % s(sK[0] + 1))
    a("s_cselect_b64 %s, -1, 0" % s(sK[1], 2))
    a("s_mov_b32 %s, 0" % s(sQT))
    lds_wait("L_wa", T[5], vMX, "4", 1)
    a("s_setprio %d" % opt.get("a_prio", 0))
    a.label("L_aq")
    st.stamp()
    Q = Q0
    def krd(t):
        for p in range(2):
            a("ds_read_b128 %s, %s offset:%d" % (v(KF0 + 8 * (t & 1) + 4 * p, 4), v(vKB), t * 4096 + 1024 * p))
    def vrd(t):
        for hf in range(2):
            for aa in range(2):
                a("ds_read_b64_tr_b16 %s, %s offset:%d" % (v(VF0 + 8 * (t & 1) + 4 * hf + 2 * aa, 2), v(vVB), t * 4096 + 2048 + hf * 256 + aa * 128))
    def mx(t, first=False):
        R = SR(t)
        for i in range(0, 16, 4):
            if first and i == 0:
                a("v_max_f32 %s, %s, %s" % (v(vMX), v(R), v(R + 1)))
                a("v_max_f32 %s, %s, %s" % (v(vMX2), v(R + 2), v(R + 3)))
            else:
                a("v_max3_f32 %s, %s, %s, %s" % (v(vMX), v(R + i), v(R + i + 1), v(vMX)))
                a("v_max3_f32 %s, %s, %s, %s" % (v(vMX2), v(R + i + 2), v(R + i + 3), v(vMX2)))
    def fix(t):
        if t == 0:
            for r in range(16):
                a("v_cndmask_b32 %s, %s, %s, %s" % (v(SR(0) + r), v(SR(0) + r), v(vNINF), s(sM[r], 2)))
        if t == 8:
            for r in range(16):
                a("v_cndmask_b32 %s, %s, %s, %s" % (v(SR(8) + r), v(vNINF), v(SR(8) + r), s(sM[r], 2)))
        else:
            l = a.newlabel("inv")
            a("s_cmp_le_u32 %s, %d" % (s(sMIN), t))
            a("s_cbranch_scc1 %s" % l)
            for r in range(16):
                a("v_mov_b32 %s, %s" % (v(SR(t) + r), v(vNINF)))
            a.label(l)
        mx(t, t == 0)
    krd(0)
    for t in range(9):
        if t < 8:
            krd(t + 1)
            a("s_waitcnt lgkmcnt(2)")
        else:
            a("s_waitcnt lgkmcnt(0)")
        kf = KF0 + 8 * (t & 1)
        a("v_mfma_f32_32x32x16_bf16 %s, %s, %s, 0" % (v(SR(t), 16), v(kf, 4), v(Q, 4)))
        a("v_mfma_f32_32x32x16_bf16 %s, %s, %s, %s" % (v(SR(t), 16), v(kf + 4, 4), v(Q + 4, 4), v(SR(t), 16)))
        if t == 2:
            a("s_nop 1")
        if t >= 2:
            fix(t - 2)
    vrd(0)
    vrd(1)
    fix(7)
    fix(8)
    a("v_max_f32 %s, %s, %s" % (v(vMX), v(vMX), v(vMX2)))
    a("v_mov_b32 %s, %s" % (v(vMX2), v(vMX)))
    a("s_nop 1")
    a("v_permlane32_swap_b32 %s, %s" % (v(vMX), v(vMX2)))
    a("s_nop 1")
    a("v_max_f32 %s, %s, %s" % (v(vMX), v(vMX), v(vMX2)))
    a("v_mul_f32 %s, -%s, %s" % (v(vMX), v(vC), v(vMX)))
    for t in range(9):
        R = SR(t)
        for r in range(0, 16, 2):
            a("v_pk_fma_f32 %s, %s, %s, %s op_sel_hi:[1,0,0]" % (v(R + r, 2), v(R + r, 2), v(vC, 2), v(vMX, 2)))
        for r in range(16):
            a("v_exp_f32 %s, %s" % (v(R + r), v(R + r)))
        a("s_nop 0")
        for j in range(8):
            a("v_cvt_pk_bf16_f32 %s, %s, %s" % (v(R + j), v(R + 2 * j), v(R + 2 * j + 1)))
        a("s_waitcnt lgkmcnt(%d)" % (4 if t < 8 else 0))
        a("s_nop 0")
        vf = VF0 + 8 * (t & 1)
        c = "0" if t == 0 else v(O0, 16)
        a("v_mfma_f32_32x32x16_bf16 %s, %s, %s, %s" % (v(O0, 16), v(vf, 4), v(R, 4), c))
        a("v_mfma_f32_32x32x16_bf16 %s, %s, %s, %s" % (v(O0, 16), v(vf + 4, 4), v(R + 4, 4), v(O0, 16)))
        if t + 2 < 9:
            vrd(t + 2)
    a("v_bfe_u32 %s, %s, 4, 1" % (v(T[1]), v(vLANE)))
    a("v_add_u32 %s, %s, %s" % (v(T[1]), s(sRT16), v(T[1])))
    a("v_mul_u32_u24 %s, 205, %s" % (v(T[2]), v(T[1])))
    a("v_lshrrev_b32 %s, 10, %s" % (v(T[2]), v(T[2])))
    a("v_mul_u32_u24 %s, %d, %s" % (v(T[2]), NKS * 5 - 5, v(T[2])))
    a("v_add_u32 %s, %s, %s" % (v(T[1]), v(T[1]), v(T[2])))
    a("v_lshl_add_u32 %s, %s, 10, %s" % (v(vOOFF), v(T[1]), v(vOL)))
    for i in range(8):
        a("v_mov_b32 %s, %s" % (v(Q0 + i), v(Q0 + 8 + i)))
    a("v_add_u32 %s, 4096, %s" % (v(vKB), v(vKB)))
    a("v_add_u32 %s, 4096, %s" % (v(vVB), v(vVB)))
    a("s_add_u32 %s, %s, 2" % (s(sRT16), s(sRT16)))
    a("s_sub_u32 %s, %s, 1" % (s(sMIN), s(sMIN)))
    a("s_cselect_b32 %s, 0, %s" % (s(sMIN), s(sMIN)))
    a("v_rcp_f32 %s, %s" % (v(T[0]), v(O0 + 12)))
    a("s_nop 0")
    for r in range(12):
        a("v_mul_f32 %s, %s, %s" % (v(O0 + r), v(O0 + r), v(T[0])))
    for j in range(6):
        a("v_cvt_pk_bf16_f32 %s, %s, %s" % (v(O0 + j), v(O0 + 2 * j), v(O0 + 2 * j + 1)))
    a("v_cndmask_b32 %s, 0, %s, %s" % (v(O0), v(O0), s(sK[0], 2)))
    a("v_cndmask_b32 %s, 0, %s, %s" % (v(O0 + 5), v(O0 + 5), s(sK[1], 2)))
    a("v_mov_b32 %s, 0" % v(O0 + 6))
    a("v_mov_b32 %s, 0" % v(O0 + 7))
    a("s_setprio 3")
    a("s_mov_b32 %s, %d" % (s(sT0), H_BASE + 144 * 5120))
    a("buffer_store_dwordx4 %s, %s, %s, %s offen sc1" % (v(O0, 4), v(vOOFF), s(rWS, 4), s(sT0)))
    a("s_mov_b32 exec_hi, 0")
    a("buffer_store_dwordx4 %s, %s, %s, %s offen sc1" % (v(O0 + 4, 4), v(vOOFF), s(rWS, 4), s(sOB)))
    a("s_mov_b64 exec, -1")
    a("s_setprio %d" % opt.get("a_prio", 0))
    a("s_add_u32 %s, %s, 1" % (s(sQT), s(sQT)))
    a("s_cmp_lt_u32 %s, 2" % s(sQT))
    a("s_cbranch_scc1 L_aq")
    a("s_setprio 3")
    st.stamp()
    a("s_waitcnt vmcnt(0)")
    st.stamp()
    a("v_mov_b32 %s, %d" % (v(T[0]), C_A1))
    a("v_mov_b32 %s, 1" % v(T[1]))
    a("s_lshl_b32 %s, %s, 6" % (s(sT1), s(sXCD)))
    a("s_add_u32 %s, %s, %s" % (s(sT1), s(sT1), s(sSLOT)))
    a("s_lshl_b32 %s, %s, 2" % (s(sT1), s(sT1)))
    a("s_add_u32 %s, %s, %d" % (s(sT1), s(sT1), F_A))
    a("v_mov_b32 %s, %s" % (v(T[3]), s(sT1)))
    a("v_mov_b32 %s, %s" % (v(T[4]), s(sTAG)))
    a("s_mov_b64 exec, 1")
    a("ds_add_rtn_u32 %s, %s, %s" % (v(T[2]), v(T[0]), v(T[1])))
    a("s_waitcnt lgkmcnt(0)")
    a("v_readfirstlane_b32 %s, %s" % (s(sT0), v(T[2])))
    a("s_cmp_lg_u32 %s, 3" % s(sT0))
    a("s_cbranch_scc1 L_fin")
    a("buffer_store_dword %s, %s, %s, 0 offen sc1" % (v(T[4]), v(T[3]), s(rWS, 4)))
    a.label("L_fin")
    if st.on:
        a("s_mov_b64 exec, -1")
        a("v_mov_b32 v0, %s" % v(vLANE))
        a("s_waitcnt vmcnt(0)")
    st.stamp(); st.stamp(True); st.dump(sWAVE, sWS, 254)
    a.label("L_end")
    a("s_endpgm")
    a.label("L_code_end")
    return a.text(), kdesc(F_NAME, 256, 102)
```

```python
from common import *
import math, struct

F_NAME = "parallel_sum__sliding_block__glu_gated_bilinear__prompt_kernel"
BUF = 73728
QTR = 18432
CNT = 0
LB0 = 4096
C_E, C_L, C_A0, C_A1, C_GO, C_TAG = CNT + 32, CNT + 36, CNT + 40, CNT + 44, CNT + 48, CNT + 52
C_PROD = CNT + 256
C_CONS = CNT + 64
F_LDS = LB0 + 2 * BUF
PART = 21760
F_E, F_L, F_A, F_Q = FL_BASE, FL_BASE + 4096, FL_BASE + 8192, FL_BASE + 12288
SPIN = 100000

def fbits(x):
    return struct.unpack("<I", struct.pack("<f", x))[0]

def gen_f1(opt):
    global BUF, QTR
    if opt.get("x_oldlayout", 0):
        BUF, QTR = 18432, 36864
    a = Asm()
    a.raw(khead(F_NAME))
    sX, sWQ, sWG, sWU, sDBG, sWS, sWO, sWD, sOUT = 4, 6, 8, 10, 12, 14, 44, 48, 50
    rX, rW, rWO, rOUT, rWS = 16, 20, 24, 28, 32
    sWAVE, sW4, sXCD, sSLOT = 36, 37, 38, 39
    sT0, sT1, sT2, sT3 = 40, 41, 42, 43
    sSPIN = 47
    sRET = 98
    sRB, sCG, sROT, sNQ, sNP, sQ0, sP0, sNCH, sNG = 52, 53, 54, 55, 56, 57, 58, 60, 71
    vLANE = 1

    a("s_cmp_ge_u32 s2, 256")
    a("s_cbranch_scc1 L_end")
    a("s_load_dwordx4 s[4:7], s[0:1], %d" % KA_X)
    a("s_load_dwordx4 s[8:11], s[0:1], %d" % KA_WG)
    a("s_load_dwordx4 s[12:15], s[0:1], %d" % KA_DBG)
    a("s_load_dwordx2 s[44:45], s[0:1], %d" % KA_WO)
    a("s_load_dwordx4 s[48:51], s[0:1], %d" % KA_WD)
    a("s_memrealtime s[92:93]")
    if opt.get("code_pf", 1):
        a("s_getpc_b64 s[96:97]")
        a("s_lshr_b32 s3, s2, 3")
        a("s_lshl_b32 s3, s3, 11")
        a("v_lshl_add_u32 v14, v0, 7, s3")
        a("v_min_u32 v14, L_code_end-%s-192, v14" % F_NAME)
        a("v_cmp_gt_u32 vcc, 16, v0")
        a("s_and_saveexec_b64 s[88:89], vcc")
        a("s_cbranch_execz L_nocpf")
        a("global_load_dword v255, v14, s[96:97]")
        a.label("L_nocpf")
        a("s_mov_b64 exec, s[88:89]")
    st = Stamper(a, opt.get("diag", 0), 15, 100, 0, scnt=46)
    st.init(); st.stamp(True); st.stamp()
    vT = list(range(236, 252))
    a("v_and_b32 %s, 63, v0" % v(vLANE))
    a("v_lshrrev_b32 %s, 6, v0" % v(vT[0]))
    a("s_and_b32 %s, s2, 7" % s(sXCD))
    a("s_lshr_b32 %s, s2, 3" % s(sSLOT))
    a("v_readfirstlane_b32 %s, %s" % (s(sWAVE), v(vT[0])))
    LR = opt.get("k1_lrb", 3)
    RBX, CGX = 1 << LR, 32 >> LR
    sRBL = 79
    a("s_and_b32 %s, %s, %d" % (s(sRBL), s(sSLOT), RBX - 1))
    a("s_lshr_b32 %s, %s, %d" % (s(sT1), s(sSLOT), LR))
    a("s_and_b32 %s, %s, %d" % (s(sT2), s(sXCD), 16 // RBX - 1))
    a("s_lshr_b32 %s, %s, %d" % (s(sT0), s(sXCD), 4 - LR))
    a("s_lshl_b32 %s, %s, %d" % (s(sRB), s(sT2), LR))
    a("s_add_u32 %s, %s, %s" % (s(sRB), s(sRB), s(sRBL)))
    a("s_lshl_b32 %s, %s, %d" % (s(sCG), s(sT0), 5 - LR))
    a("s_add_u32 %s, %s, %s" % (s(sCG), s(sCG), s(sT1)))
    mr, mc, mx = opt.get("k1_rot", {4: (1, 4, 1), 3: (1, 2, 1), 2: (2, 1, 0)}[LR])
    a("s_mul_i32 %s, %s, %d" % (s(sT3), s(sRBL), mr))
    a("s_mul_i32 %s, %s, %d" % (s(sT1), s(sT1), mc))
    a("s_mul_i32 %s, %s, %d" % (s(sT0), s(sT0), mx))
    a("s_add_u32 %s, %s, %s" % (s(sROT), s(sT3), s(sT1)))
    a("s_add_u32 %s, %s, %s" % (s(sROT), s(sROT), s(sT0)))
    a("s_mul_i32 %s, %s, 57" % (s(sT0), s(sROT)))
    a("s_lshr_b32 %s, %s, 9" % (s(sT0), s(sT0)))
    a("s_mul_i32 %s, %s, 9" % (s(sT0), s(sT0)))
    a("s_sub_u32 %s, %s, %s" % (s(sROT), s(sROT), s(sT0)))
    a("s_and_b32 %s, %s, 3" % (s(sW4), s(sWAVE)))
    sNE, sL0 = 94, 95
    def worklist():
        a("s_lshr_b32 %s, %s, 1" % (s(sT0), s(sCG)))
        a("s_cmp_lt_u32 %s, 3" % s(sT0))
        a("s_cselect_b32 %s, 3, 2" % s(sNQ))
        a("s_min_u32 %s, %s, 3" % (s(sQ0), s(sT0)))
        a("s_lshl_b32 %s, %s, 1" % (s(sT1), s(sT0)))
        a("s_add_u32 %s, %s, %s" % (s(sQ0), s(sQ0), s(sT1)))
        a("s_add_u32 %s, %s, 8" % (s(sQ0), s(sQ0)))
        a("s_add_u32 %s, %s, 24" % (s(sP0), s(sT1)))
        a("s_mul_i32 %s, %s, 3" % (s(sT1), s(sT0)))
        a("s_bitcmp0_b32 %s, 0" % s(sCG))
        a("s_cselect_b32 %s, 1, %s" % (s(sNQ), s(sNQ)))
        a("s_cselect_b32 %s, %s, %s" % (s(sQ0), s(sT0), s(sQ0)))
        a("s_cselect_b32 %s, %s, %s" % (s(sP0), s(sT1), s(sP0)))
        a("s_cselect_b32 %s, 3, 2" % s(sNE))
        a("s_lshl_b32 %s, %s, 1" % (s(sL0), s(sCG)))
        a("s_add_u32 %s, %s, 40" % (s(sL0), s(sL0)))
        a("s_sub_u32 %s, %s, %s" % (s(sL0), s(sL0), s(sNE)))
        a("s_lshl_b32 %s, %s, 1" % (s(sNCH), s(sNE)))
        a("s_add_u32 %s, %s, 4" % (s(sNCH), s(sNCH)))
        a("s_add_u32 %s, %s, %s" % (s(sNCH), s(sNCH), s(sNQ)))
        a("s_mul_i32 %s, %s, 3" % (s(sNG), s(sNCH)))
    def pair_of(sj):
        a("s_cmp_lt_u32 %s, %s" % (s(sj), s(sNE)))
        a("s_cselect_b32 %s, %s, %s" % (s(sT2), s(sP0), s(sL0)))
        a("s_add_u32 %s, %s, %s" % (s(sj), s(sj), s(sT2)))
    sRT, sCT = 80, 81
    def tile_of():
        a("s_mul_i32 %s, %s, 29" % (s(sT0), s(sXCD)))
        a("s_min_u32 %s, %s, 2" % (s(sT1), s(sXCD)))
        a("s_add_u32 %s, %s, %s" % (s(sT0), s(sT0), s(sT1)))
        a("s_add_u32 %s, %s, %s" % (s(sT0), s(sT0), s(sSLOT)))
        a("s_min_u32 %s, %s, 233" % (s(sT0), s(sT0)))
        a("s_mul_i32 %s, %s, 7282" % (s(sRT), s(sT0)))
        a("s_lshr_b32 %s, %s, 16" % (s(sRT), s(sRT)))
        a("s_mul_i32 %s, %s, 9" % (s(sT1), s(sRT)))
        a("s_sub_u32 %s, %s, %s" % (s(sCT), s(sT0), s(sT1)))
        a("s_mul_i32 %s, %s, 80" % (s(sT0), s(sRT)))
        a("s_add_u32 %s, %s, 79" % (s(sT1), s(sT0)))
        a("s_min_u32 %s, %s, 2047" % (s(sT1), s(sT1)))
        a("s_lshr_b32 %s, %s, 7" % (s(sT2), s(sT0)))
        a("s_lshr_b32 %s, %s, 7" % (s(sT3), s(sT1)))
        a("s_lshl_b32 %s, %s, 2" % (s(sT2), s(sT2)))
        a("s_lshl_b32 %s, %s, 2" % (s(sT3), s(sT3)))
    def lds_wait(name, vaddr, vtmp, sneed, sleep=1):
        a.label(name)
        a("ds_read_b32 %s, %s" % (v(vtmp), v(vaddr)))
        a("s_waitcnt lgkmcnt(0)")
        a("v_cmp_gt_u32 vcc, %s, %s" % (sneed, v(vtmp)))
        a("s_cbranch_vccz %s_ok" % name)
        if sleep: a("s_sleep %d" % sleep)
        a("s_branch %s" % name)
        a.label(name + "_ok")
    sTAG = 3
    def poll(vval, voff):
        a("buffer_load_dword %s, %s, %s, 0 offen sc1" % (v(vval), v(voff), s(rWS, 4)))
    def flag_wait(name, vval, voff):
        a("s_mov_b32 %s, %d" % (s(sSPIN), SPIN))
        a.label(name)
        a("v_cmp_ne_u32 vcc, %s, %s" % (s(sTAG), v(vval)))
        a("s_cbranch_vccz %s_ok" % name)
        a("s_sub_u32 %s, %s, 1" % (s(sSPIN), s(sSPIN)))
        a("s_cbranch_scc1 %s_ok" % name)
        a("s_sleep %d" % opt.get("poll_sleep", 16))
        poll(vval, voff)
        a("s_waitcnt vmcnt(0)")
        a("s_branch %s" % name)
        a.label(name + "_ok")
    def tag_issue():
        a("s_load_dword %s, %s, 0" % (s(sTAG), s(sDBG, 2)))
    def tag_check(name):
        a("s_mov_b32 %s, %d" % (s(sSPIN), SPIN))
        a("s_sub_u32 %s, s92, %s" % (s(sT0), s(sTAG)))
        a("s_cmp_gt_i32 %s, 2000" % s(sT0))
        a("s_cselect_b32 %s, 0, %s" % (s(sTAG), s(sTAG)))
        a.label(name)
        a("s_cmp_lg_u32 %s, 0" % s(sTAG))
        a("s_cbranch_scc1 %s_ok" % name)
        a("s_sub_u32 %s, %s, 1" % (s(sSPIN), s(sSPIN)))
        a("s_cbranch_scc1 %s_ok" % name)
        a("s_load_dword %s, %s, 0 glc" % (s(sTAG), s(sDBG, 2)))
        a("s_waitcnt lgkmcnt(0)")
        a("s_sleep 8")
        a("s_branch %s" % name)
        a.label(name + "_ok")
    def own_flag(sd):
        a("s_lshl_b32 %s, %s, 6" % (s(sd), s(sRB)))
        a("s_add_u32 %s, %s, %s" % (s(sd), s(sd), s(sCG)))
        a("s_lshl_b32 %s, %s, 2" % (s(sd), s(sd)))
        a("s_add_u32 %s, %s, %d" % (s(sd), s(sd), F_E))
    def rb_lanes(vd, vt, base):
        a("v_mov_b32 %s, %s" % (v(vd), s(sT2)))
        a("v_mov_b32 %s, %s" % (v(vt), s(sT3)))
        a("s_mov_b32 vcc_lo, 0xffff0000")
        a("s_mov_b32 vcc_hi, 0xffff0000")
        a("v_cndmask_b32 %s, %s, %s, vcc" % (v(vd), v(vd), v(vt)))
        a("v_and_b32 %s, 15, %s" % (v(vt), v(vLANE)))
        a("v_lshl_add_u32 %s, %s, 4, %s" % (v(vd), v(vd), v(vt)))
        a("v_lshlrev_b32 %s, 2, %s" % (v(vd), v(vd)))
        a("v_add_u32 %s, %d, %s" % (v(vd), base, v(vd)))
    a("s_cmp_ge_u32 %s, 4" % s(sWAVE))
    a("s_cbranch_scc1 L_loader")

    sI, sEP0, sEP1, sHB0, sHB1, sQB, sE2, sXO, sXC, sXL, sNEED = 59, 61, 62, 63, 64, 65, 66, 67, 68, 69, 70
    vTR = [[2, 3], [4, 5]]
    vL16 = 6
    vR, vR2 = [7, 8], [9, 10]
    vPA, vPV, vCA, vCV = 11, 12, 13, 14
    X0 = 16
    ACC = [160, 192]
    WF0 = 224
    NF, PD = 8, 7
    def X(m, ks): return X0 + 8 * ks + 4 * m
    def WF(q): return WF0 + 4 * (q % NF)
    def TL(A, nt, m): return A + (m * 4 + nt) * 4
    a("s_lshl_b32 %s, %s, 7" % (s(sT0), s(sRB)))
    a("s_lshl_b32 %s, %s, 5" % (s(sT1), s(sWAVE)))
    a("s_add_u32 %s, %s, %s" % (s(sT0), s(sT0), s(sT1)))
    a("s_mul_i32 %s, %s, 1152" % (s(sXO), s(sT0)))
    a("s_lshl_b32 %s, %s, 7" % (s(sXC), s(sROT)))
    a("s_mul_i32 %s, %s, %d" % (s(sXL), s(sWAVE), QTR))
    a("s_add_u32 %s, %s, %d" % (s(sXL), s(sXL), LB0 + BUF))
    vXO = [vT[0], vT[3]]
    a("v_lshrrev_b32 %s, 3, %s" % (v(vT[1]), v(vLANE)))
    a("v_and_b32 %s, 7, %s" % (v(vT[2]), v(vLANE)))
    a("v_mul_u32_u24 %s, 1152, %s" % (v(vT[4]), v(vT[1])))
    a("v_lshrrev_b32 %s, 4, %s" % (v(vT[5]), v(vLANE)))
    a("v_xor_b32 %s, %s, %s" % (v(vT[6]), v(vT[2]), v(vT[5])))
    a("v_lshl_add_u32 %s, %s, 4, %s" % (v(vXO[0]), v(vT[6]), v(vT[4])))
    a("v_xor_b32 %s, 4, %s" % (v(vT[6]), v(vT[6])))
    a("v_lshl_add_u32 %s, %s, 4, %s" % (v(vXO[1]), v(vT[6]), v(vT[4])))
    a("v_add_u32 %s, %d, %s" % (v(vXO[1]), 8 * 1152, v(vXO[1])))
    a("s_waitcnt lgkmcnt(0)")
    srd(a, rX, sX, 2048 * 576 * 2)
    def xdma(i):
        sl = (i % 4) * 4096
        a("s_add_u32 %s, %s, %s" % (s(sT2), s(sXO), s(sXC)))
        a("s_add_u32 m0, %s, %d" % (s(sXL), sl))
        a("s_add_u32 %s, %s, %d" % (s(sT3), s(sT2), 16 * 1152))
        a("buffer_load_dwordx4 %s, %s, %s offen lds" % (v(vXO[0]), s(rX, 4), s(sT2)))
        a("s_add_u32 m0, %s, %d" % (s(sXL), sl + 1024))
        a("s_add_u32 %s, %s, 128" % (s(sXC), s(sXC)))
        a("buffer_load_dwordx4 %s, %s, %s offen lds" % (v(vXO[1]), s(rX, 4), s(sT2)))
        a("s_add_u32 m0, %s, %d" % (s(sXL), sl + 2048))
        a("s_cmp_eq_u32 %s, 1152" % s(sXC))
        a("buffer_load_dwordx4 %s, %s, %s offen lds" % (v(vXO[0]), s(rX, 4), s(sT3)))
        a("s_cselect_b32 %s, 0, %s" % (s(sXC), s(sXC)))
        a("s_add_u32 m0, %s, %d" % (s(sXL), sl + 3072))
        a("s_nop 0")
        a("buffer_load_dwordx4 %s, %s, %s offen lds" % (v(vXO[1]), s(rX, 4), s(sT3)))
    xdma(0); xdma(1)
    srd(a, rWS, sWS, WS_BYTES)
    worklist()
    a("v_lshlrev_b32 %s, 4, %s" % (v(vL16), v(vLANE)))
    vRA = [vT[7], vT[8]]
    a("v_and_b32 %s, 15, %s" % (v(vT[6]), v(vLANE)))
    a("v_lshrrev_b32 %s, 1, %s" % (v(vT[9]), v(vT[6])))
    a("v_xor_b32 %s, %s, %s" % (v(vT[9]), v(vT[9]), v(vT[5])))
    a("v_lshlrev_b32 %s, 4, %s" % (v(vT[9]), v(vT[9])))
    a("v_lshl_add_u32 %s, %s, 7, %s" % (v(vT[9]), v(vT[6]), v(vT[9])))
    a("v_add_u32 %s, %s, %s" % (v(vRA[0]), s(sXL), v(vT[9])))
    a("v_xor_b32 %s, 64, %s" % (v(vT[9]), v(vT[9])))
    a("v_add_u32 %s, %s, %s" % (v(vRA[1]), s(sXL), v(vT[9])))
    SEL, ONE = 224, 232
    a("v_lshrrev_b32 %s, 2, %s" % (v(vT[9]), v(vT[6])))
    a("v_cmp_eq_u32 vcc, %s, %s" % (v(vT[9]), v(vT[5])))
    a("v_and_b32 %s, 1, %s" % (v(vT[9]), v(vLANE)))
    a("v_lshlrev_b32 %s, 4, %s" % (v(vT[9]), v(vT[9])))
    a("v_mov_b32 %s, 0x3f80" % v(vT[1]))
    a("v_lshlrev_b32 %s, %s, %s" % (v(vT[9]), v(vT[9]), v(vT[1])))
    a("v_cndmask_b32 %s, 0, %s, vcc" % (v(vT[9]), v(vT[9])))
    for r, c in ((72, 0xcccccccc), (73, 0xcccccccc), (74, 0xaaaaaaaa), (75, 0xaaaaaaaa), (76, 0x00f0000f), (77, 0xf0000f00)):
        a("s_mov_b32 s%d, 0x%x" % (r, c))
    a("v_cndmask_b32 %s, %s, 0, s[72:73]" % (v(SEL + 2), v(vT[9])))
    a("v_cndmask_b32 %s, 0, %s, s[72:73]" % (v(SEL + 3), v(vT[9])))
    for r in (0, 1, 4, 5):
        a("v_mov_b32 %s, 0" % v(SEL + r))
    for r in range(4):
        a("v_mov_b32 %s, 0x3f803f80" % v(ONE + r))
    a("v_mul_u32_u24 %s, %d, %s" % (v(vT[9]), QTR, v(vT[5])))
    a("v_add_u32 %s, %d, %s" % (v(vT[9]), LB0, v(vT[9])))
    a("v_bfe_u32 %s, %s, 2, 2" % (v(vT[6]), v(vLANE)))
    a("v_lshl_add_u32 %s, %s, 6, %s" % (v(vT[9]), v(vT[6]), v(vT[9])))
    a("v_and_b32 %s, 3, %s" % (v(vT[6]), v(vLANE)))
    a("v_lshl_add_u32 %s, %s, 3, %s" % (v(vT[9]), v(vT[6]), v(vT[9])))
    a("v_and_b32 %s, 1, %s" % (v(vT[6]), v(vT[5])))
    a("v_lshl_add_u32 %s, %s, 5, %s" % (v(vTR[0][0]), v(vT[6]), v(vT[9])))
    a("v_xor_b32 %s, 32, %s" % (v(vTR[0][1]), v(vTR[0][0])))
    a("v_add_u32 %s, %d, %s" % (v(vTR[1][0]), BUF, v(vTR[0][0])))
    a("v_add_u32 %s, %d, %s" % (v(vTR[1][1]), BUF, v(vTR[0][1])))

    xdma(2); xdma(3)
    if opt.get("diag", 0) == 1: st.stamp()
    for m, sH in ((0, sHB0), (1, sHB1)):
        a("s_lshl_b32 %s, %s, 3" % (s(sT0), s(sRB)))
        a("s_lshl_b32 %s, %s, 1" % (s(sT1), s(sWAVE)))
        a("s_add_u32 %s, %s, %s" % (s(sT0), s(sT0), s(sT1)))
        a("s_add_u32 %s, %s, %d" % (s(sT0), s(sT0), m))
        a("s_mul_i32 %s, %s, 205" % (s(sT1), s(sT0)))
        a("s_lshr_b32 %s, %s, 10" % (s(sT1), s(sT1)))
        a("s_mul_i32 %s, %s, %d" % (s(sT1), s(sT1), NKS * 5 - 5))
        a("s_add_u32 %s, %s, %s" % (s(sT0), s(sT0), s(sT1)))
        a("s_lshl_b32 %s, %s, 10" % (s(sH), s(sT0)))
        a("s_mul_i32 %s, %s, 10240" % (s(sT1), s(sP0)))
        a("s_add_u32 %s, %s, %s" % (s(sH), s(sH), s(sT1)))
        if H_BASE: a("s_add_u32 %s, %s, %d" % (s(sH), s(sH), H_BASE))
    sFO = 91
    own_flag(sFO)
    sJMP = 78
    a("s_sub_u32 %s, %s, %s" % (s(sJMP), s(sL0), s(sP0)))
    a("s_mul_i32 %s, %s, 10240" % (s(sJMP), s(sJMP)))
    a("s_lshl_b32 %s, %s, 2" % (s(sT0), s(sRB)))
    a("s_add_u32 %s, %s, %s" % (s(sT0), s(sT0), s(sWAVE)))
    a("s_mul_i32 %s, %s, 108" % (s(sT0), s(sT0)))
    a("s_lshl_b32 %s, %s, 2" % (s(sT1), s(sQ0)))
    a("s_add_u32 %s, %s, %s" % (s(sT0), s(sT0), s(sT1)))
    a("s_lshl_b32 %s, %s, 10" % (s(sQB), s(sT0)))
    a("s_add_u32 %s, %s, %d" % (s(sQB), s(sQB), QKV_BASE))
    SUM, GRM = [160, 164], [208, 212]
    def cstat(i):
        for e in range(2):
            for m in range(2):
                x = v(X(m, 2 * i + e), 4)
                first = i == 0 and e == 0
                a("v_mfma_f32_16x16x32_bf16 %s, %s, %s, %s" % (v(SUM[m], 4), v(ONE, 4), x, "0" if first else v(SUM[m], 4)))
                a("v_mfma_f32_16x16x32_bf16 %s, %s, %s, %s" % (v(GRM[m], 4), x, x, "0" if first else v(GRM[m], 4)))
    for i in range(9):
        issued = min(9, max(4, i + 3))
        a("s_waitcnt vmcnt(%d)" % (4 * (issued - i - 1)))
        for e in range(2):
            for m in range(2):
                a("ds_read_b128 %s, %s offset:%d" % (v(X(m, 2 * i + e), 4), v(vRA[e]), (i % 4) * 4096 + m * 2048))
        if i > 0:
            a("s_waitcnt lgkmcnt(4)")
            if i + 3 < 9:
                xdma(i + 3)
            cstat(i - 1)
    a("s_waitcnt lgkmcnt(0)")
    a("s_barrier")
    cstat(8)
    st.stamp()
    a("s_nop 6")
    inv = 0x3ae38e39
    MEAN = [168, 169]
    for m in range(2):
        a("v_mul_f32 %s, 0x%x, %s" % (v(MEAN[m]), inv, v(SUM[m])))
    a("v_cvt_pk_bf16_f32 v170, %s, %s" % (v(MEAN[0]), v(MEAN[1])))
    a("v_xor_b32 v170, 0x80008000, v170")
    for r in range(4):
        a("v_lshlrev_b32 %s, 16, v170" % v(SUM[0] + r))
    for r in range(4):
        a("v_and_b32 %s, 0xffff0000, v170" % v(SUM[1] + r))
    vc = []
    for m in range(2):
        G = GRM[m]
        vc.append("v_cndmask_b32 %s, %s, %s, s[74:75]" % (v(G), v(G), v(G + 1)))
        vc.append("v_cndmask_b32 %s, %s, %s, s[74:75]" % (v(G + 2), v(G + 2), v(G + 3)))
    def both(f):
        for m in range(2): vc.append(f(GRM[m], m))
    both(lambda G, m: "v_cndmask_b32 %s, %s, %s, s[72:73]" % (v(G), v(G), v(G + 2)))
    both(lambda G, m: "v_cndmask_b32 %s, 0, %s, s[76:77]" % (v(G), v(G)))
    for sw in ("v_permlane16_swap_b32", "v_permlane32_swap_b32"):
        both(lambda G, m: "v_mov_b32 %s, %s" % (v(G + 1), v(G)))
        both(lambda G, m: "%s %s, %s" % (sw, v(G), v(G + 1)))
        both(lambda G, m: "v_add_f32 %s, %s, %s" % (v(G), v(G), v(G + 1)))
    both(lambda G, m: "v_mul_f32 %s, 0x%x, %s" % (v(G), inv, v(G)))
    both(lambda G, m: "v_fma_f32 %s, -%s, %s, %s" % (v(G), v(MEAN[m]), v(MEAN[m]), v(G)))
    both(lambda G, m: "v_max_f32 %s, 0, %s" % (v(G), v(G)))
    for op in ("add", "sqrt", "rcp"):
        both(lambda G, m: "v_cvt_pk_bf16_f32 %s, %s, %s" % (v(G), v(G), v(G)))
        both(lambda G, m: "v_and_b32 %s, 0xffff0000, %s" % (v(G), v(G)))
        if op == "add": both(lambda G, m: "v_add_f32 %s, 0x3727c5ac, %s" % (v(G), v(G)))
        elif op == "sqrt": both(lambda G, m: "v_sqrt_f32 %s, %s" % (v(G), v(G)))
        else: both(lambda G, m: "v_rcp_f32 %s, %s" % (v(vR[m]), v(G)))
    both(lambda G, m: "v_mul_f32 %s, %s, %s" % (v(vR2[m]), v(vR[m]), v(vR[m])))
    frs = [(m, ks) for ks in range(18) for m in range(2)]
    def DT(n): return 176 + 8 * (n % 4)
    def app_m(n, h):
        m, ks = frs[n]
        a("v_mfma_f32_16x16x32_bf16 %s, %s, %s, %s" % (v(DT(n) + 4 * h, 4), v(SEL + 2 - 2 * h, 4), v(X(m, ks), 4), v(SUM[m], 4)))
    def app_c(n, h):
        m, ks = frs[n]
        for d in (2 * h, 2 * h + 1):
            a("v_cvt_pk_bf16_f32 %s, %s, %s" % (v(X(m, ks) + d), v(DT(n) + 2 * d), v(DT(n) + 2 * d + 1)))
    for n in range(3):
        app_m(n, 0); app_m(n, 1)
    a("s_nop 3")
    for n in range(36):
        for h in range(2):
            app_c(n, h)
            if n + 3 < 36:
                app_m(n + 3, h)
            if vc and n >= 10:
                a(vc.pop(0))
    assert not vc

    def rd(q, bf):
        ks, nt = q >> 2, q & 3
        off = ks * 1024 + (nt >> 1) * 512
        return ["ds_read_b64_tr_b16 %s, %s offset:%d" % (v(WF(q), 2), v(vTR[bf][nt & 1]), off),
                "ds_read_b64_tr_b16 %s, %s offset:%d" % (v(WF(q) + 2, 2), v(vTR[bf][nt & 1]), off + 256)]

    def epi_tail(B, typ):
        ops = []
        if typ == "u":
            for m, sE in ((0, sEP0), (1, sEP1)):
                for kk in range(2):
                    R = TL(B, 2 * kk, m)
                    for j in range(4):
                        ops.append("v_cvt_pk_bf16_f32 %s, %s, %s" % (v(R + j), v(R + 2 * j), v(R + 2 * j + 1)))
                    if kk == 0:
                        ops.append("buffer_store_dwordx4 %s, %s, %s, %s offen sc1" % (v(R, 4), v(vL16), s(rWS, 4), s(sE)))
                    else:
                        ops.append("s_add_u32 %s, %s, 5120" % (s(sE2), s(sE)))
                        ops.append("buffer_store_dwordx4 %s, %s, %s, %s offen sc1" % (v(R, 4), v(vL16), s(rWS, 4), s(sE2)))
        elif typ == "n":
            for m in range(2):
                for r in range(16):
                    R = TL(B, 0, m) + r
                    ops.append("v_mul_f32 %s, %s, %s" % (v(R), v(vR2[m]), v(R)))
        elif typ == "q":
            for nt in range(4):
                P, Q = TL(B, nt, 0), TL(B, nt, 1)
                for r in range(4):
                    ops.append("v_mul_f32 %s, %s, %s" % (v(P + r), v(vR[0]), v(P + r)))
                    ops.append("v_mul_f32 %s, %s, %s" % (v(Q + r), v(vR[1]), v(Q + r)))
                ops.append("v_cvt_pk_bf16_f32 %s, %s, %s" % (v(P), v(P), v(P + 1)))
                ops.append("v_cvt_pk_bf16_f32 %s, %s, %s" % (v(P + 1), v(P + 2), v(P + 3)))
                ops.append("v_cvt_pk_bf16_f32 %s, %s, %s" % (v(P + 2), v(Q), v(Q + 1)))
                ops.append("v_cvt_pk_bf16_f32 %s, %s, %s" % (v(P + 3), v(Q + 2), v(Q + 3)))
                ops.append("s_nop 1")
                ops.append("v_permlane16_swap_b32 %s, %s" % (v(P), v(P + 2)))
                ops.append("v_permlane16_swap_b32 %s, %s" % (v(P + 1), v(P + 3)))
                ops.append("buffer_store_dwordx4 %s, %s, %s, %s offen offset:%d sc1" % (v(P, 4), v(vL16), s(rWS, 4), s(sEP0), nt * 1024))
        return ops

    def body(bf, ptyp):
        last = ptyp == "l"
        A, B = ACC[bf], ACC[1 - bf]
        ep = epi_tail(B, "n" if last else ptyp)
        for q in range(72):
            ks, nt = q >> 2, q & 3
            nq = q + PD
            nbf = bf if nq < 72 else 1 - bf
            r2 = rd(nq % 72, nbf)
            extra = {0: [], 1: []}
            if last and nq >= 72:
                r2 = [None, None]
            if last and nq == 71:
                extra[1].append("ds_append %s offset:%d" % (v(vCV), C_CONS))
            if nq % 24 == 0 and not (last and nq > 24):
                a("s_barrier")
            if q % 2 == 0:
                a("s_waitcnt lgkmcnt(%d)" % (min(2 * PD - 4, 2 * (70 - q) + 1) if last and q >= 64 else 2 * PD - 4))
            for m in range(2):
                T = TL(A, nt, m)
                if ks == 0 and ptyp == "u":
                    U = TL(B, nt, m)
                    for r in (0, 2):
                        a("v_pk_mul_f32 %s, %s, %s" % (v(U + r, 2), v(T + r, 2), v(U + r, 2)))
                c = "0" if ks == 0 else v(T, 4)
                a("v_mfma_f32_16x16x32_bf16 %s, %s, %s, %s" % (v(T, 4), v(WF(q), 4), v(X(m, ks), 4), c))
                if opt.get("x_halfrd", 0) and (q // opt["x_halfrd"]) % 2 == 1 and not last: r2[m] = None
                if r2[m]: a(r2[m])
                if extra[m]:
                    for l in extra[m]: a(l)
                elif q >= 6 and ep and not (m == 1 and q % 2 == 1):
                    a(ep.pop(0))
        assert not ep

    st.stamp()
    a("s_barrier")
    st.stamp()
    for q in range(PD):
        for l in rd(q, 0):
            a(l)
    a("s_mov_b32 %s, 0" % s(sI))
    a("s_mov_b32 m0, 0")
    order = [(0, "n"), (1, "u"), (1, "q"), (0, "q"), (0, "u"), (1, "n")]
    def after(bf, typ):
        st.stamp()
        if st.on: a("s_mov_b32 m0, 0")
        a("s_add_u32 %s, %s, 1" % (s(sI), s(sI)))
        a("s_cmp_le_u32 %s, %s" % (s(sI), s(sNQ)))
        a("s_cbranch_scc1 L_wasq%d" % bf)
        if typ == "q":
            a("s_waitcnt vmcnt(0)")
        a("s_cmp_eq_u32 %s, %s" % (s(sI), s(sNEED)))
        a("s_cbranch_scc1 L_b%dl" % (1 - bf))
        a("s_sub_u32 %s, %s, %s" % (s(sT0), s(sI), s(sNQ)))
        a("s_bitcmp1_b32 %s, 0" % s(sT0))
        a("s_cbranch_scc1 L_b%dn" % (1 - bf))
        a("s_add_u32 %s, %s, 1" % (s(sT0), s(sI)))
        a("s_cmp_eq_u32 %s, %s" % (s(sT0), s(sNEED)))
        a("s_cbranch_scc1 L_early%d" % bf)
        a("s_mov_b32 %s, %s" % (s(sEP0), s(sHB0)))
        a("s_mov_b32 %s, %s" % (s(sEP1), s(sHB1)))
        a("s_add_u32 %s, %s, 10240" % (s(sHB0), s(sHB0)))
        a("s_add_u32 %s, %s, 10240" % (s(sHB1), s(sHB1)))
    a("s_sub_u32 %s, %s, 1" % (s(sNEED), s(sNCH)))
    for idx, (bf, typ) in enumerate(order):
        a.label("L_b%d%s" % (bf, typ))
        body(bf, typ)
        after(bf, typ)
        if not (idx + 1 < len(order) and order[idx + 1] == (1 - bf, "u")):
            a("s_branch L_b%du" % (1 - bf))
    sQA, sQZ = 72, 73
    vG2PO, vG2PV = 2, 3
    for bf in range(2):
        a.label("L_wasq%d" % bf)
        a("s_mov_b32 %s, %s" % (s(sEP0), s(sQB)))
        a("s_add_u32 %s, %s, 4096" % (s(sQB), s(sQB)))
        a("s_branch L_b%dq" % (1 - bf))
        a.label("L_early%d" % bf)
        a("s_waitcnt vmcnt(0)")
        a("s_add_u32 %s, %s, %s" % (s(sEP0), s(sHB0), s(sJMP)))
        a("s_add_u32 %s, %s, %s" % (s(sEP1), s(sHB1), s(sJMP)))
        a("s_add_u32 %s, %s, 10240" % (s(sHB0), s(sEP0)))
        a("s_add_u32 %s, %s, 10240" % (s(sHB1), s(sEP1)))
        a("s_branch L_b%du" % (1 - bf))
    for bf in (1, 0):
        a.label("L_b%dl" % bf)
        body(bf, "l")
        st.stamp()
        tag_issue()
        a("s_mov_b32 %s, %s" % (s(sEP0), s(sHB0)))
        a("s_mov_b32 %s, %s" % (s(sEP1), s(sHB1)))
        tile_of()
        rb_lanes(vG2PO, vG2PV, F_E)
        poll(vG2PV, vG2PO)
        a("s_lshr_b32 %s, %s, 3" % (s(sQA), s(sT2)))
        a("s_lshr_b32 %s, %s, 3" % (s(sQZ), s(sT3)))
        for r in range(0, 32, 2):
            a("v_pk_mul_f32 %s, %s, %s" % (v(ACC[bf] + r, 2), v(ACC[1 - bf] + r, 2), v(ACC[bf] + r, 2)))
        for l in epi_tail(ACC[bf], "u"):
            a(l)
        a("s_mov_b32 %s, %d" % (s(sXL), LB0 + bf * BUF))
        if bf == 1:
            a("s_branch L_g2")

    a.label("L_g2")
    st.stamp()
    LEAD = opt.get("k2_lead", 1)
    P = 3
    UNR = 6
    sHB, sWB, sHO, sWOFF, sRING, sCNT, sPT, sC3, sWH = 82, 83, 84, 85, 86, 87, 88, 89, 90
    vDO = [4, 5, 7, 8]
    vG2TR = [9, 10]
    vH, vH3, vH4 = 6, 224, 225
    vAPO = 226
    vLP, vG1, vI4 = 227, 228, 229
    vLA, vGO = 230, 231
    T = [232, 233, 234, 235]
    XR = 236
    ACC0, HF0, WG0 = 16, 96, 176
    def GA(rt, nt): return ACC0 + rt * 16 + nt * 4
    def HF(i, rt): return HF0 + (i % P) * 20 + rt * 4
    def GW(i, nt): return WG0 + (i & 1) * 16 + nt * 4
    def signal_done():
        l = a.newlabel("sig")
        a("v_mov_b32 %s, %d" % (v(T[0]), C_L))
        a("v_mov_b32 %s, 1" % v(T[1]))
        a("v_mov_b32 %s, %s" % (v(T[3]), s(sFO)))
        a("s_mov_b64 exec, 1")
        a("ds_add_rtn_u32 %s, %s, %s" % (v(T[2]), v(T[0]), v(T[1])))
        a("v_mov_b32 %s, %s" % (v(vPV), s(sTAG)))
        a("s_waitcnt lgkmcnt(0)")
        a("v_readfirstlane_b32 %s, %s" % (s(sT0), v(T[2])))
        a("s_cmp_lg_u32 %s, 3" % s(sT0))
        a("s_cbranch_scc1 %s" % l)
        a("s_mov_b32 %s, 4096" % s(sT0))
        a("buffer_store_dword %s, %s, %s, %s offen sc1" % (v(vPV), v(T[3]), s(rWS, 4), s(sT0)))
        a.label(l)
        a("s_mov_b64 exec, -1")
    a("s_waitcnt lgkmcnt(0)")
    tag_check("L_tg2")
    a("s_cmp_lt_u32 %s, 2" % s(sXCD))
    a("s_cselect_b32 %s, 30, 29" % s(sT1))
    a("s_cmp_lt_u32 %s, %s" % (s(sSLOT), s(sT1)))
    a("s_cbranch_scc1 L_g2a")
    a("s_waitcnt vmcnt(0)")
    signal_done()
    a("s_branch L_fin")
    a.label("L_g2a")
    a("v_mov_b32 %s, %s" % (v(vAPO), s(sQA)))
    a("s_mov_b32 exec_lo, 0")
    a("v_mov_b32 %s, %s" % (v(vAPO), s(sQZ)))
    a("s_mov_b64 exec, -1")
    a("v_and_b32 %s, 31, %s" % (v(T[0]), v(vLANE)))
    a("v_lshl_add_u32 %s, %s, 6, %s" % (v(vAPO), v(vAPO), v(T[0])))
    a("v_lshlrev_b32 %s, 2, %s" % (v(vAPO), v(vAPO)))
    a("v_add_u32 %s, %d, %s" % (v(vAPO), F_A, v(vAPO)))
    srd(a, rW, sWD, 4608 * 576 * 2)
    srd(a, rOUT, sOUT, 2048 * 576 * 2)
    a("s_mul_i32 %s, %s, %d" % (s(sHB), s(sRT), NKS))
    a("s_add_u32 %s, %s, %s" % (s(sHB), s(sHB), s(sWAVE)))
    a("s_mul_i32 %s, %s, 5120" % (s(sHB), s(sHB)))
    if H_BASE: a("s_add_u32 %s, %s, %d" % (s(sHB), s(sHB), H_BASE))
    a("s_mul_i32 %s, %s, %d" % (s(sWOFF), s(sWAVE), 32 * 1152))
    a("s_lshl_b32 %s, %s, 7" % (s(sT0), s(sCT)))
    a("s_add_u32 %s, %s, %s" % (s(sWOFF), s(sWOFF), s(sT0)))
    a("s_mov_b32 %s, %s" % (s(sHO), s(sHB)))
    a("s_mul_i32 %s, %s, %d" % (s(sRING), s(sWAVE), QTR))
    a("s_add_u32 %s, %s, %s" % (s(sRING), s(sRING), s(sXL)))
    a("s_cmp_eq_u32 %s, %d" % (s(sRT), NRT - 1))
    a("s_cselect_b32 %s, 0x40000000, 0" % s(sT0))
    a("v_add_u32 %s, %s, %s" % (v(vH3), s(sT0), v(vH)))
    a("v_add_u32 %s, 4096, %s" % (v(vH4), v(vH3)))
    a("v_bfe_u32 %s, %s, 4, 1" % (v(vG1), v(vLANE)))
    a("v_bfe_u32 %s, %s, 2, 2" % (v(vI4), v(vLANE)))
    a("v_lshlrev_b32 %s, 1, %s" % (v(T[1]), v(vG1)))
    a("v_and_b32 %s, 3, %s" % (v(T[2]), v(vLANE)))
    a("v_xor_b32 %s, %s, %s" % (v(T[1]), v(T[1]), v(T[2])))
    a("v_lshlrev_b32 %s, 4, %s" % (v(T[1]), v(T[1])))
    a("v_lshrrev_b32 %s, 5, %s" % (v(T[3]), v(vLANE)))
    a("v_lshl_add_u32 %s, %s, 6, %s" % (v(vLP), v(T[3]), v(T[1])))
    a("v_bfe_u32 %s, %s, 2, 3" % (v(T[0]), v(vLANE)))
    a("v_mul_u32_u24 %s, 1152, %s" % (v(T[1]), v(T[0])))
    a("v_add_u32 %s, %s, %s" % (v(vDO[0]), v(T[1]), v(vLP)))
    for b in range(1, 4):
        a("v_add_u32 %s, %d, %s" % (v(vDO[b]), b * 9216, v(vDO[0])))
    a("v_lshlrev_b32 %s, 10, %s" % (v(T[3]), v(T[3])))
    a("v_lshl_add_u32 %s, %s, 6, %s" % (v(T[3]), v(T[0]), v(T[3])))
    a("v_lshl_add_u32 %s, %s, 5, %s" % (v(T[3]), v(vG1), v(T[3])))
    a("v_lshl_add_u32 %s, %s, 3, %s" % (v(T[3]), v(T[2]), v(T[3])))
    a("v_add_u32 %s, %s, %s" % (v(vG2TR[0]), s(sRING), v(T[3])))
    a("v_xor_b32 %s, 32, %s" % (v(T[3]), v(T[3])))
    a("v_add_u32 %s, %s, %s" % (v(vG2TR[1]), s(sRING), v(T[3])))
    a("v_mov_b32 %s, %d" % (v(vPA), C_CONS))
    a("s_movk_i32 %s, 256" % s(sT0))
    lds_wait("L_w1", vPA, vPV, s(sT0), 0)
    a("s_waitcnt vmcnt(4)")
    flag_wait("L_fe", vG2PV, vG2PO)
    a("v_add_u32 %s, %d, %s" % (v(vG2PO), F_L - F_E, v(vG2PO)))
    st.stamp()

    sHOp = [sHO, 74]
    def m0set(i, b):
        return "s_add_u32 m0, %s, %d" % (s(sRING), (i % P) * 4096 + b * 1024)
    def dma(b):
        return "buffer_load_dwordx4 %s, %s, %s offen lds" % (v(vDO[b]), s(rW, 4), s(sWOFF))
    def hld(i, rt, par):
        return "buffer_load_dwordx4 %s, %s, %s, %s offen offset:%d sc1" % (v(HF(i, rt), 4), v(vH4 if rt == 4 else vH3 if rt == 3 else vH), s(rWS, 4), s(sHOp[par]), (rt & 3) * 1024)
    def trd(i, nt, hf):
        return "ds_read_b64_tr_b16 %s, %s offset:%d" % (v(GW(i, nt) + 2 * hf, 2), v(vG2TR[nt & 1]), (i % P) * 4096 + (nt >> 1) * 512 + hf * 2048)
    def look(par):
        if opt.get("x_wsmall", 0) or opt.get("x_hsmall", 0):
            sg = 1 if par else -1
            return ["s_add_u32 %s, %s, %d" % (s(sWOFF), s(sWOFF), (sg if opt.get("x_wsmall", 0) else 1) * 4 * 32 * 1152),
                    "s_add_u32 %s, %s, %d" % (s(sHOp[par]), s(sHOp[1 - par]), (sg if opt.get("x_hsmall", 0) else 1) * 4 * 5120)]
        return ["s_add_u32 %s, %s, %d" % (s(sWOFF), s(sWOFF), 4 * 32 * 1152),
                "s_add_u32 %s, %s, %d" % (s(sHOp[par]), s(sHOp[1 - par]), 4 * 5120)]
    def gather(j, par):
        ops = ["s_add_u32 %s, %s, %d" % (s(sHOp[par]), s(sHB), (36 + j) * 4 * 5120),
               "s_lshl_b32 %s, %s, 7" % (s(sWOFF), s(sCT)),
               "s_lshl_b32 %s, %s, 2" % (s(sT0), s(sWAVE))]
        for b in range(2):
            U, Hh, Wr = T[0], T[1], T[2]
            ops += ["s_add_u32 %s, %s, %d" % (s(sT1), s(sT0), 16 * j + 2 * b),
                    "v_add_u32 %s, %s, %s" % (v(U), s(sT1), v(vG1)),
                    "v_mul_u32_u24 %s, 171, %s" % (v(Hh), v(U)),
                    "v_lshrrev_b32 %s, 9, %s" % (v(Hh), v(Hh)),
                    "v_mul_u32_u24 %s, 3, %s" % (v(Wr), v(Hh)),
                    "v_sub_u32 %s, %s, %s" % (v(U), v(U), v(Wr)),
                    "v_mul_u32_u24 %s, %s, %s" % (v(U), v(U), v(U)),
                    "v_mul_u32_u24 %s, 18, %s" % (v(Wr), v(Hh)),
                    "v_and_b32 %s, -4, %s" % (v(Wr), v(Wr)),
                    "v_lshl_add_u32 %s, %s, 2, %s" % (v(Wr), v(U), v(Wr)),
                    "v_add_u32 %s, %s, %s" % (v(Wr), v(Wr), v(vI4)),
                    "v_mul_u32_u24 %s, 1152, %s" % (v(Wr), v(Wr)),
                    "v_add_u32 %s, %s, %s" % (v(vDO[b]), v(Wr), v(vLP)),
                    "v_add_u32 %s, %d, %s" % (v(vDO[b + 2]), 8 * 1152, v(vDO[b]))]
        return ops
    def resid():
        return ["s_mul_i32 %s, %s, %d" % (s(sT2), s(sRT), 80 * 1152),
                "s_lshl_b32 %s, %s, 7" % (s(sT0), s(sCT)),
                "s_add_u32 %s, %s, %s" % (s(sT2), s(sT2), s(sT0)),
                "s_lshl_b32 %s, %s, 3" % (s(sT3), s(sWAVE)),
                "v_lshrrev_b32 %s, 3, %s" % (v(T[0]), v(vLANE)),
                "v_add_u32 %s, %s, %s" % (v(T[0]), s(sT3), v(T[0])),
                "v_and_b32 %s, 7, %s" % (v(T[1]), v(vLANE)),
                "v_mul_u32_u24 %s, 272, %s" % (v(T[2]), v(T[0])),
                "v_lshl_add_u32 %s, %s, 5, %s" % (v(vLA), v(T[1]), v(T[2])),
                "v_mul_u32_u24 %s, 1152, %s" % (v(T[2]), v(T[0])),
                "v_lshl_add_u32 %s, %s, 4, %s" % (v(T[2]), v(T[1]), v(T[2])),
                "v_add_u32 %s, %s, %s" % (v(vGO), s(sT2), v(T[2])),
                "s_mov_b32 %s, %d" % (s(sT0), 32 * 1152),
                "s_mov_b32 %s, %d" % (s(sT1), 64 * 1152),
                "buffer_load_dwordx4 %s, %s, %s, 0 offen" % (v(XR, 4), v(vGO), s(rX, 4)),
                "buffer_load_dwordx4 %s, %s, %s, %s offen" % (v(XR + 4, 4), v(vGO), s(rX, 4), s(sT0)),
                "buffer_load_dwordx4 %s, %s, %s, %s offen" % (v(XR + 8, 4), v(vGO), s(rX, 4), s(sT1))]
    for i in range(P):
        for b in range(4):
            a(m0set(i, b)); a("s_nop 0"); a(dma(b))
        for rt in range(5):
            a(hld(i, rt, 0))
        a("s_add_u32 %s, %s, %d" % (s(sWOFF), s(sWOFF), 4 * 32 * 1152))
        a("s_add_u32 %s, %s, %d" % (s(sHO), s(sHO), 4 * 5120))
    for r in range(80):
        a("v_mov_b32 %s, 0" % v(ACC0 + r))
    a("s_waitcnt vmcnt(%d)" % (9 * P - 4))
    for nt in range(4):
        for hf in range(2):
            a(trd(0, nt, hf))
    signal_done()
    st.stamp()
    VM = 5 + 9 * (P - 2)
    def iteration(i, pf, vm, nxt, reads=True):
        par = i & 1
        a("s_waitcnt vmcnt(%d) lgkmcnt(0)" % vm)
        rds = [trd(i + 1, nt, hf) for nt in range(4) for hf in range(2)] if reads else []
        nxt = list(nxt)
        per = (len(nxt) + 11) // 12
        for rt in range(5):
            for nt in range(4):
                if rt == 0 and pf: a(m0set(i, nt))
                a("v_mfma_f32_16x16x32_bf16 %s, %s, %s, %s" % (v(GA(rt, nt), 4), v(GW(i, nt), 4), v(HF(i, rt), 4), v(GA(rt, nt), 4)))
                if rt == 0 and pf: a(dma(nt))
                if rt >= 1 and rds:
                    a(rds.pop(0))
                if rt >= 1:
                    for k in range(per):
                        if nxt: a(nxt.pop(0))
            if pf: a(hld(i, rt, par))
        assert not nxt and not rds
    a("s_mov_b32 %s, 0" % s(sCNT))
    a.label("L_g2loop")
    st.stamp()
    for i in range(UNR):
        if i == 3:
            a("s_cmp_eq_u32 %s, 1" % s(sCNT))
            a("s_cbranch_scc1 L_hk_pl")
            a("s_cmp_eq_u32 %s, 2" % s(sCNT))
            a("s_cbranch_scc1 L_hk_cl")
            a("s_cmp_eq_u32 %s, 4" % s(sCNT))
            a("s_cbranch_scc1 L_hk_pa")
            a.label("L_hk_r")
        iteration(i, True, VM, look((i + 1) & 1))
    a("s_add_u32 %s, %s, 1" % (s(sCNT), s(sCNT)))
    a("s_cmp_lg_u32 %s, 5" % s(sCNT))
    a("s_cbranch_scc1 L_g2loop")
    st.stamp()
    for i in range(30, 42):
        t_next = i + 1 + P
        if t_next < 36: nxt = look((i + 1) & 1)
        elif t_next < 42: nxt = gather(t_next - 36, (i + 1) & 1)
        elif t_next == 42: nxt = []
        elif t_next == 43: nxt = resid()
        else: nxt = []
        if i + P == 36:
            flag_wait("L_fa", vG2PV, vAPO)
            srd(a, rW, sWO, 576 * 576 * 2)
            st.stamp()
        k = i + P - 42
        vm = VM if k <= 0 else (5 + 9 * (P - 2 - k) + 3 if k < P - 1 else 3)
        iteration(i, i + P < 42, vm, nxt, reads=i < 41)
    st.stamp()
    a("s_mul_i32 %s, %s, %d" % (s(sT2), s(sWAVE), PART))
    a("s_add_u32 %s, %s, %d" % (s(sT2), s(sT2), LB0))
    a("v_add_u32 %s, %d, %s" % (v(vLA), LB0, v(vLA)))
    a("v_and_b32 %s, 15, %s" % (v(T[0]), v(vLANE)))
    a("v_mul_u32_u24 %s, 272, %s" % (v(T[0]), v(T[0])))
    a("v_lshrrev_b32 %s, 4, %s" % (v(T[1]), v(vLANE)))
    a("v_lshl_add_u32 %s, %s, 4, %s" % (v(T[0]), v(T[1]), v(T[0])))
    a("v_add_u32 %s, %s, %s" % (v(T[0]), s(sT2), v(T[0])))
    a("v_add_u32 %s, %d, %s" % (v(T[2]), 32 * 272, v(vLA)))
    a("v_add_u32 %s, %d, %s" % (v(T[3]), 64 * 272, v(vLA)))
    a("s_waitcnt vmcnt(0) lgkmcnt(0)")
    a("s_barrier")
    for rt in range(5):
        for nt in range(4):
            a("ds_write_b128 %s, %s offset:%d" % (v(T[0]), v(GA(rt, nt), 4), rt * 16 * 272 + nt * 64))
    a("s_mov_b32 %s, %d" % (s(sT0), 32 * 1152))
    a("s_mov_b32 %s, %d" % (s(sT1), 64 * 1152))
    a("s_waitcnt lgkmcnt(0)")
    a("s_barrier")
    st.stamp()
    def red_rd(r):
        B = 96 + 32 * r
        la = (vLA, T[2], T[3])[r]
        for w in range(4):
            a("ds_read_b128 %s, %s offset:%d" % (v(B + 8 * w, 4), v(la), w * PART))
            a("ds_read_b128 %s, %s offset:%d" % (v(B + 8 * w + 4, 4), v(la), w * PART + 16))
    def red_fin(r, lg):
        B = 96 + 32 * r
        xr = XR + 4 * r
        U = 16
        for d in range(4):
            a("v_lshlrev_b32 %s, 16, %s" % (v(U + 2 * d), v(xr + d)))
            a("v_and_b32 %s, 0xffff0000, %s" % (v(U + 2 * d + 1), v(xr + d)))
        a("s_waitcnt lgkmcnt(%d)" % lg)
        for e in range(0, 8, 2):
            a("v_pk_add_f32 %s, %s, %s" % (v(B + e, 2), v(B + e, 2), v(B + 8 + e, 2)))
            a("v_pk_add_f32 %s, %s, %s" % (v(B + 16 + e, 2), v(B + 16 + e, 2), v(B + 24 + e, 2)))
        for e in range(0, 8, 2):
            a("v_pk_add_f32 %s, %s, %s" % (v(B + e, 2), v(B + e, 2), v(U + e, 2)))
        for e in range(0, 8, 2):
            a("v_pk_add_f32 %s, %s, %s" % (v(B + e, 2), v(B + e, 2), v(B + 16 + e, 2)))
        for d in range(4):
            a("v_cvt_pk_bf16_f32 %s, %s, %s" % (v(B + d), v(B + 2 * d), v(B + 2 * d + 1)))
        a("buffer_store_dwordx4 %s, %s, %s, %s offen %s" % (v(B, 4), v(vGO), s(rOUT, 4), ("0", s(sT0), s(sT1))[r], opt.get("out_flag", "")))
    red_rd(0); red_rd(1)
    red_fin(0, 8)
    a("s_cmp_ge_u32 %s, 2" % s(sWAVE))
    a("s_cbranch_scc1 L_red2")
    red_rd(2)
    red_fin(1, 8)
    red_fin(2, 0)
    a("s_branch L_fin")
    a.label("L_red2")
    red_fin(1, 0)
    a("s_branch L_fin")

    a.label("L_hk_pl")
    poll(vG2PV, vG2PO)
    a("s_branch L_hk_r")
    a.label("L_hk_cl")
    flag_wait("L_fl", vG2PV, vG2PO)
    a("s_branch L_hk_r")
    a.label("L_hk_pa")
    poll(vG2PV, vAPO)
    a("s_branch L_hk_r")

    sIC, sIG, sLB, sLBEG, sG, sO0, sKB, sP32, sCOL, sFREE = 59, 61, 62, 63, 64, 65, 66, 67, 68, 69
    vDG, vD, vCP, vCT, vPW, vPX, vTQ, vTG = 2, 3, 4, 5, 6, 7, 8, 9
    sTC, sTN = 75, 76
    sTI, sTR, sTB, sTP, sTO = 82, 83, 84, 86, 87
    a.label("L_stouch")
    a("s_cmp_ge_u32 %s, %s" % (s(sTC), s(sNCH)))
    a("s_cbranch_scc1 L_stouch_r")
    a("s_cmp_lg_u32 %s, 0" % s(sTI))
    a("s_cbranch_scc1 L_stouch2")
    a("s_cmp_lt_u32 %s, %s" % (s(sTC), s(sNQ)))
    a("s_cbranch_scc1 L_stouch_q")
    a("s_sub_u32 %s, %s, %s" % (s(sT0), s(sTC), s(sNQ)))
    a("s_lshr_b32 %s, %s, 1" % (s(sT1), s(sT0)))
    pair_of(sT1)
    a("s_bitcmp1_b32 %s, 0" % s(sT0))
    a("s_cselect_b32 %s, %s, %s" % (s(sTB), s(sWU), s(sWG)))
    a("s_cselect_b32 %s, %s, %s" % (s(sTB + 1), s(sWU + 1), s(sWG + 1)))
    a("s_movk_i32 %s, 9216" % s(sTP))
    a("s_branch L_stouch1")
    a.label("L_stouch_q")
    a("s_add_u32 %s, %s, %s" % (s(sT1), s(sTC), s(sQ0)))
    a.label("L_stouch1")
    a("s_lshl_b32 %s, %s, 7" % (s(sT1), s(sT1)))
    a("s_mul_i32 %s, %s, %s" % (s(sTO), s(sTR), s(sTP)))
    a("s_add_u32 %s, %s, %s" % (s(sTO), s(sTO), s(sT1)))
    a("s_add_u32 %s, %s, 60" % (s(sTO), s(sTO)))
    a.label("L_stouch2")
    for i in range(3):
        a("s_load_dwordx2 s[90:91], %s, %s" % (s(sTB, 2), s(sTO)))
        a("s_add_u32 %s, %s, %s" % (s(sTO), s(sTO), s(sTP)))
    a("s_add_u32 %s, %s, 1" % (s(sTI), s(sTI)))
    a("s_cmp_eq_u32 %s, 3" % s(sTI))
    a("s_cselect_b32 %s, 0, %s" % (s(sTI), s(sTI)))
    a("s_addc_u32 %s, %s, 0" % (s(sTC), s(sTC)))
    a.label("L_stouch_r")
    a("s_setpc_b64 %s" % s(sRET, 2))
    a.label("L_touch")
    a("s_cmp_ge_u32 %s, %s" % (s(sTC), s(sNCH)))
    a("s_cbranch_scc1 L_touch_r")
    a("s_mov_b64 exec, 0x1ff")
    a("s_cmp_lt_u32 %s, %s" % (s(sTC), s(sNQ)))
    a("s_cbranch_scc1 L_touch_q")
    a("s_sub_u32 %s, %s, %s" % (s(sT0), s(sTC), s(sNQ)))
    a("s_lshr_b32 %s, %s, 1" % (s(sT1), s(sT0)))
    pair_of(sT1)
    a("s_lshl_b32 %s, %s, 7" % (s(sT1), s(sT1)))
    a("s_bitcmp1_b32 %s, 0" % s(sT0))
    a("s_cselect_b32 %s, %s, %s" % (s(rX), s(sWU), s(sWG)))
    a("s_cselect_b32 %s, %s, %s" % (s(rX + 1), s(sWU + 1), s(sWG + 1)))
    a("s_mov_b32 %s, %d" % (s(rX + 2), 576 * 4608 * 2))
    a("buffer_load_dword v20, %s, %s, %s offen" % (v(vTG), s(rX, 4), s(sT1)))
    a("s_branch L_touch_e")
    a.label("L_touch_q")
    a("s_add_u32 %s, %s, %s" % (s(sT1), s(sTC), s(sQ0)))
    a("s_lshl_b32 %s, %s, 7" % (s(sT1), s(sT1)))
    a("buffer_load_dword v20, %s, %s, %s offen" % (v(vTQ), s(rX, 4), s(sT1)))
    a.label("L_touch_e")
    a("s_mov_b64 exec, -1")
    a("s_add_u32 %s, %s, 1" % (s(sTC), s(sTC)))
    a.label("L_touch_r")
    a("s_setpc_b64 %s" % s(sRET, 2))
    a.label("L_issue")
    a("s_cmp_lg_u32 %s, 0" % s(sIG))
    a("s_cbranch_scc1 L_issue2")
    a("s_bitcmp1_b32 %s, 0" % s(sIC))
    a("s_cselect_b32 %s, %d, 0" % (s(sLB), BUF))
    a("s_add_u32 %s, %s, %s" % (s(sLB), s(sLB), s(sLBEG)))
    a("s_cmp_lt_u32 %s, %s" % (s(sIC), s(sNQ)))
    a("s_cbranch_scc1 L_issueq")
    a("s_sub_u32 %s, %s, %s" % (s(sT0), s(sIC), s(sNQ)))
    a("s_lshr_b32 %s, %s, 1" % (s(sT1), s(sT0)))
    pair_of(sT1)
    a("s_lshl_b32 %s, %s, 7" % (s(sCOL), s(sT1)))
    a("s_bitcmp1_b32 %s, 0" % s(sT0))
    a("s_cselect_b32 %s, %s, %s" % (s(rW), s(sWU), s(sWG)))
    a("s_cselect_b32 %s, %s, %s" % (s(rW + 1), s(sWU + 1), s(sWG + 1)))
    a("s_mov_b32 %s, %d" % (s(rW + 2), 576 * 4608 * 2))
    a("s_mov_b32 %s, %d" % (s(sP32), 32 * 9216))
    a("v_mov_b32 %s, %s" % (v(vD), v(vDG)))
    a("s_branch L_issue2")
    a.label("L_issueq")
    a("s_add_u32 %s, %s, %s" % (s(sT1), s(sIC), s(sQ0)))
    a("s_lshl_b32 %s, %s, 7" % (s(sCOL), s(sT1)))
    a.label("L_issue2")
    if opt.get("x_nodma", 0):
        a("s_cmp_ge_u32 %s, 6" % s(sG))
        a("s_cbranch_scc1 L_issue3")
    for kb in range(3):
        a("s_mul_i32 %s, %s, %s" % (s(sO0), s(sKB), s(sP32)))
        a("s_add_u32 %s, %s, %s" % (s(sO0), s(sO0), s(sCOL)))
        a("s_add_u32 m0, %s, %d" % (s(sLB), kb * 2048))
        a("s_add_u32 %s, %s, 2" % (s(sKB), s(sKB)))
        a("buffer_load_dwordx4 %s, %s, %s offen lds" % (v(vD), s(rW, 4), s(sO0)))
        a("s_add_u32 m0, %s, %d" % (s(sLB), kb * 2048 + 1024))
        a("s_add_u32 %s, %s, %s" % (s(sO0), s(sO0), s(sP32)))
        a("buffer_load_dwordx4 %s, %s, %s offen lds" % (v(vD), s(rW, 4), s(sO0)))
        a("s_cmp_eq_u32 %s, 18" % s(sKB))
        a("s_cselect_b32 %s, 0, %s" % (s(sKB), s(sKB)))
    a.label("L_issue3")
    a("s_add_u32 %s, %s, 6144" % (s(sLB), s(sLB)))
    a("s_add_u32 %s, %s, 1" % (s(sIG), s(sIG)))
    a("s_cmp_eq_u32 %s, 3" % s(sIG))
    a("s_cselect_b32 %s, 0, %s" % (s(sIG), s(sIG)))
    a("s_addc_u32 %s, %s, 0" % (s(sIC), s(sIC)))
    a("s_add_u32 %s, %s, 1" % (s(sG), s(sG)))
    a("s_setpc_b64 %s" % s(sRET, 2))

    a.label("L_loader")
    a("s_setprio 3")
    worklist()
    a("s_lshl_b32 %s, %s, 2" % (s(sT0), s(sRB)))
    a("s_add_u32 %s, %s, %s" % (s(sT0), s(sT0), s(sW4)))
    a("s_mul_i32 %s, %s, 9" % (s(sT0), s(sT0)))
    a("s_mov_b32 %s, %s" % (s(sTR), s(sT0)))
    a("s_mov_b32 %s, 0" % s(sTI))
    a("s_movk_i32 %s, 3456" % s(sTP))
    a("v_add_u32 %s, %s, %s" % (v(vTG), s(sT0), v(vLANE)))
    a("v_mul_u32_u24 %s, 3456, %s" % (v(vTQ), v(vTG)))
    a("v_mul_u32_u24 %s, 9216, %s" % (v(vTG), v(vTG)))
    a("s_mov_b32 %s, 0" % s(sTC))
    a("s_waitcnt lgkmcnt(0)")
    srd(a, rW, sWQ, 576 * 1728 * 2)
    srd(a, rX, sWQ, 576 * 1728 * 2)
    a("s_mov_b32 %s, %s" % (s(sTB), s(sWQ)))
    a("s_mov_b32 %s, %s" % (s(sTB + 1), s(sWQ + 1)))
    for i in range(opt.get("k1_t0", 2)):
        a("s_call_b64 %s, L_touch" % s(sRET, 2))
    if opt.get("tlb", 1):
        a("s_mov_b32 s88, %s" % s(sWS)); a("s_mov_b32 s89, %s" % s(sWS + 1))
        a("s_mov_b32 %s, %s" % (s(sT0), s(sSLOT)))
        for first, ptr in ((15, sWG), (18, sWU), (21, sWD), (24, sOUT), (26, sWO)):
            a("s_sub_u32 %s, %s, %d" % (s(sT1), s(sSLOT), first))
            a("s_cselect_b32 %s, %s, %s" % (s(sT0), s(sT0), s(sT1)))
            a("s_cselect_b32 s88, s88, %s" % s(ptr))
            a("s_cselect_b32 s89, s89, %s" % s(ptr + 1))
        a("s_cmp_ge_u32 %s, 26" % s(sSLOT))
        a("s_cselect_b32 %s, 0, %s" % (s(sT0), s(sT0)))
        a("s_lshl_b32 %s, %s, 21" % (s(sT0), s(sT0)))
        a("s_cmp_lg_u32 %s, 3" % s(sW4))
        a("s_cbranch_scc1 L_notlb")
        a("s_load_dword s90, s[88:89], %s" % s(sT0))
        a.label("L_notlb")
    a("s_lshl_b32 %s, s2, 2" % s(sT0))
    a("s_add_u32 %s, %s, %s" % (s(sT0), s(sT0), s(sW4)))
    a("s_cmp_lg_u32 %s, 0" % s(sT0))
    a("s_cbranch_scc1 L_notag")
    a("v_mov_b32 %s, 0" % v(vT[2]))
    a("s_or_b32 s88, s92, 1")
    a("v_mov_b32 %s, s88" % v(vT[3]))
    a("s_mov_b64 exec, 1")
    a("global_store_dword %s, %s, %s sc1" % (v(vT[2]), v(vT[3]), s(sDBG, 2)))
    a("s_mov_b64 exec, -1")
    a.label("L_notag")
    a("s_setprio %d" % opt.get("ld_prio", 0))
    a("v_mov_b32 %s, 0" % v(vT[2]))
    a("v_lshlrev_b32 %s, 2, %s" % (v(vT[3]), v(vLANE)))
    a("ds_write_b32 %s, %s offset:%d" % (v(vT[3]), v(vT[2]), CNT))
    srd(a, rWS, sWS, WS_BYTES)
    a("v_bfe_u32 %s, %s, 2, 3" % (v(vT[5]), v(vLANE)))
    a("s_lshl_b32 %s, %s, 3" % (s(sT0), s(sW4)))
    a("v_add_u32 %s, %s, %s" % (v(vT[5]), s(sT0), v(vT[5])))
    a("s_and_b32 %s, %s, 1" % (s(sT0), s(sW4)))
    a("s_lshl_b32 %s, %s, 1" % (s(sT0), s(sT0)))
    a("v_and_b32 %s, 3, %s" % (v(vT[6]), v(vLANE)))
    a("v_xor_b32 %s, %s, %s" % (v(vT[6]), s(sT0), v(vT[6])))
    a("v_lshlrev_b32 %s, 4, %s" % (v(vT[6]), v(vT[6])))
    a("v_lshrrev_b32 %s, 5, %s" % (v(vT[7]), v(vLANE)))
    a("v_lshl_add_u32 %s, %s, 6, %s" % (v(vT[6]), v(vT[7]), v(vT[6])))
    a("v_mul_u32_u24 %s, 3456, %s" % (v(vD), v(vT[5])))
    a("v_add_u32 %s, %s, %s" % (v(vD), v(vD), v(vT[6])))
    a("v_mul_u32_u24 %s, 9216, %s" % (v(vDG), v(vT[5])))
    a("v_add_u32 %s, %s, %s" % (v(vDG), v(vDG), v(vT[6])))
    a("s_mov_b32 %s, %d" % (s(sP32), 32 * 3456))
    a("s_mov_b32 %s, 0" % s(sIC))
    a("s_mov_b32 %s, 0" % s(sIG))
    a("s_mov_b32 %s, 0" % s(sG))
    a("s_lshl_b32 %s, %s, 1" % (s(sKB), s(sROT)))
    a("s_mul_i32 %s, %s, %d" % (s(sLBEG), s(sW4), QTR))
    a("s_add_u32 %s, %s, %d" % (s(sLBEG), s(sLBEG), LB0))
    PFM = opt.get("k1_pfm", 11)
    sPM, sPMO, sPMW = 72, 73, 74
    rPD = 28
    srd(a, rWO, sWO, 576 * 576 * 2)
    srd(a, rPD, sWD, 4608 * 576 * 2)
    a("v_lshlrev_b32 %s, 7, %s" % (v(vPX), v(vLANE)))
    a("s_lshl_b32 %s, s2, 2" % s(sT0))
    a("s_add_u32 %s, %s, %s" % (s(sT0), s(sT0), s(sW4)))
    a("s_mul_i32 %s, %s, %d" % (s(sPMO), s(sT0), 41 * 128))
    a("s_mul_i32 %s, %s, %d" % (s(sPMW), s(sT0), 6 * 128))
    TR0, TRP, TRN = opt.get("k1_tr", (0, 9, 0))
    a("s_mov_b32 %s, %d" % (s(sTN), TR0))
    a("v_mov_b32 v22, 0")
    a("v_mov_b32 v23, 0")
    def issue():
        a("s_call_b64 %s, L_issue" % s(sRET, 2))
    def publish(off):
        own_flag(sT0)
        a("v_mov_b32 %s, %s" % (v(vT[0]), s(sT0)))
        a("v_mov_b32 %s, %s" % (v(vT[1]), s(sTAG)))
        a("s_mov_b32 %s, %d" % (s(sT0), off))
        a("s_mov_b64 exec, 1")
        a("buffer_store_dword %s, %s, %s, %s offen sc1" % (v(vT[1]), v(vT[0]), s(rWS, 4), s(sT0)))
        a("s_mov_b64 exec, -1")
    a("s_waitcnt lgkmcnt(0)")
    ST0, STP = opt.get("k1_st", (0, 0))
    st.stamp()
    for i in range(ST0):
        a("s_call_b64 %s, L_stouch" % s(sRET, 2))
    a("s_barrier")
    issue(); issue()
    for i in range(opt.get("k1_st1", 0)):
        a("s_call_b64 %s, L_stouch" % s(sRET, 2))
    a("s_waitcnt vmcnt(6)")
    a("s_barrier")
    issue(); issue()
    a("s_waitcnt vmcnt(12)")
    a("s_barrier")
    issue(); issue()
    a.label("L_ld")
    a("s_waitcnt vmcnt(18)")
    if opt.get("diag_ld", 0): st.stamp()
    a("s_barrier")
    issue()
    for i in range(STP):
        a("s_call_b64 %s, L_stouch" % s(sRET, 2))
    if TRN:
        a("s_cmp_lg_u32 %s, %s" % (s(sG), s(sTN)))
        a("s_cbranch_scc1 L_notr")
        a("s_add_u32 %s, %s, %d" % (s(sTN), s(sTN), TRP))
        for i in range(TRN):
            a("s_call_b64 %s, L_touch" % s(sRET, 2))
        a.label("L_notr")
    a("s_cmp_lg_u32 %s, 8" % s(sG))
    a("s_cbranch_scc1 L_notg")
    a("global_load_dword v22, v23, %s" % s(sDBG, 2))
    a.label("L_notg")
    a("s_lshl_b32 %s, %s, 8" % (s(sT0), s(sW4)))
    a("s_add_u32 %s, %s, %s" % (s(sT0), s(sT0), s(sG)))
    a("s_mul_i32 %s, %s, 3" % (s(sT1), s(sNQ)))
    a("s_add_u32 %s, %s, 10" % (s(sT1), s(sT1)))
    a("s_cmp_lg_u32 %s, %s" % (s(sT0), s(sT1)))
    a("s_cbranch_scc1 L_noq")
    a("v_readfirstlane_b32 %s, v22" % s(sTAG))
    tag_check("L_tg4")
    publish(F_Q - F_E)
    a.label("L_noq")
    a("s_cmp_lt_u32 %s, %s" % (s(sG), s(sNG)))
    a("s_cbranch_scc1 L_ld")
    a("v_readfirstlane_b32 %s, v22" % s(sTAG))
    tag_check("L_tg3")
    a("s_cmp_lg_u32 %s, 0" % s(sW4))
    a("s_cbranch_scc1 L_noe")
    publish(0)
    a.label("L_noe")
    a("s_mov_b64 exec, -1")
    a("s_mov_b32 exec_hi, 0x1ff")
    a("buffer_load_dword v20, %s, %s, %s offen" % (v(vPX), s(rPD, 4), s(sPMO)))
    a("s_mov_b64 exec, 63")
    a("buffer_load_dword v21, %s, %s, %s offen" % (v(vPX), s(rWO, 4), s(sPMW)))
    a("s_mov_b64 exec, -1")
    a("s_waitcnt vmcnt(20)")
    a("s_barrier")
    a("s_waitcnt vmcnt(14)")
    a("s_barrier")
    NL2 = opt.get("k1_l2", 0)
    if NL2:
        a("s_lshl_b32 %s, %s, 2" % (s(sT0), s(sSLOT)))
        a("s_add_u32 %s, %s, %s" % (s(sT0), s(sT0), s(sW4)))
        a("s_lshl_b32 %s, %s, 13" % (s(sT0), s(sT0)))
        for i in range(NL2):
            a("buffer_load_dword v20, %s, %s, %s offen" % (v(vPX), s(rPD, 4), s(sT0)))
            a("s_add_u32 %s, %s, %d" % (s(sT0), s(sT0), 1 << 20))
    T = [10, 11, 12, 13, 14, 9]
    a("v_lshrrev_b32 %s, 4, %s" % (v(T[0]), v(vLANE)))
    a("s_lshl_b32 %s, %s, 1" % (s(sT0), s(sXCD)))
    a("s_sub_u32 %s, %s, 2" % (s(sT0), s(sT0)))
    a("v_add_u32 %s, %s, %s" % (v(T[0]), s(sT0), v(T[0])))
    a("v_max_i32 %s, 0, %s" % (v(T[0]), v(T[0])))
    a("v_and_b32 %s, 15, %s" % (v(T[4]), v(vLANE)))
    a("v_lshl_add_u32 %s, %s, 6, %s" % (v(T[0]), v(T[0]), v(T[4])))
    a("v_lshlrev_b32 %s, 2, %s" % (v(T[0]), v(T[0])))
    a("v_add_u32 %s, %d, %s" % (v(T[0]), F_Q, v(T[0])))
    poll(T[1], T[0])
    a("s_waitcnt vmcnt(%d)" % (3 + NL2))
    a("s_barrier")

    a.label("L_attn")
    a("s_setprio %d" % opt.get("a_prio0", 3))
    st.stamp()
    sA, sCG0, sSFT, sMIN, sOB, sAB, sQT, sRT16 = sW4, 4, 5, 6, 7, 8, 9, 10
    a("s_bitcmp1_b32 %s, 0" % s(sNCH))
    a("s_cselect_b32 %s, %d, 0" % (s(sAB), BUF))
    a("s_add_u32 %s, %s, %d" % (s(sAB), s(sAB), LB0))
    a("s_waitcnt vmcnt(0) lgkmcnt(0)")
    flag_wait("L_fq", T[1], T[0])
    st.stamp()
    sM = [52 + 2 * r for r in range(16)]
    sK = [84 + 2 * i for i in range(8)]
    vL16, vKB, vVB, vOOFF, vNINF, vOL = 2, 3, 4, 5, 6, 7
    vMX, vMX2, vC = 224, 226, 228
    S0, O0, Q0, KF0, VF0 = 16, 160, 176, 192, 208
    def SR(t): return S0 + 16 * t
    a("s_mul_i32 %s, %s, 18" % (s(sT0), s(sSLOT)))
    a("s_lshr_b32 %s, %s, 4" % (s(sCG0), s(sT0)))
    a("s_and_b32 %s, %s, 15" % (s(sSFT), s(sT0)))
    a("v_lshlrev_b32 %s, 4, %s" % (v(vL16), v(vLANE)))
    for j in range(4):
        a("s_lshl_b32 %s, %s, 3" % (s(sT0), s(sXCD)))
        a("s_lshl_b32 %s, %s, 2" % (s(sT1), s(sA)))
        a("s_add_u32 %s, %s, %d" % (s(sT1), s(sT1), j))
        a("s_add_u32 %s, %s, %s" % (s(sT0), s(sT0), s(sT1)))
        a("s_sub_i32 %s, %s, 8" % (s(sT0), s(sT0)))
        a("s_max_i32 %s, %s, 0" % (s(sT0), s(sT0)))
        a("s_mul_i32 %s, %s, 108" % (s(sT0), s(sT0)))
        a("s_add_u32 %s, %s, %s" % (s(sT0), s(sT0), s(sCG0)))
        a("s_lshl_b32 %s, %s, 10" % (s(sT0), s(sT0)))
        a("s_add_u32 %s, %s, %d" % (s(sT2), s(sT0), QKV_BASE + 36 * 1024))
        a("s_add_u32 %s, %s, %d" % (s(sT3), s(sT0), QKV_BASE + 72 * 1024))
        a("s_lshl_b32 %s, %s, 12" % (s(sT1), s(sT1)))
        a("s_add_u32 m0, %s, %s" % (s(sT1), s(sAB)))
        a("s_add_u32 %s, %s, 2048" % (s(sT1), s(sT1)))
        a("buffer_load_dwordx4 %s, %s, %s offen sc1 lds" % (v(vL16), s(rWS, 4), s(sT2)))
        a("buffer_load_dwordx4 %s, %s, %s offen offset:1024 sc1 lds" % (v(vL16), s(rWS, 4), s(sT2)))
        a("s_add_u32 m0, %s, %s" % (s(sT1), s(sAB)))
        a("s_nop 0")
        a("buffer_load_dwordx4 %s, %s, %s offen sc1 lds" % (v(vL16), s(rWS, 4), s(sT3)))
        a("buffer_load_dwordx4 %s, %s, %s offen offset:1024 sc1 lds" % (v(vL16), s(rWS, 4), s(sT3)))
    a("s_lshl_b32 %s, %s, 3" % (s(sT0), s(sXCD)))
    a("s_lshl_b32 %s, %s, 1" % (s(sT1), s(sA)))
    a("s_add_u32 %s, %s, %s" % (s(sT0), s(sT0), s(sT1)))
    a("s_lshl_b32 %s, %s, 1" % (s(sRT16), s(sT0)))
    a("s_mul_i32 %s, %s, 108" % (s(sT0), s(sT0)))
    a("s_add_u32 %s, %s, %s" % (s(sT0), s(sT0), s(sCG0)))
    a("s_lshl_b32 %s, %s, 10" % (s(sT0), s(sT0)))
    a("s_add_u32 %s, %s, %d" % (s(sT0), s(sT0), QKV_BASE))
    a("s_add_u32 %s, %s, %d" % (s(sT1), s(sT0), 108 * 1024))
    for qt in range(2):
        for p in range(2):
            a("buffer_load_dwordx4 %s, %s, %s, %s offen offset:%d sc1" % (v(Q0 + 8 * qt + 4 * p, 4), v(vL16), s(rWS, 4), s(sT0 + qt), 1024 * p))
    a("v_lshrrev_b32 %s, 5, %s" % (v(T[0]), v(vLANE)))
    a("v_lshlrev_b32 %s, 2, %s" % (v(T[0]), v(T[0])))
    a("v_and_b32 %s, 31, %s" % (v(T[1]), v(vLANE)))
    a("v_sub_u32 %s, %s, %s" % (v(T[2]), v(T[1]), v(T[0])))
    for r in range(16):
        a("v_cmp_le_i32 %s, %d, %s" % (s(sM[r], 2), (r & 3) + 8 * (r >> 2), v(T[2])))
    a("v_lshlrev_b32 %s, 1, %s" % (v(T[2]), v(T[0])))
    a("v_subrev_u32 %s, %s, %s" % (v(T[2]), s(sSFT), v(T[2])))
    for p in range(2):
        for dw in range(4):
            a("v_add_u32 %s, %d, %s" % (v(T[3]), 16 * p + 2 * dw, v(T[2])))
            a("v_cmp_gt_u32 %s, 18, %s" % (s(sK[4 * p + dw], 2), v(T[3])))
    a("s_lshl_b32 %s, %s, 13" % (s(sT2), s(sA)))
    a("s_add_u32 %s, %s, %s" % (s(sT2), s(sT2), s(sAB)))
    a("v_add_u32 %s, %s, %s" % (v(vKB), s(sT2), v(vL16)))
    a("s_lshr_b32 %s, %s, 2" % (s(sT3), s(sSFT)))
    a("v_bfe_u32 %s, %s, 4, 1" % (v(T[3]), v(vLANE)))
    a("v_and_b32 %s, 3, %s" % (v(T[4]), v(vLANE)))
    a("v_lshl_add_u32 %s, %s, 2, %s" % (v(T[3]), v(T[3]), v(T[4])))
    a("v_min_u32 %s, 5, %s" % (v(T[3]), v(T[3])))
    a("v_add_u32 %s, %s, %s" % (v(T[3]), s(sT3), v(T[3])))
    a("v_bfe_u32 %s, %s, 1, 2" % (v(T[4]), v(T[3])))
    a("v_lshlrev_b32 %s, 9, %s" % (v(T[4]), v(T[4])))
    a("v_and_b32 %s, 1, %s" % (v(T[3]), v(T[3])))
    a("v_lshl_add_u32 %s, %s, 3, %s" % (v(T[3]), v(T[3]), v(T[4])))
    a("v_bfe_u32 %s, %s, 2, 2" % (v(T[4]), v(vLANE)))
    a("v_add_u32 %s, %s, %s" % (v(T[4]), v(T[4]), v(T[0])))
    a("v_lshl_add_u32 %s, %s, 4, %s" % (v(T[3]), v(T[4]), v(T[3])))
    a("v_add_u32 %s, %s, %s" % (v(vVB), s(sT2), v(T[3])))
    a("s_mul_i32 %s, %s, 3" % (s(sT0), s(sSLOT)))
    a("v_lshrrev_b32 %s, 5, %s" % (v(T[3]), v(vLANE)))
    a("v_add_u32 %s, %s, %s" % (v(T[3]), s(sT0), v(T[3])))
    a("v_lshrrev_b32 %s, 2, %s" % (v(T[4]), v(T[3])))
    a("v_mul_u32_u24 %s, 5120, %s" % (v(T[4]), v(T[4])))
    a("v_and_b32 %s, 3, %s" % (v(T[3]), v(T[3])))
    a("v_lshl_add_u32 %s, %s, 8, %s" % (v(T[3]), v(T[3]), v(T[4])))
    a("v_and_b32 %s, 15, %s" % (v(T[4]), v(vLANE)))
    a("v_lshl_add_u32 %s, %s, 4, %s" % (v(vOL), v(T[4]), v(T[3])))
    a("s_add_u32 %s, %s, 2" % (s(sT1), s(sT0)))
    a("s_lshr_b32 %s, %s, 2" % (s(sOB), s(sT1)))
    a("s_lshr_b32 %s, %s, 2" % (s(sMIN), s(sT0)))
    a("s_sub_u32 %s, %s, %s" % (s(sOB), s(sOB), s(sMIN)))
    a("s_mul_i32 %s, %s, %d" % (s(sOB), s(sOB), 5120 - 1024))
    a("s_add_u32 %s, %s, %d" % (s(sOB), s(sOB), H_BASE + 144 * 5120 + 512))
    a("v_mov_b32 %s, 0xff800000" % v(vNINF))
    a("v_mov_b32 %s, 0x%x" % (v(vC), fbits(18 ** -0.5 * math.log2(math.e))))
    a("s_add_u32 %s, %s, 5" % (s(sT3), s(sT3)))
    a("s_bfe_u32 %s, %s, 0x20001" % (s(sT0), s(sT3)))
    a("s_lshl_b32 %s, %s, 9" % (s(sT0), s(sT0)))
    a("s_and_b32 %s, %s, 1" % (s(sT1), s(sT3)))
    a("s_lshl_b32 %s, %s, 3" % (s(sT1), s(sT1)))
    a("s_add_u32 %s, %s, %s" % (s(sT0), s(sT0), s(sT1)))
    a("s_lshl_b32 %s, %s, 14" % (s(sT1), s(sA)))
    a("s_add_u32 %s, %s, %s" % (s(sT0), s(sT0), s(sT1)))
    a("s_add_u32 %s, %s, %s" % (s(sT0), s(sT0), s(sAB)))
    a("s_add_u32 %s, %s, 2048" % (s(sT0), s(sT0)))
    a("v_lshlrev_b32 %s, 4, %s" % (v(T[3]), v(T[1])))
    a("v_add3_u32 %s, %s, %s, %s" % (v(T[3]), v(T[3]), v(T[0]), s(sT0)))
    a("v_mov_b32 %s, 0x3f803f80" % v(T[4]))
    a("v_mov_b32 %s, %d" % (v(T[5]), C_A0))
    a("v_mov_b32 %s, 1" % v(vMX))
    a("s_lshl_b32 %s, %s, 1" % (s(sMIN), s(sA)))
    a("s_sub_u32 %s, 8, %s" % (s(sMIN), s(sMIN)))
    a("s_cmp_lg_u32 %s, 0" % s(sXCD))
    a("s_cselect_b32 %s, 0, %s" % (s(sMIN), s(sMIN)))
    a("s_waitcnt vmcnt(0)")
    for j in range(4):
        a("ds_write_b32 %s, %s offset:%d" % (v(T[3]), v(T[4]), j * 4096))
    a("s_mov_b64 exec, 1")
    a("ds_add_u32 %s, %s" % (v(T[5]), v(vMX)))
    a("s_mov_b64 exec, -1")
    for qt in range(2):
        for i in range(8):
            a("v_cndmask_b32 %s, 0, %s, %s" % (v(Q0 + 8 * qt + i), v(Q0 + 8 * qt + i), s(sK[i], 2)))
    a("s_bitcmp1_b32 %s, 0" % s(sSLOT))
    a("s_cselect_b32 %s, 0, -1" % s(sK[0]))
    a("s_mov_b32 %s, -1" % s(sK[0] + 1))
    a("s_cselect_b64 %s, -1, 0" % s(sK[1], 2))
    a("s_mov_b32 %s, 0" % s(sQT))
    lds_wait("L_wa", T[5], vMX, "4", 1)
    a("s_setprio %d" % opt.get("a_prio", 0))
    a.label("L_aq")
    st.stamp()
    Q = Q0
    def krd(t):
        for p in range(2):
            a("ds_read_b128 %s, %s offset:%d" % (v(KF0 + 8 * (t & 1) + 4 * p, 4), v(vKB), t * 4096 + 1024 * p))
    def vrd(t):
        for hf in range(2):
            for aa in range(2):
                a("ds_read_b64_tr_b16 %s, %s offset:%d" % (v(VF0 + 8 * (t & 1) + 4 * hf + 2 * aa, 2), v(vVB), t * 4096 + 2048 + hf * 256 + aa * 128))
    def mx(t, first=False):
        R = SR(t)
        for i in range(0, 16, 4):
            if first and i == 0:
                a("v_max_f32 %s, %s, %s" % (v(vMX), v(R), v(R + 1)))
                a("v_max_f32 %s, %s, %s" % (v(vMX2), v(R + 2), v(R + 3)))
            else:
                a("v_max3_f32 %s, %s, %s, %s" % (v(vMX), v(R + i), v(R + i + 1), v(vMX)))
                a("v_max3_f32 %s, %s, %s, %s" % (v(vMX2), v(R + i + 2), v(R + i + 3), v(vMX2)))
    def fix(t):
        if t == 0:
            for r in range(16):
                a("v_cndmask_b32 %s, %s, %s, %s" % (v(SR(0) + r), v(SR(0) + r), v(vNINF), s(sM[r], 2)))
        if t == 8:
            for r in range(16):
                a("v_cndmask_b32 %s, %s, %s, %s" % (v(SR(8) + r), v(vNINF), v(SR(8) + r), s(sM[r], 2)))
        else:
            l = a.newlabel("inv")
            a("s_cmp_le_u32 %s, %d" % (s(sMIN), t))
            a("s_cbranch_scc1 %s" % l)
            for r in range(16):
                a("v_mov_b32 %s, %s" % (v(SR(t) + r), v(vNINF)))
            a.label(l)
        mx(t, t == 0)
    krd(0)
    for t in range(9):
        if t < 8:
            krd(t + 1)
            a("s_waitcnt lgkmcnt(2)")
        else:
            a("s_waitcnt lgkmcnt(0)")
        kf = KF0 + 8 * (t & 1)
        a("v_mfma_f32_32x32x16_bf16 %s, %s, %s, 0" % (v(SR(t), 16), v(kf, 4), v(Q, 4)))
        a("v_mfma_f32_32x32x16_bf16 %s, %s, %s, %s" % (v(SR(t), 16), v(kf + 4, 4), v(Q + 4, 4), v(SR(t), 16)))
        if t == 2:
            a("s_nop 1")
        if t >= 2:
            fix(t - 2)
    vrd(0)
    vrd(1)
    fix(7)
    fix(8)
    a("v_max_f32 %s, %s, %s" % (v(vMX), v(vMX), v(vMX2)))
    a("v_mov_b32 %s, %s" % (v(vMX2), v(vMX)))
    a("s_nop 1")
    a("v_permlane32_swap_b32 %s, %s" % (v(vMX), v(vMX2)))
    a("s_nop 1")
    a("v_max_f32 %s, %s, %s" % (v(vMX), v(vMX), v(vMX2)))
    a("v_mul_f32 %s, -%s, %s" % (v(vMX), v(vC), v(vMX)))
    for t in range(9):
        R = SR(t)
        for r in range(0, 16, 2):
            a("v_pk_fma_f32 %s, %s, %s, %s op_sel_hi:[1,0,0]" % (v(R + r, 2), v(R + r, 2), v(vC, 2), v(vMX, 2)))
        for r in range(16):
            a("v_exp_f32 %s, %s" % (v(R + r), v(R + r)))
        a("s_nop 0")
        for j in range(8):
            a("v_cvt_pk_bf16_f32 %s, %s, %s" % (v(R + j), v(R + 2 * j), v(R + 2 * j + 1)))
        a("s_waitcnt lgkmcnt(%d)" % (4 if t < 8 else 0))
        a("s_nop 0")
        vf = VF0 + 8 * (t & 1)
        c = "0" if t == 0 else v(O0, 16)
        a("v_mfma_f32_32x32x16_bf16 %s, %s, %s, %s" % (v(O0, 16), v(vf, 4), v(R, 4), c))
        a("v_mfma_f32_32x32x16_bf16 %s, %s, %s, %s" % (v(O0, 16), v(vf + 4, 4), v(R + 4, 4), v(O0, 16)))
        if t + 2 < 9:
            vrd(t + 2)
    a("v_bfe_u32 %s, %s, 4, 1" % (v(T[1]), v(vLANE)))
    a("v_add_u32 %s, %s, %s" % (v(T[1]), s(sRT16), v(T[1])))
    a("v_mul_u32_u24 %s, 205, %s" % (v(T[2]), v(T[1])))
    a("v_lshrrev_b32 %s, 10, %s" % (v(T[2]), v(T[2])))
    a("v_mul_u32_u24 %s, %d, %s" % (v(T[2]), NKS * 5 - 5, v(T[2])))
    a("v_add_u32 %s, %s, %s" % (v(T[1]), v(T[1]), v(T[2])))
    a("v_lshl_add_u32 %s, %s, 10, %s" % (v(vOOFF), v(T[1]), v(vOL)))
    for i in range(8):
        a("v_mov_b32 %s, %s" % (v(Q0 + i), v(Q0 + 8 + i)))
    a("v_add_u32 %s, 4096, %s" % (v(vKB), v(vKB)))
    a("v_add_u32 %s, 4096, %s" % (v(vVB), v(vVB)))
    a("s_add_u32 %s, %s, 2" % (s(sRT16), s(sRT16)))
    a("s_sub_u32 %s, %s, 1" % (s(sMIN), s(sMIN)))
    a("s_cselect_b32 %s, 0, %s" % (s(sMIN), s(sMIN)))
    a("v_rcp_f32 %s, %s" % (v(T[0]), v(O0 + 12)))
    a("s_nop 0")
    for r in range(12):
        a("v_mul_f32 %s, %s, %s" % (v(O0 + r), v(O0 + r), v(T[0])))
    for j in range(6):
        a("v_cvt_pk_bf16_f32 %s, %s, %s" % (v(O0 + j), v(O0 + 2 * j), v(O0 + 2 * j + 1)))
    a("v_cndmask_b32 %s, 0, %s, %s" % (v(O0), v(O0), s(sK[0], 2)))
    a("v_cndmask_b32 %s, 0, %s, %s" % (v(O0 + 5), v(O0 + 5), s(sK[1], 2)))
    a("v_mov_b32 %s, 0" % v(O0 + 6))
    a("v_mov_b32 %s, 0" % v(O0 + 7))
    a("s_setprio 3")
    a("s_mov_b32 %s, %d" % (s(sT0), H_BASE + 144 * 5120))
    a("buffer_store_dwordx4 %s, %s, %s, %s offen sc1" % (v(O0, 4), v(vOOFF), s(rWS, 4), s(sT0)))
    a("s_mov_b32 exec_hi, 0")
    a("buffer_store_dwordx4 %s, %s, %s, %s offen sc1" % (v(O0 + 4, 4), v(vOOFF), s(rWS, 4), s(sOB)))
    a("s_mov_b64 exec, -1")
    a("s_setprio %d" % opt.get("a_prio", 0))
    a("s_add_u32 %s, %s, 1" % (s(sQT), s(sQT)))
    a("s_cmp_lt_u32 %s, 2" % s(sQT))
    a("s_cbranch_scc1 L_aq")
    a("s_setprio 3")
    st.stamp()
    a("s_waitcnt vmcnt(0)")
    st.stamp()
    a("v_mov_b32 %s, %d" % (v(T[0]), C_A1))
    a("v_mov_b32 %s, 1" % v(T[1]))
    a("s_lshl_b32 %s, %s, 6" % (s(sT1), s(sXCD)))
    a("s_add_u32 %s, %s, %s" % (s(sT1), s(sT1), s(sSLOT)))
    a("s_lshl_b32 %s, %s, 2" % (s(sT1), s(sT1)))
    a("s_add_u32 %s, %s, %d" % (s(sT1), s(sT1), F_A))
    a("v_mov_b32 %s, %s" % (v(T[3]), s(sT1)))
    a("v_mov_b32 %s, %s" % (v(T[4]), s(sTAG)))
    a("s_mov_b64 exec, 1")
    a("ds_add_rtn_u32 %s, %s, %s" % (v(T[2]), v(T[0]), v(T[1])))
    a("s_waitcnt lgkmcnt(0)")
    a("v_readfirstlane_b32 %s, %s" % (s(sT0), v(T[2])))
    a("s_cmp_lg_u32 %s, 3" % s(sT0))
    a("s_cbranch_scc1 L_fin")
    a("buffer_store_dword %s, %s, %s, 0 offen sc1" % (v(T[4]), v(T[3]), s(rWS, 4)))
    a.label("L_fin")
    if opt.get("x_hold", 0):
        a("s_cmp_ge_u32 %s, 4" % s(sWAVE))
        a("s_cbranch_scc1 L_hold_e")
        a.label("L_hold")
        a("s_memrealtime s[100:101]")
        a("s_waitcnt lgkmcnt(0)")
        a("s_sub_u32 s100, s100, %s" % s(sTAG))
        a("s_cmp_lt_u32 s100, %d" % opt["x_hold"])
        a("s_cbranch_scc1 L_hold")
        a.label("L_hold_e")
    if st.on:
        a("s_mov_b64 exec, -1")
        a("v_mov_b32 v0, %s" % v(vLANE))
        a("s_waitcnt vmcnt(0)")
    st.stamp(); st.stamp(True); st.dump(sWAVE, sWS, 254)
    a.label("L_end")
    a("s_endpgm")
    a.label("L_code_end")
    return a.text(), kdesc(F_NAME, 256, 102)
```

```python
from common import *
import math, struct

F_NAME = "parallel_sum__sliding_block__glu_gated_bilinear__prompt_kernel"
BUF = 73728
QTR = 18432
CNT = 0
LB0 = 4096
C_E, C_L, C_A0, C_A1, C_GO, C_TAG = CNT + 32, CNT + 36, CNT + 40, CNT + 44, CNT + 48, CNT + 52
C_PROD = CNT + 256
C_CONS = CNT + 64
SPARE = LB0 + 2 * BUF
F_LDS = SPARE + 8192
PART = 21760
F_E, F_A, F_Q = FL_BASE, FL_BASE + 16384, FL_BASE + 12288
SPIN = 100000

def fbits(x):
    return struct.unpack("<I", struct.pack("<f", x))[0]

def gen_f2(opt):
    global BUF, QTR
    if opt.get("x_oldlayout", 0):
        BUF, QTR = 18432, 36864
    a = Asm()
    a.raw(khead(F_NAME))
    sX, sWQ, sWG, sWU, sDBG, sWS, sWO, sWD, sOUT = 4, 6, 8, 10, 12, 14, 44, 48, 50
    rX, rW, rWO, rOUT, rWS = 16, 20, 24, 28, 32
    sWAVE, sW4, sXCD, sSLOT = 36, 37, 38, 39
    sT0, sT1, sT2, sT3 = 40, 41, 42, 43
    sSPIN = 47
    sRET = 98
    sRB, sCG, sROT, sNQ, sNP, sQ0, sP0, sNCH, sNG = 52, 53, 54, 55, 56, 57, 58, 60, 71
    vLANE = 1

    a("s_cmp_ge_u32 s2, 256")
    a("s_cbranch_scc1 L_end")
    a("s_load_dwordx4 s[4:7], s[0:1], %d" % KA_X)
    a("s_load_dwordx4 s[8:11], s[0:1], %d" % KA_WG)
    a("s_load_dwordx4 s[12:15], s[0:1], %d" % KA_DBG)
    a("s_load_dwordx2 s[44:45], s[0:1], %d" % KA_WO)
    a("s_load_dwordx4 s[48:51], s[0:1], %d" % KA_WD)
    a("s_memrealtime s[92:93]")
    if opt.get("code_pf", 1):
        a("s_getpc_b64 s[96:97]")
        a("s_lshr_b32 s3, s2, 3")
        a("s_lshl_b32 s3, s3, 11")
        a("v_lshl_add_u32 v14, v0, 7, s3")
        a("v_min_u32 v14, L_code_end-%s-192, v14" % F_NAME)
        a("v_cmp_gt_u32 vcc, 16, v0")
        a("s_and_saveexec_b64 s[88:89], vcc")
        a("s_cbranch_execz L_nocpf")
        a("global_load_dword v255, v14, s[96:97]")
        a.label("L_nocpf")
        a("s_mov_b64 exec, s[88:89]")
    st = Stamper(a, opt.get("diag", 0), 15, 100, 0, scnt=46)
    st.init(); st.stamp(True); st.stamp()
    vT = list(range(236, 252))
    a("v_and_b32 %s, 63, v0" % v(vLANE))
    a("v_lshrrev_b32 %s, 6, v0" % v(vT[0]))
    a("s_and_b32 %s, s2, 7" % s(sXCD))
    a("s_lshr_b32 %s, s2, 3" % s(sSLOT))
    a("v_readfirstlane_b32 %s, %s" % (s(sWAVE), v(vT[0])))
    LR = opt.get("k1_lrb", 3)
    RBX, CGX = 1 << LR, 32 >> LR
    sRBL = 79
    a("s_and_b32 %s, %s, %d" % (s(sRBL), s(sSLOT), RBX - 1))
    a("s_lshr_b32 %s, %s, %d" % (s(sT1), s(sSLOT), LR))
    a("s_and_b32 %s, %s, %d" % (s(sT2), s(sXCD), 16 // RBX - 1))
    a("s_lshr_b32 %s, %s, %d" % (s(sT0), s(sXCD), 4 - LR))
    a("s_lshl_b32 %s, %s, %d" % (s(sRB), s(sT2), LR))
    a("s_add_u32 %s, %s, %s" % (s(sRB), s(sRB), s(sRBL)))
    a("s_lshl_b32 %s, %s, %d" % (s(sCG), s(sT0), 5 - LR))
    a("s_add_u32 %s, %s, %s" % (s(sCG), s(sCG), s(sT1)))
    mr, mc, mx = opt.get("k1_rot", {4: (1, 4, 1), 3: (1, 2, 1), 2: (2, 1, 0)}[LR])
    a("s_mul_i32 %s, %s, %d" % (s(sT3), s(sRBL), mr))
    a("s_mul_i32 %s, %s, %d" % (s(sT1), s(sT1), mc))
    a("s_mul_i32 %s, %s, %d" % (s(sT0), s(sT0), mx))
    a("s_add_u32 %s, %s, %s" % (s(sROT), s(sT3), s(sT1)))
    a("s_add_u32 %s, %s, %s" % (s(sROT), s(sROT), s(sT0)))
    a("s_mul_i32 %s, %s, 57" % (s(sT0), s(sROT)))
    a("s_lshr_b32 %s, %s, 9" % (s(sT0), s(sT0)))
    a("s_mul_i32 %s, %s, 9" % (s(sT0), s(sT0)))
    a("s_sub_u32 %s, %s, %s" % (s(sROT), s(sROT), s(sT0)))
    a("s_and_b32 %s, %s, 3" % (s(sW4), s(sWAVE)))
    sNE = 94
    def worklist():
        a("s_lshr_b32 %s, %s, 1" % (s(sT0), s(sCG)))
        a("s_cmp_lt_u32 %s, 3" % s(sT0))
        a("s_cselect_b32 %s, 3, 2" % s(sNQ))
        a("s_min_u32 %s, %s, 3" % (s(sQ0), s(sT0)))
        a("s_lshl_b32 %s, %s, 1" % (s(sT1), s(sT0)))
        a("s_add_u32 %s, %s, %s" % (s(sQ0), s(sQ0), s(sT1)))
        a("s_add_u32 %s, %s, 8" % (s(sQ0), s(sQ0)))
        a("s_add_u32 %s, %s, 16" % (s(sP0), s(sT0)))
        a("s_bitcmp0_b32 %s, 0" % s(sCG))
        a("s_cselect_b32 %s, 1, %s" % (s(sNQ), s(sNQ)))
        a("s_cselect_b32 %s, %s, %s" % (s(sQ0), s(sT0), s(sQ0)))
        a("s_cselect_b32 %s, %s, %s" % (s(sP0), s(sT1), s(sP0)))
        a("s_cselect_b32 %s, 2, 1" % s(sNE))
        a("s_lshl_b32 %s, %s, 1" % (s(sNCH), s(sNE)))
        a("s_add_u32 %s, %s, 6" % (s(sNCH), s(sNCH)))
        a("s_add_u32 %s, %s, %s" % (s(sNCH), s(sNCH), s(sNQ)))
        a("s_mul_i32 %s, %s, 3" % (s(sNG), s(sNCH)))
    def pair_ops(sj):
        return ["s_sub_u32 %s, %s, %s" % (s(sT2), s(sj), s(sNE)),
                "s_lshl_b32 %s, %s, 1" % (s(sT3), s(sCG)),
                "s_add_u32 %s, %s, %s" % (s(sT3), s(sT3), s(sT2)),
                "s_add_u32 %s, %s, 39" % (s(sT3), s(sT3)),
                "s_add_u32 %s, %s, 24" % (s(sT2), s(sCG)),
                "s_cmp_eq_u32 %s, %s" % (s(sj), s(sNE)),
                "s_cselect_b32 %s, %s, %s" % (s(sT3), s(sT2), s(sT3)),
                "s_add_u32 %s, %s, %s" % (s(sT2), s(sj), s(sP0)),
                "s_cmp_lt_u32 %s, %s" % (s(sj), s(sNE)),
                "s_cselect_b32 %s, %s, %s" % (s(sj), s(sT2), s(sT3))]
    def pair_of(sj):
        for l in pair_ops(sj): a(l)
    sRT, sCT = 80, 81
    def tile_of():
        a("s_mul_i32 %s, %s, 29" % (s(sT0), s(sXCD)))
        a("s_min_u32 %s, %s, 2" % (s(sT1), s(sXCD)))
        a("s_add_u32 %s, %s, %s" % (s(sT0), s(sT0), s(sT1)))
        a("s_add_u32 %s, %s, %s" % (s(sT0), s(sT0), s(sSLOT)))
        a("s_min_u32 %s, %s, 233" % (s(sT0), s(sT0)))
        a("s_mul_i32 %s, %s, 7282" % (s(sRT), s(sT0)))
        a("s_lshr_b32 %s, %s, 16" % (s(sRT), s(sRT)))
        a("s_mul_i32 %s, %s, 9" % (s(sT1), s(sRT)))
        a("s_sub_u32 %s, %s, %s" % (s(sCT), s(sT0), s(sT1)))
        a("s_mul_i32 %s, %s, 80" % (s(sT0), s(sRT)))
        a("s_add_u32 %s, %s, 79" % (s(sT1), s(sT0)))
        a("s_min_u32 %s, %s, 2047" % (s(sT1), s(sT1)))
        a("s_lshr_b32 %s, %s, 7" % (s(sT2), s(sT0)))
        a("s_lshr_b32 %s, %s, 7" % (s(sT3), s(sT1)))
        a("s_lshl_b32 %s, %s, 2" % (s(sT2), s(sT2)))
        a("s_lshl_b32 %s, %s, 2" % (s(sT3), s(sT3)))
    def lds_wait(name, vaddr, vtmp, sneed, sleep=1):
        a.label(name)
        a("ds_read_b32 %s, %s" % (v(vtmp), v(vaddr)))
        a("s_waitcnt lgkmcnt(0)")
        a("v_cmp_gt_u32 vcc, %s, %s" % (sneed, v(vtmp)))
        a("s_cbranch_vccz %s_ok" % name)
        if sleep: a("s_sleep %d" % sleep)
        a("s_branch %s" % name)
        a.label(name + "_ok")
    sTAG = 3
    def poll(vval, voff):
        a("buffer_load_dword %s, %s, %s, 0 offen sc1" % (v(vval), v(voff), s(rWS, 4)))
    def flag_wait(name, vval, voff):
        a("s_mov_b32 %s, %d" % (s(sSPIN), SPIN))
        a.label(name)
        a("v_cmp_ne_u32 vcc, %s, %s" % (s(sTAG), v(vval)))
        a("s_cbranch_vccz %s_ok" % name)
        a("s_sub_u32 %s, %s, 1" % (s(sSPIN), s(sSPIN)))
        a("s_cbranch_scc1 %s_ok" % name)
        a("s_sleep %d" % opt.get("poll_sleep", 16))
        poll(vval, voff)
        a("s_waitcnt vmcnt(0)")
        a("s_branch %s" % name)
        a.label(name + "_ok")
    def tag_issue():
        a("s_load_dword %s, %s, 0" % (s(sTAG), s(sDBG, 2)))
    def tag_check(name):
        a("s_mov_b32 %s, %d" % (s(sSPIN), SPIN))
        a("s_sub_u32 %s, s92, %s" % (s(sT0), s(sTAG)))
        a("s_cmp_gt_i32 %s, 2000" % s(sT0))
        a("s_cselect_b32 %s, 0, %s" % (s(sTAG), s(sTAG)))
        a.label(name)
        a("s_cmp_lg_u32 %s, 0" % s(sTAG))
        a("s_cbranch_scc1 %s_ok" % name)
        a("s_sub_u32 %s, %s, 1" % (s(sSPIN), s(sSPIN)))
        a("s_cbranch_scc1 %s_ok" % name)
        a("s_load_dword %s, %s, 0 glc" % (s(sTAG), s(sDBG, 2)))
        a("s_waitcnt lgkmcnt(0)")
        a("s_sleep 8")
        a("s_branch %s" % name)
        a.label(name + "_ok")
    def own_flag(sd):
        a("s_lshl_b32 %s, %s, 6" % (s(sd), s(sRB)))
        a("s_add_u32 %s, %s, %s" % (s(sd), s(sd), s(sCG)))
        a("s_lshl_b32 %s, %s, 2" % (s(sd), s(sd)))
        a("s_add_u32 %s, %s, %d" % (s(sd), s(sd), F_E))
    def rb_lanes(vd, vt, base):
        a("v_mov_b32 %s, %s" % (v(vd), s(sT2)))
        a("v_mov_b32 %s, %s" % (v(vt), s(sT3)))
        a("s_mov_b32 vcc_lo, 0xffff0000")
        a("s_mov_b32 vcc_hi, 0xffff0000")
        a("v_cndmask_b32 %s, %s, %s, vcc" % (v(vd), v(vd), v(vt)))
        a("v_and_b32 %s, 15, %s" % (v(vt), v(vLANE)))
        a("v_lshl_add_u32 %s, %s, 4, %s" % (v(vd), v(vd), v(vt)))
        a("v_lshlrev_b32 %s, 2, %s" % (v(vd), v(vd)))
        a("v_add_u32 %s, %d, %s" % (v(vd), base, v(vd)))
    a("s_cmp_ge_u32 %s, 4" % s(sWAVE))
    a("s_cbranch_scc1 L_loader")

    sI, sEP0, sEP1, sHB0, sHB1, sQB, sE2, sXO, sXC, sXL, sNEED = 59, 61, 62, 63, 64, 65, 66, 67, 68, 69, 70
    vTR = [[2, 3], [4, 5]]
    vL16 = 6
    vR, vR2 = [7, 8], [9, 10]
    vPA, vPV, vCA, vCV = 11, 12, 13, 14
    X0 = 16
    ACC = [160, 192]
    WF0 = 224
    NF, PD = 8, 7
    def X(m, ks): return X0 + 8 * ks + 4 * m
    def WF(q): return WF0 + 4 * (q % NF)
    def TL(A, nt, m): return A + (m * 4 + nt) * 4
    a("s_lshl_b32 %s, %s, 7" % (s(sT0), s(sRB)))
    a("s_lshl_b32 %s, %s, 5" % (s(sT1), s(sWAVE)))
    a("s_add_u32 %s, %s, %s" % (s(sT0), s(sT0), s(sT1)))
    a("s_mul_i32 %s, %s, 1152" % (s(sXO), s(sT0)))
    a("s_lshl_b32 %s, %s, 7" % (s(sXC), s(sROT)))
    a("s_mul_i32 %s, %s, %d" % (s(sXL), s(sWAVE), QTR))
    a("s_add_u32 %s, %s, %d" % (s(sXL), s(sXL), LB0 + BUF))
    vXO = [vT[0], vT[3]]
    a("v_lshrrev_b32 %s, 3, %s" % (v(vT[1]), v(vLANE)))
    a("v_and_b32 %s, 7, %s" % (v(vT[2]), v(vLANE)))
    a("v_mul_u32_u24 %s, 1152, %s" % (v(vT[4]), v(vT[1])))
    a("v_lshrrev_b32 %s, 4, %s" % (v(vT[5]), v(vLANE)))
    a("v_xor_b32 %s, %s, %s" % (v(vT[6]), v(vT[2]), v(vT[5])))
    a("v_lshl_add_u32 %s, %s, 4, %s" % (v(vXO[0]), v(vT[6]), v(vT[4])))
    a("v_xor_b32 %s, 4, %s" % (v(vT[6]), v(vT[6])))
    a("v_lshl_add_u32 %s, %s, 4, %s" % (v(vXO[1]), v(vT[6]), v(vT[4])))
    a("v_add_u32 %s, %d, %s" % (v(vXO[1]), 8 * 1152, v(vXO[1])))
    a("s_waitcnt lgkmcnt(0)")
    srd(a, rX, sX, 2048 * 576 * 2)
    def xdma(i):
        sl = (i % 4) * 4096
        a("s_add_u32 %s, %s, %s" % (s(sT2), s(sXO), s(sXC)))
        a("s_add_u32 m0, %s, %d" % (s(sXL), sl))
        a("s_add_u32 %s, %s, %d" % (s(sT3), s(sT2), 16 * 1152))
        a("buffer_load_dwordx4 %s, %s, %s offen lds" % (v(vXO[0]), s(rX, 4), s(sT2)))
        a("s_add_u32 m0, %s, %d" % (s(sXL), sl + 1024))
        a("s_add_u32 %s, %s, 128" % (s(sXC), s(sXC)))
        a("buffer_load_dwordx4 %s, %s, %s offen lds" % (v(vXO[1]), s(rX, 4), s(sT2)))
        a("s_add_u32 m0, %s, %d" % (s(sXL), sl + 2048))
        a("s_cmp_eq_u32 %s, 1152" % s(sXC))
        a("buffer_load_dwordx4 %s, %s, %s offen lds" % (v(vXO[0]), s(rX, 4), s(sT3)))
        a("s_cselect_b32 %s, 0, %s" % (s(sXC), s(sXC)))
        a("s_add_u32 m0, %s, %d" % (s(sXL), sl + 3072))
        a("s_nop 0")
        a("buffer_load_dwordx4 %s, %s, %s offen lds" % (v(vXO[1]), s(rX, 4), s(sT3)))
    xdma(0); xdma(1)
    srd(a, rWS, sWS, WS_BYTES)
    worklist()
    a("v_lshlrev_b32 %s, 4, %s" % (v(vL16), v(vLANE)))
    vRA = [vT[7], vT[8]]
    a("v_and_b32 %s, 15, %s" % (v(vT[6]), v(vLANE)))
    a("v_lshrrev_b32 %s, 1, %s" % (v(vT[9]), v(vT[6])))
    a("v_xor_b32 %s, %s, %s" % (v(vT[9]), v(vT[9]), v(vT[5])))
    a("v_lshlrev_b32 %s, 4, %s" % (v(vT[9]), v(vT[9])))
    a("v_lshl_add_u32 %s, %s, 7, %s" % (v(vT[9]), v(vT[6]), v(vT[9])))
    a("v_add_u32 %s, %s, %s" % (v(vRA[0]), s(sXL), v(vT[9])))
    a("v_xor_b32 %s, 64, %s" % (v(vT[9]), v(vT[9])))
    a("v_add_u32 %s, %s, %s" % (v(vRA[1]), s(sXL), v(vT[9])))
    SEL, ONE = 224, 232
    a("v_lshrrev_b32 %s, 2, %s" % (v(vT[9]), v(vT[6])))
    a("v_cmp_eq_u32 vcc, %s, %s" % (v(vT[9]), v(vT[5])))
    a("v_and_b32 %s, 1, %s" % (v(vT[9]), v(vLANE)))
    a("v_lshlrev_b32 %s, 4, %s" % (v(vT[9]), v(vT[9])))
    a("v_mov_b32 %s, 0x3f80" % v(vT[1]))
    a("v_lshlrev_b32 %s, %s, %s" % (v(vT[9]), v(vT[9]), v(vT[1])))
    a("v_cndmask_b32 %s, 0, %s, vcc" % (v(vT[9]), v(vT[9])))
    for r, c in ((72, 0xcccccccc), (73, 0xcccccccc), (74, 0xaaaaaaaa), (75, 0xaaaaaaaa), (76, 0x00f0000f), (77, 0xf0000f00)):
        a("s_mov_b32 s%d, 0x%x" % (r, c))
    a("v_cndmask_b32 %s, %s, 0, s[72:73]" % (v(SEL + 2), v(vT[9])))
    a("v_cndmask_b32 %s, 0, %s, s[72:73]" % (v(SEL + 3), v(vT[9])))
    for r in (0, 1, 4, 5):
        a("v_mov_b32 %s, 0" % v(SEL + r))
    for r in range(4):
        a("v_mov_b32 %s, 0x3f803f80" % v(ONE + r))
    a("v_mul_u32_u24 %s, %d, %s" % (v(vT[9]), QTR, v(vT[5])))
    a("v_add_u32 %s, %d, %s" % (v(vT[9]), LB0, v(vT[9])))
    a("v_bfe_u32 %s, %s, 2, 2" % (v(vT[6]), v(vLANE)))
    a("v_lshl_add_u32 %s, %s, 6, %s" % (v(vT[9]), v(vT[6]), v(vT[9])))
    a("v_and_b32 %s, 3, %s" % (v(vT[6]), v(vLANE)))
    a("v_lshl_add_u32 %s, %s, 3, %s" % (v(vT[9]), v(vT[6]), v(vT[9])))
    a("v_and_b32 %s, 1, %s" % (v(vT[6]), v(vT[5])))
    a("v_lshl_add_u32 %s, %s, 5, %s" % (v(vTR[0][0]), v(vT[6]), v(vT[9])))
    a("v_xor_b32 %s, 32, %s" % (v(vTR[0][1]), v(vTR[0][0])))
    a("v_add_u32 %s, %d, %s" % (v(vTR[1][0]), BUF, v(vTR[0][0])))
    a("v_add_u32 %s, %d, %s" % (v(vTR[1][1]), BUF, v(vTR[0][1])))

    xdma(2); xdma(3)
    if opt.get("diag", 0) == 1: st.stamp()
    for m, sH in ((0, sHB0), (1, sHB1)):
        a("s_lshl_b32 %s, %s, 3" % (s(sT0), s(sRB)))
        a("s_lshl_b32 %s, %s, 1" % (s(sT1), s(sWAVE)))
        a("s_add_u32 %s, %s, %s" % (s(sT0), s(sT0), s(sT1)))
        a("s_add_u32 %s, %s, %d" % (s(sT0), s(sT0), m))
        a("s_mul_i32 %s, %s, 205" % (s(sT1), s(sT0)))
        a("s_lshr_b32 %s, %s, 10" % (s(sT1), s(sT1)))
        a("s_mul_i32 %s, %s, %d" % (s(sT1), s(sT1), NKS * 5 - 5))
        a("s_add_u32 %s, %s, %s" % (s(sT0), s(sT0), s(sT1)))
        a("s_lshl_b32 %s, %s, 10" % (s(sH), s(sT0)))
        if H_BASE: a("s_add_u32 %s, %s, %d" % (s(sH), s(sH), H_BASE))
    sFO = 91
    own_flag(sFO)
    sPJ = 78
    a("s_mov_b32 %s, 0" % s(sPJ))
    a("s_lshl_b32 %s, %s, 2" % (s(sT0), s(sRB)))
    a("s_add_u32 %s, %s, %s" % (s(sT0), s(sT0), s(sWAVE)))
    a("s_mul_i32 %s, %s, 108" % (s(sT0), s(sT0)))
    a("s_lshl_b32 %s, %s, 2" % (s(sT1), s(sQ0)))
    a("s_add_u32 %s, %s, %s" % (s(sT0), s(sT0), s(sT1)))
    a("s_lshl_b32 %s, %s, 10" % (s(sQB), s(sT0)))
    a("s_add_u32 %s, %s, %d" % (s(sQB), s(sQB), QKV_BASE))
    SUM, GRM = [160, 164], [208, 212]
    def cstat(i):
        for e in range(2):
            for m in range(2):
                x = v(X(m, 2 * i + e), 4)
                first = i == 0 and e == 0
                a("v_mfma_f32_16x16x32_bf16 %s, %s, %s, %s" % (v(SUM[m], 4), v(ONE, 4), x, "0" if first else v(SUM[m], 4)))
                a("v_mfma_f32_16x16x32_bf16 %s, %s, %s, %s" % (v(GRM[m], 4), x, x, "0" if first else v(GRM[m], 4)))
    for i in range(9):
        issued = min(9, max(4, i + 3))
        a("s_waitcnt vmcnt(%d)" % (4 * (issued - i - 1)))
        for e in range(2):
            for m in range(2):
                a("ds_read_b128 %s, %s offset:%d" % (v(X(m, 2 * i + e), 4), v(vRA[e]), (i % 4) * 4096 + m * 2048))
        if i > 0:
            a("s_waitcnt lgkmcnt(4)")
            if i + 3 < 9:
                xdma(i + 3)
            cstat(i - 1)
    a("s_waitcnt lgkmcnt(0)")
    a("s_barrier")
    cstat(8)
    st.stamp()
    a("s_nop 6")
    inv = 0x3ae38e39
    MEAN = [168, 169]
    for m in range(2):
        a("v_mul_f32 %s, 0x%x, %s" % (v(MEAN[m]), inv, v(SUM[m])))
    a("v_cvt_pk_bf16_f32 v170, %s, %s" % (v(MEAN[0]), v(MEAN[1])))
    a("v_xor_b32 v170, 0x80008000, v170")
    for r in range(4):
        a("v_lshlrev_b32 %s, 16, v170" % v(SUM[0] + r))
    for r in range(4):
        a("v_and_b32 %s, 0xffff0000, v170" % v(SUM[1] + r))
    vc = []
    for m in range(2):
        G = GRM[m]
        vc.append("v_cndmask_b32 %s, %s, %s, s[74:75]" % (v(G), v(G), v(G + 1)))
        vc.append("v_cndmask_b32 %s, %s, %s, s[74:75]" % (v(G + 2), v(G + 2), v(G + 3)))
    def both(f):
        for m in range(2): vc.append(f(GRM[m], m))
    both(lambda G, m: "v_cndmask_b32 %s, %s, %s, s[72:73]" % (v(G), v(G), v(G + 2)))
    both(lambda G, m: "v_cndmask_b32 %s, 0, %s, s[76:77]" % (v(G), v(G)))
    for sw in ("v_permlane16_swap_b32", "v_permlane32_swap_b32"):
        both(lambda G, m: "v_mov_b32 %s, %s" % (v(G + 1), v(G)))
        both(lambda G, m: "%s %s, %s" % (sw, v(G), v(G + 1)))
        both(lambda G, m: "v_add_f32 %s, %s, %s" % (v(G), v(G), v(G + 1)))
    both(lambda G, m: "v_mul_f32 %s, 0x%x, %s" % (v(G), inv, v(G)))
    both(lambda G, m: "v_fma_f32 %s, -%s, %s, %s" % (v(G), v(MEAN[m]), v(MEAN[m]), v(G)))
    both(lambda G, m: "v_max_f32 %s, 0, %s" % (v(G), v(G)))
    for op in ("add", "sqrt", "rcp"):
        both(lambda G, m: "v_cvt_pk_bf16_f32 %s, %s, %s" % (v(G), v(G), v(G)))
        both(lambda G, m: "v_and_b32 %s, 0xffff0000, %s" % (v(G), v(G)))
        if op == "add": both(lambda G, m: "v_add_f32 %s, 0x3727c5ac, %s" % (v(G), v(G)))
        elif op == "sqrt": both(lambda G, m: "v_sqrt_f32 %s, %s" % (v(G), v(G)))
        else: both(lambda G, m: "v_rcp_f32 %s, %s" % (v(vR[m]), v(G)))
    both(lambda G, m: "v_mul_f32 %s, %s, %s" % (v(vR2[m]), v(vR[m]), v(vR[m])))
    frs = [(m, ks) for ks in range(18) for m in range(2)]
    def DT(n): return 176 + 8 * (n % 4)
    def app_m(n, h):
        m, ks = frs[n]
        a("v_mfma_f32_16x16x32_bf16 %s, %s, %s, %s" % (v(DT(n) + 4 * h, 4), v(SEL + 2 - 2 * h, 4), v(X(m, ks), 4), v(SUM[m], 4)))
    def app_c(n, h):
        m, ks = frs[n]
        for d in (2 * h, 2 * h + 1):
            a("v_cvt_pk_bf16_f32 %s, %s, %s" % (v(X(m, ks) + d), v(DT(n) + 2 * d), v(DT(n) + 2 * d + 1)))
    for n in range(3):
        app_m(n, 0); app_m(n, 1)
    a("s_nop 3")
    for n in range(36):
        for h in range(2):
            app_c(n, h)
            if n + 3 < 36:
                app_m(n + 3, h)
            if vc and n >= 10:
                a(vc.pop(0))
    assert not vc

    def rd(q, bf):
        ks, nt = q >> 2, q & 3
        off = ks * 1024 + (nt >> 1) * 512
        return ["ds_read_b64_tr_b16 %s, %s offset:%d" % (v(WF(q), 2), v(vTR[bf][nt & 1]), off),
                "ds_read_b64_tr_b16 %s, %s offset:%d" % (v(WF(q) + 2, 2), v(vTR[bf][nt & 1]), off + 256)]

    def epi_tail(B, typ):
        ops = []
        if typ == "u":
            for m, sE in ((0, sEP0), (1, sEP1)):
                for kk in range(2):
                    R = TL(B, 2 * kk, m)
                    for j in range(4):
                        ops.append("v_cvt_pk_bf16_f32 %s, %s, %s" % (v(R + j), v(R + 2 * j), v(R + 2 * j + 1)))
                    if kk == 0:
                        ops.append("buffer_store_dwordx4 %s, %s, %s, %s offen sc1" % (v(R, 4), v(vL16), s(rWS, 4), s(sE)))
                    else:
                        ops.append("s_add_u32 %s, %s, 5120" % (s(sE2), s(sE)))
                        ops.append("buffer_store_dwordx4 %s, %s, %s, %s offen sc1" % (v(R, 4), v(vL16), s(rWS, 4), s(sE2)))
        elif typ == "n":
            ops.append("s_mov_b32 %s, %s" % (s(sT1), s(sPJ)))
            ops += pair_ops(sT1)
            ops.append("s_mul_i32 %s, %s, 10240" % (s(sT1), s(sT1)))
            ops.append("s_add_u32 %s, %s, %s" % (s(sEP0), s(sHB0), s(sT1)))
            ops.append("s_add_u32 %s, %s, %s" % (s(sEP1), s(sHB1), s(sT1)))
            for m in range(2):
                for r in range(16):
                    R = TL(B, 0, m) + r
                    ops.append("v_mul_f32 %s, %s, %s" % (v(R), v(vR2[m]), v(R)))
        elif typ == "q":
            for nt in range(4):
                P, Q = TL(B, nt, 0), TL(B, nt, 1)
                for r in range(4):
                    ops.append("v_mul_f32 %s, %s, %s" % (v(P + r), v(vR[0]), v(P + r)))
                    ops.append("v_mul_f32 %s, %s, %s" % (v(Q + r), v(vR[1]), v(Q + r)))
                ops.append("v_cvt_pk_bf16_f32 %s, %s, %s" % (v(P), v(P), v(P + 1)))
                ops.append("v_cvt_pk_bf16_f32 %s, %s, %s" % (v(P + 1), v(P + 2), v(P + 3)))
                ops.append("v_cvt_pk_bf16_f32 %s, %s, %s" % (v(P + 2), v(Q), v(Q + 1)))
                ops.append("v_cvt_pk_bf16_f32 %s, %s, %s" % (v(P + 3), v(Q + 2), v(Q + 3)))
                ops.append("s_nop 1")
                ops.append("v_permlane16_swap_b32 %s, %s" % (v(P), v(P + 2)))
                ops.append("v_permlane16_swap_b32 %s, %s" % (v(P + 1), v(P + 3)))
                ops.append("buffer_store_dwordx4 %s, %s, %s, %s offen offset:%d sc1" % (v(P, 4), v(vL16), s(rWS, 4), s(sEP0), nt * 1024))
        return ops

    def body(bf, ptyp):
        last = ptyp == "l"
        A, B = ACC[bf], ACC[1 - bf]
        ep = epi_tail(B, "n" if last else ptyp)
        for q in range(72):
            ks, nt = q >> 2, q & 3
            nq = q + PD
            nbf = bf if nq < 72 else 1 - bf
            r2 = rd(nq % 72, nbf)
            extra = {0: [], 1: []}
            if last and nq >= 72:
                r2 = [None, None]
            if last and nq == 71:
                extra[1].append("ds_append %s offset:%d" % (v(vCV), C_CONS))
            if nq % 24 == 0 and not last:
                a("s_barrier")
            if q % 2 == 0:
                a("s_waitcnt lgkmcnt(%d)" % (min(2 * PD - 4, 2 * (70 - q) + 1) if last and q >= 64 else 2 * PD - 4))
            for m in range(2):
                T = TL(A, nt, m)
                if ks == 0 and ptyp == "u":
                    U = TL(B, nt, m)
                    for r in (0, 2):
                        a("v_pk_mul_f32 %s, %s, %s" % (v(U + r, 2), v(T + r, 2), v(U + r, 2)))
                c = "0" if ks == 0 else v(T, 4)
                a("v_mfma_f32_16x16x32_bf16 %s, %s, %s, %s" % (v(T, 4), v(WF(q), 4), v(X(m, ks), 4), c))
                if opt.get("x_halfrd", 0) and (q // opt["x_halfrd"]) % 2 == 1 and not last: r2[m] = None
                if r2[m]: a(r2[m])
                if extra[m]:
                    for l in extra[m]: a(l)
                elif q >= 6 and ep and not (m == 1 and q % 2 == 1):
                    a(ep.pop(0))
        assert not ep

    st.stamp()
    a("s_barrier")
    st.stamp()
    for q in range(PD):
        for l in rd(q, 0):
            a(l)
    a("s_mov_b32 %s, 0" % s(sI))
    a("s_mov_b32 m0, 0")
    order = [(0, "n"), (1, "u"), (1, "q"), (0, "q"), (1, "n"), (0, "u")]
    def after(bf, typ):
        st.stamp()
        if st.on: a("s_mov_b32 m0, 0")
        a("s_add_u32 %s, %s, 1" % (s(sI), s(sI)))
        if typ != "u":
            a("s_cmp_le_u32 %s, %s" % (s(sI), s(sNQ)))
            a("s_cbranch_scc1 L_wasq%d" % bf)
            a("s_waitcnt vmcnt(0)")
        if typ == "n":
            a("s_add_u32 %s, %s, 1" % (s(sPJ), s(sPJ)))
        else:
            a("s_cmp_eq_u32 %s, %s" % (s(sI), s(sNEED)))
            a("s_cbranch_scc1 L_b%dl" % (1 - bf))
            a("s_branch L_b%dn" % (1 - bf))
    a("s_sub_u32 %s, %s, 1" % (s(sNEED), s(sNCH)))
    for idx, (bf, typ) in enumerate(order):
        a.label("L_b%d%s" % (bf, typ))
        body(bf, typ)
        after(bf, typ)
        if typ == "n" and not (idx + 1 < len(order) and order[idx + 1] == (1 - bf, "u")):
            a("s_branch L_b%du" % (1 - bf))
    for bf in range(2):
        a.label("L_wasq%d" % bf)
        a("s_mov_b32 %s, %s" % (s(sEP0), s(sQB)))
        a("s_add_u32 %s, %s, 4096" % (s(sQB), s(sQB)))
        a("s_branch L_b%dq" % (1 - bf))
    AT = [10, 11, 12, 13, 14, 9]
    for bf in (1, 0):
        a.label("L_b%dl" % bf)
        body(bf, "l")
        st.stamp()
        tag_issue()
        a("v_lshrrev_b32 v2, 4, %s" % v(vLANE))
        a("s_lshl_b32 %s, %s, 1" % (s(sT0), s(sXCD)))
        a("s_sub_u32 %s, %s, 2" % (s(sT0), s(sT0)))
        a("v_add_u32 v2, %s, v2" % s(sT0))
        a("v_max_i32 v2, 0, v2")
        a("v_and_b32 v3, 15, %s" % v(vLANE))
        a("v_lshl_add_u32 v2, v2, 6, v3")
        a("v_lshlrev_b32 v2, 2, v2")
        a("v_add_u32 v2, %d, v2" % F_Q)
        a("s_setprio 3")
        poll(3, 2)
        for r in range(0, 32, 2):
            a("v_pk_mul_f32 %s, %s, %s" % (v(ACC[bf] + r, 2), v(ACC[1 - bf] + r, 2), v(ACC[bf] + r, 2)))
        for l in epi_tail(ACC[bf], "u"):
            a(l)
        a("s_mov_b32 %s, %d" % (s(sXL), LB0 + bf * BUF))
        a("s_branch L_attn")

    a.label("L_attn")
    st.stamp()
    sA, sCG0, sSFT, sMIN, sOB, sAB, sQT, sRT16, sFO2 = sW4, 4, 5, 6, 7, 8, 9, 10, 11
    T = AT
    a("s_mov_b32 %s, %s" % (s(sAB), s(sXL)))
    a("s_add_u32 %s, %s, 8192" % (s(sFO2), s(sFO)))
    a("s_waitcnt lgkmcnt(0)")
    tag_check("L_tg2")
    a("v_mov_b32 %s, %d" % (v(T[0]), C_CONS))
    a("s_movk_i32 %s, 256" % s(sT1))
    lds_wait("L_w1", T[0], T[1], s(sT1), 0)
    a("s_waitcnt vmcnt(4)")
    flag_wait("L_fq", 3, 2)
    st.stamp()
    sM = [52 + 2 * r for r in range(16)]
    sK = [84 + 2 * i for i in range(8)]
    vL16, vKB, vVB, vOOFF, vNINF, vOL = 2, 3, 4, 5, 6, 7
    vMX, vMX2, vC = 224, 226, 228
    S0, O0, Q0, KF0, VF0 = 16, 160, 176, 192, 208
    def SR(t): return S0 + 16 * t
    a("s_mul_i32 %s, %s, 18" % (s(sT0), s(sSLOT)))
    a("s_lshr_b32 %s, %s, 4" % (s(sCG0), s(sT0)))
    a("s_and_b32 %s, %s, 15" % (s(sSFT), s(sT0)))
    a("v_lshlrev_b32 %s, 4, %s" % (v(vL16), v(vLANE)))
    for j in range(4):
        a("s_lshl_b32 %s, %s, 3" % (s(sT0), s(sXCD)))
        a("s_lshl_b32 %s, %s, 2" % (s(sT1), s(sA)))
        a("s_add_u32 %s, %s, %d" % (s(sT1), s(sT1), j))
        a("s_add_u32 %s, %s, %s" % (s(sT0), s(sT0), s(sT1)))
        a("s_sub_i32 %s, %s, 8" % (s(sT0), s(sT0)))
        a("s_max_i32 %s, %s, 0" % (s(sT0), s(sT0)))
        a("s_mul_i32 %s, %s, 108" % (s(sT0), s(sT0)))
        a("s_add_u32 %s, %s, %s" % (s(sT0), s(sT0), s(sCG0)))
        a("s_lshl_b32 %s, %s, 10" % (s(sT0), s(sT0)))
        a("s_add_u32 %s, %s, %d" % (s(sT2), s(sT0), QKV_BASE + 36 * 1024))
        a("s_add_u32 %s, %s, %d" % (s(sT3), s(sT0), QKV_BASE + 72 * 1024))
        a("s_lshl_b32 %s, %s, 12" % (s(sT1), s(sT1)))
        a("s_add_u32 m0, %s, %s" % (s(sT1), s(sAB)))
        a("s_add_u32 %s, %s, 2048" % (s(sT1), s(sT1)))
        a("buffer_load_dwordx4 %s, %s, %s offen sc1 lds" % (v(vL16), s(rWS, 4), s(sT2)))
        a("buffer_load_dwordx4 %s, %s, %s offen offset:1024 sc1 lds" % (v(vL16), s(rWS, 4), s(sT2)))
        a("s_add_u32 m0, %s, %s" % (s(sT1), s(sAB)))
        a("s_nop 0")
        a("buffer_load_dwordx4 %s, %s, %s offen sc1 lds" % (v(vL16), s(rWS, 4), s(sT3)))
        a("buffer_load_dwordx4 %s, %s, %s offen offset:1024 sc1 lds" % (v(vL16), s(rWS, 4), s(sT3)))
    a("s_lshl_b32 %s, %s, 3" % (s(sT0), s(sXCD)))
    a("s_lshl_b32 %s, %s, 1" % (s(sT1), s(sA)))
    a("s_add_u32 %s, %s, %s" % (s(sT0), s(sT0), s(sT1)))
    a("s_lshl_b32 %s, %s, 1" % (s(sRT16), s(sT0)))
    a("s_mul_i32 %s, %s, 108" % (s(sT0), s(sT0)))
    a("s_add_u32 %s, %s, %s" % (s(sT0), s(sT0), s(sCG0)))
    a("s_lshl_b32 %s, %s, 10" % (s(sT0), s(sT0)))
    a("s_add_u32 %s, %s, %d" % (s(sT0), s(sT0), QKV_BASE))
    a("s_add_u32 %s, %s, %d" % (s(sT1), s(sT0), 108 * 1024))
    for qt in range(2):
        for p in range(2):
            a("buffer_load_dwordx4 %s, %s, %s, %s offen offset:%d sc1" % (v(Q0 + 8 * qt + 4 * p, 4), v(vL16), s(rWS, 4), s(sT0 + qt), 1024 * p))
    a("v_lshrrev_b32 %s, 5, %s" % (v(T[0]), v(vLANE)))
    a("v_lshlrev_b32 %s, 2, %s" % (v(T[0]), v(T[0])))
    a("v_and_b32 %s, 31, %s" % (v(T[1]), v(vLANE)))
    a("v_sub_u32 %s, %s, %s" % (v(T[2]), v(T[1]), v(T[0])))
    for r in range(16):
        a("v_cmp_le_i32 %s, %d, %s" % (s(sM[r], 2), (r & 3) + 8 * (r >> 2), v(T[2])))
    a("v_lshlrev_b32 %s, 1, %s" % (v(T[2]), v(T[0])))
    a("v_subrev_u32 %s, %s, %s" % (v(T[2]), s(sSFT), v(T[2])))
    for p in range(2):
        for dw in range(4):
            a("v_add_u32 %s, %d, %s" % (v(T[3]), 16 * p + 2 * dw, v(T[2])))
            a("v_cmp_gt_u32 %s, 18, %s" % (s(sK[4 * p + dw], 2), v(T[3])))
    a("s_lshl_b32 %s, %s, 13" % (s(sT2), s(sA)))
    a("s_add_u32 %s, %s, %s" % (s(sT2), s(sT2), s(sAB)))
    a("v_add_u32 %s, %s, %s" % (v(vKB), s(sT2), v(vL16)))
    a("s_lshr_b32 %s, %s, 2" % (s(sT3), s(sSFT)))
    a("v_bfe_u32 %s, %s, 4, 1" % (v(T[3]), v(vLANE)))
    a("v_and_b32 %s, 3, %s" % (v(T[4]), v(vLANE)))
    a("v_lshl_add_u32 %s, %s, 2, %s" % (v(T[3]), v(T[3]), v(T[4])))
    a("v_min_u32 %s, 5, %s" % (v(T[3]), v(T[3])))
    a("v_add_u32 %s, %s, %s" % (v(T[3]), s(sT3), v(T[3])))
    a("v_bfe_u32 %s, %s, 1, 2" % (v(T[4]), v(T[3])))
    a("v_lshlrev_b32 %s, 9, %s" % (v(T[4]), v(T[4])))
    a("v_and_b32 %s, 1, %s" % (v(T[3]), v(T[3])))
    a("v_lshl_add_u32 %s, %s, 3, %s" % (v(T[3]), v(T[3]), v(T[4])))
    a("v_bfe_u32 %s, %s, 2, 2" % (v(T[4]), v(vLANE)))
    a("v_add_u32 %s, %s, %s" % (v(T[4]), v(T[4]), v(T[0])))
    a("v_lshl_add_u32 %s, %s, 4, %s" % (v(T[3]), v(T[4]), v(T[3])))
    a("v_add_u32 %s, %s, %s" % (v(vVB), s(sT2), v(T[3])))
    a("s_mul_i32 %s, %s, 3" % (s(sT0), s(sSLOT)))
    a("v_lshrrev_b32 %s, 5, %s" % (v(T[3]), v(vLANE)))
    a("v_add_u32 %s, %s, %s" % (v(T[3]), s(sT0), v(T[3])))
    a("v_lshrrev_b32 %s, 2, %s" % (v(T[4]), v(T[3])))
    a("v_mul_u32_u24 %s, 5120, %s" % (v(T[4]), v(T[4])))
    a("v_and_b32 %s, 3, %s" % (v(T[3]), v(T[3])))
    a("v_lshl_add_u32 %s, %s, 8, %s" % (v(T[3]), v(T[3]), v(T[4])))
    a("v_and_b32 %s, 15, %s" % (v(T[4]), v(vLANE)))
    a("v_lshl_add_u32 %s, %s, 4, %s" % (v(vOL), v(T[4]), v(T[3])))
    a("s_add_u32 %s, %s, 2" % (s(sT1), s(sT0)))
    a("s_lshr_b32 %s, %s, 2" % (s(sOB), s(sT1)))
    a("s_lshr_b32 %s, %s, 2" % (s(sMIN), s(sT0)))
    a("s_sub_u32 %s, %s, %s" % (s(sOB), s(sOB), s(sMIN)))
    a("s_mul_i32 %s, %s, %d" % (s(sOB), s(sOB), 5120 - 1024))
    a("s_add_u32 %s, %s, %d" % (s(sOB), s(sOB), H_BASE + 144 * 5120 + 512))
    a("v_mov_b32 %s, 0xff800000" % v(vNINF))
    a("v_mov_b32 %s, 0x%x" % (v(vC), fbits(18 ** -0.5 * math.log2(math.e))))
    a("s_add_u32 %s, %s, 5" % (s(sT3), s(sT3)))
    a("s_bfe_u32 %s, %s, 0x20001" % (s(sT0), s(sT3)))
    a("s_lshl_b32 %s, %s, 9" % (s(sT0), s(sT0)))
    a("s_and_b32 %s, %s, 1" % (s(sT1), s(sT3)))
    a("s_lshl_b32 %s, %s, 3" % (s(sT1), s(sT1)))
    a("s_add_u32 %s, %s, %s" % (s(sT0), s(sT0), s(sT1)))
    a("s_lshl_b32 %s, %s, 14" % (s(sT1), s(sA)))
    a("s_add_u32 %s, %s, %s" % (s(sT0), s(sT0), s(sT1)))
    a("s_add_u32 %s, %s, %s" % (s(sT0), s(sT0), s(sAB)))
    a("s_add_u32 %s, %s, 2048" % (s(sT0), s(sT0)))
    a("v_lshlrev_b32 %s, 4, %s" % (v(T[3]), v(T[1])))
    a("v_add3_u32 %s, %s, %s, %s" % (v(T[3]), v(T[3]), v(T[0]), s(sT0)))
    a("v_mov_b32 %s, 0x3f803f80" % v(T[4]))
    a("v_mov_b32 %s, %d" % (v(T[5]), C_A0))
    a("v_mov_b32 %s, 1" % v(vMX))
    a("s_lshl_b32 %s, %s, 1" % (s(sMIN), s(sA)))
    a("s_sub_u32 %s, 8, %s" % (s(sMIN), s(sMIN)))
    a("s_cmp_lg_u32 %s, 0" % s(sXCD))
    a("s_cselect_b32 %s, 0, %s" % (s(sMIN), s(sMIN)))
    a("s_waitcnt vmcnt(0)")
    for j in range(4):
        a("ds_write_b32 %s, %s offset:%d" % (v(T[3]), v(T[4]), j * 4096))
    a("v_mov_b32 %s, %s" % (v(T[3]), s(sFO2)))
    a("v_mov_b32 %s, %s" % (v(T[2]), s(sTAG)))
    a("s_mov_b64 exec, 1")
    a("ds_add_rtn_u32 %s, %s, %s" % (v(vMX2), v(T[5]), v(vMX)))
    a("s_waitcnt lgkmcnt(0)")
    a("v_readfirstlane_b32 %s, %s" % (s(sT0), v(vMX2)))
    a("s_cmp_lg_u32 %s, 3" % s(sT0))
    a("s_cbranch_scc1 L_nol3")
    a("buffer_store_dword %s, %s, %s, 0 offen sc1" % (v(T[2]), v(T[3]), s(rWS, 4)))
    a.label("L_nol3")
    a("s_mov_b64 exec, -1")
    for qt in range(2):
        for i in range(8):
            a("v_cndmask_b32 %s, 0, %s, %s" % (v(Q0 + 8 * qt + i), v(Q0 + 8 * qt + i), s(sK[i], 2)))
    a("s_bitcmp1_b32 %s, 0" % s(sSLOT))
    a("s_cselect_b32 %s, 0, -1" % s(sK[0]))
    a("s_mov_b32 %s, -1" % s(sK[0] + 1))
    a("s_cselect_b64 %s, -1, 0" % s(sK[1], 2))
    a("s_mov_b32 %s, 0" % s(sQT))
    lds_wait("L_wa", T[5], vMX, "4", 1)
    a("s_setprio %d" % opt.get("a_prio", 3))
    a.label("L_aq")
    st.stamp()
    Q = Q0
    def krd(t):
        for p in range(2):
            a("ds_read_b128 %s, %s offset:%d" % (v(KF0 + 8 * (t & 1) + 4 * p, 4), v(vKB), t * 4096 + 1024 * p))
    def vrd(t):
        for hf in range(2):
            for aa in range(2):
                a("ds_read_b64_tr_b16 %s, %s offset:%d" % (v(VF0 + 8 * (t & 1) + 4 * hf + 2 * aa, 2), v(vVB), t * 4096 + 2048 + hf * 256 + aa * 128))
    def mx(t, first=False):
        R = SR(t)
        for i in range(0, 16, 4):
            if first and i == 0:
                a("v_max_f32 %s, %s, %s" % (v(vMX), v(R), v(R + 1)))
                a("v_max_f32 %s, %s, %s" % (v(vMX2), v(R + 2), v(R + 3)))
            else:
                a("v_max3_f32 %s, %s, %s, %s" % (v(vMX), v(R + i), v(R + i + 1), v(vMX)))
                a("v_max3_f32 %s, %s, %s, %s" % (v(vMX2), v(R + i + 2), v(R + i + 3), v(vMX2)))
    def fix(t):
        if t == 0:
            for r in range(16):
                a("v_cndmask_b32 %s, %s, %s, %s" % (v(SR(0) + r), v(SR(0) + r), v(vNINF), s(sM[r], 2)))
        if t == 8:
            for r in range(16):
                a("v_cndmask_b32 %s, %s, %s, %s" % (v(SR(8) + r), v(vNINF), v(SR(8) + r), s(sM[r], 2)))
        else:
            l = a.newlabel("inv")
            a("s_cmp_le_u32 %s, %d" % (s(sMIN), t))
            a("s_cbranch_scc1 %s" % l)
            for r in range(16):
                a("v_mov_b32 %s, %s" % (v(SR(t) + r), v(vNINF)))
            a.label(l)
        mx(t, t == 0)
    krd(0)
    for t in range(9):
        if t < 8:
            krd(t + 1)
            a("s_waitcnt lgkmcnt(2)")
        else:
            a("s_waitcnt lgkmcnt(0)")
        kf = KF0 + 8 * (t & 1)
        a("v_mfma_f32_32x32x16_bf16 %s, %s, %s, 0" % (v(SR(t), 16), v(kf, 4), v(Q, 4)))
        a("v_mfma_f32_32x32x16_bf16 %s, %s, %s, %s" % (v(SR(t), 16), v(kf + 4, 4), v(Q + 4, 4), v(SR(t), 16)))
        if t == 2:
            a("s_nop 1")
        if t >= 2:
            fix(t - 2)
    vrd(0)
    vrd(1)
    fix(7)
    fix(8)
    a("v_max_f32 %s, %s, %s" % (v(vMX), v(vMX), v(vMX2)))
    a("v_mov_b32 %s, %s" % (v(vMX2), v(vMX)))
    a("s_nop 1")
    a("v_permlane32_swap_b32 %s, %s" % (v(vMX), v(vMX2)))
    a("s_nop 1")
    a("v_max_f32 %s, %s, %s" % (v(vMX), v(vMX), v(vMX2)))
    a("v_mul_f32 %s, -%s, %s" % (v(vMX), v(vC), v(vMX)))
    for t in range(9):
        R = SR(t)
        for r in range(0, 16, 2):
            a("v_pk_fma_f32 %s, %s, %s, %s op_sel_hi:[1,0,0]" % (v(R + r, 2), v(R + r, 2), v(vC, 2), v(vMX, 2)))
        for r in range(16):
            a("v_exp_f32 %s, %s" % (v(R + r), v(R + r)))
        a("s_nop 0")
        for j in range(8):
            a("v_cvt_pk_bf16_f32 %s, %s, %s" % (v(R + j), v(R + 2 * j), v(R + 2 * j + 1)))
        a("s_waitcnt lgkmcnt(%d)" % (4 if t < 8 else 0))
        a("s_nop 0")
        vf = VF0 + 8 * (t & 1)
        c = "0" if t == 0 else v(O0, 16)
        a("v_mfma_f32_32x32x16_bf16 %s, %s, %s, %s" % (v(O0, 16), v(vf, 4), v(R, 4), c))
        a("v_mfma_f32_32x32x16_bf16 %s, %s, %s, %s" % (v(O0, 16), v(vf + 4, 4), v(R + 4, 4), v(O0, 16)))
        if t + 2 < 9:
            vrd(t + 2)
    a("v_bfe_u32 %s, %s, 4, 1" % (v(T[1]), v(vLANE)))
    a("v_add_u32 %s, %s, %s" % (v(T[1]), s(sRT16), v(T[1])))
    a("v_mul_u32_u24 %s, 205, %s" % (v(T[2]), v(T[1])))
    a("v_lshrrev_b32 %s, 10, %s" % (v(T[2]), v(T[2])))
    a("v_mul_u32_u24 %s, %d, %s" % (v(T[2]), NKS * 5 - 5, v(T[2])))
    a("v_add_u32 %s, %s, %s" % (v(T[1]), v(T[1]), v(T[2])))
    a("v_lshl_add_u32 %s, %s, 10, %s" % (v(vOOFF), v(T[1]), v(vOL)))
    for i in range(8):
        a("v_mov_b32 %s, %s" % (v(Q0 + i), v(Q0 + 8 + i)))
    a("v_add_u32 %s, 4096, %s" % (v(vKB), v(vKB)))
    a("v_add_u32 %s, 4096, %s" % (v(vVB), v(vVB)))
    a("s_add_u32 %s, %s, 2" % (s(sRT16), s(sRT16)))
    a("s_sub_u32 %s, %s, 1" % (s(sMIN), s(sMIN)))
    a("s_cselect_b32 %s, 0, %s" % (s(sMIN), s(sMIN)))
    a("v_rcp_f32 %s, %s" % (v(T[0]), v(O0 + 12)))
    a("s_nop 0")
    for r in range(12):
        a("v_mul_f32 %s, %s, %s" % (v(O0 + r), v(O0 + r), v(T[0])))
    for j in range(6):
        a("v_cvt_pk_bf16_f32 %s, %s, %s" % (v(O0 + j), v(O0 + 2 * j), v(O0 + 2 * j + 1)))
    a("v_cndmask_b32 %s, 0, %s, %s" % (v(O0), v(O0), s(sK[0], 2)))
    a("v_cndmask_b32 %s, 0, %s, %s" % (v(O0 + 5), v(O0 + 5), s(sK[1], 2)))
    a("v_mov_b32 %s, 0" % v(O0 + 6))
    a("v_mov_b32 %s, 0" % v(O0 + 7))
    a("s_setprio 3")
    a("s_mov_b32 %s, %d" % (s(sT0), H_BASE + 144 * 5120))
    a("buffer_store_dwordx4 %s, %s, %s, %s offen sc1" % (v(O0, 4), v(vOOFF), s(rWS, 4), s(sT0)))
    a("s_mov_b32 exec_hi, 0")
    a("buffer_store_dwordx4 %s, %s, %s, %s offen sc1" % (v(O0 + 4, 4), v(vOOFF), s(rWS, 4), s(sOB)))
    a("s_mov_b64 exec, -1")
    a("s_setprio %d" % opt.get("a_prio", 3))
    a("s_add_u32 %s, %s, 1" % (s(sQT), s(sQT)))
    a("s_cmp_lt_u32 %s, 2" % s(sQT))
    a("s_cbranch_scc1 L_aq")
    a("s_setprio 3")
    st.stamp()
    a("s_waitcnt vmcnt(0)")
    st.stamp()
    a("v_mov_b32 %s, %d" % (v(T[0]), C_A1))
    a("v_mov_b32 %s, 1" % v(T[1]))
    a("s_lshl_b32 %s, %s, 8" % (s(sT1), s(sXCD)))
    a("s_add_u32 %s, %s, %d" % (s(sT1), s(sT1), F_A))
    a("v_mov_b32 %s, %s" % (v(T[3]), s(sT1)))
    a("v_mov_b32 %s, %s" % (v(T[4]), s(sTAG)))
    a("s_lshl_b32 %s, %s, 2" % (s(sT1), s(sXCD)))
    a("v_mov_b32 %s, %s" % (v(T[5]), s(sT1)))
    a("s_mov_b64 exec, 1")
    a("ds_add_rtn_u32 %s, %s, %s" % (v(T[2]), v(T[0]), v(T[1])))
    a("s_waitcnt lgkmcnt(0)")
    a("v_readfirstlane_b32 %s, %s" % (s(sT0), v(T[2])))
    a("s_cmp_lg_u32 %s, 3" % s(sT0))
    a("s_cbranch_scc1 L_fin")
    a("global_atomic_add %s, %s, %s, %s offset:128 sc0 sc1" % (v(T[2]), v(T[5]), v(T[1]), s(sDBG, 2)))
    a("s_waitcnt vmcnt(0)")
    a("v_readfirstlane_b32 %s, %s" % (s(sT0), v(T[2])))
    a("s_cmp_lg_u32 %s, 31" % s(sT0))
    a("s_cbranch_scc1 L_fin")
    a("buffer_store_dword %s, %s, %s, 0 offen sc1" % (v(T[4]), v(T[3]), s(rWS, 4)))
    a("s_branch L_fin")

    sIC, sIG, sLB, sLBEG, sG, sO0, sKB, sP32, sCOL, sFREE = 59, 61, 62, 63, 64, 65, 66, 67, 68, 69
    vDG, vD, vCP, vCT, vPW, vPX, vTQ, vTG = 2, 3, 4, 5, 6, 7, 8, 9
    sTC, sTN = 75, 76
    sTI, sTR, sTB, sTP, sTO = 82, 83, 84, 86, 87
    a.label("L_stouch")
    a("s_cmp_ge_u32 %s, %s" % (s(sTC), s(sNCH)))
    a("s_cbranch_scc1 L_stouch_r")
    a("s_cmp_lg_u32 %s, 0" % s(sTI))
    a("s_cbranch_scc1 L_stouch2")
    a("s_cmp_lt_u32 %s, %s" % (s(sTC), s(sNQ)))
    a("s_cbranch_scc1 L_stouch_q")
    a("s_sub_u32 %s, %s, %s" % (s(sT0), s(sTC), s(sNQ)))
    a("s_lshr_b32 %s, %s, 1" % (s(sT1), s(sT0)))
    pair_of(sT1)
    a("s_bitcmp1_b32 %s, 0" % s(sT0))
    a("s_cselect_b32 %s, %s, %s" % (s(sTB), s(sWU), s(sWG)))
    a("s_cselect_b32 %s, %s, %s" % (s(sTB + 1), s(sWU + 1), s(sWG + 1)))
    a("s_movk_i32 %s, 9216" % s(sTP))
    a("s_branch L_stouch1")
    a.label("L_stouch_q")
    a("s_add_u32 %s, %s, %s" % (s(sT1), s(sTC), s(sQ0)))
    a.label("L_stouch1")
    a("s_lshl_b32 %s, %s, 7" % (s(sT1), s(sT1)))
    a("s_mul_i32 %s, %s, %s" % (s(sTO), s(sTR), s(sTP)))
    a("s_add_u32 %s, %s, %s" % (s(sTO), s(sTO), s(sT1)))
    a("s_add_u32 %s, %s, 60" % (s(sTO), s(sTO)))
    a.label("L_stouch2")
    for i in range(3):
        a("s_load_dwordx2 s[90:91], %s, %s" % (s(sTB, 2), s(sTO)))
        a("s_add_u32 %s, %s, %s" % (s(sTO), s(sTO), s(sTP)))
    a("s_add_u32 %s, %s, 1" % (s(sTI), s(sTI)))
    a("s_cmp_eq_u32 %s, 3" % s(sTI))
    a("s_cselect_b32 %s, 0, %s" % (s(sTI), s(sTI)))
    a("s_addc_u32 %s, %s, 0" % (s(sTC), s(sTC)))
    a.label("L_stouch_r")
    a("s_setpc_b64 %s" % s(sRET, 2))
    a.label("L_touch")
    a("s_cmp_ge_u32 %s, %s" % (s(sTC), s(sNCH)))
    a("s_cbranch_scc1 L_touch_r")
    a("s_mov_b64 exec, 0x1ff")
    a("s_cmp_lt_u32 %s, %s" % (s(sTC), s(sNQ)))
    a("s_cbranch_scc1 L_touch_q")
    a("s_sub_u32 %s, %s, %s" % (s(sT0), s(sTC), s(sNQ)))
    a("s_lshr_b32 %s, %s, 1" % (s(sT1), s(sT0)))
    pair_of(sT1)
    a("s_lshl_b32 %s, %s, 7" % (s(sT1), s(sT1)))
    a("s_bitcmp1_b32 %s, 0" % s(sT0))
    a("s_cselect_b32 %s, %s, %s" % (s(rX), s(sWU), s(sWG)))
    a("s_cselect_b32 %s, %s, %s" % (s(rX + 1), s(sWU + 1), s(sWG + 1)))
    a("s_mov_b32 %s, %d" % (s(rX + 2), 576 * 4608 * 2))
    a("buffer_load_dword v252, %s, %s, %s offen" % (v(vTG), s(rX, 4), s(sT1)))
    a("s_branch L_touch_e")
    a.label("L_touch_q")
    a("s_add_u32 %s, %s, %s" % (s(sT1), s(sTC), s(sQ0)))
    a("s_lshl_b32 %s, %s, 7" % (s(sT1), s(sT1)))
    a("buffer_load_dword v252, %s, %s, %s offen" % (v(vTQ), s(rX, 4), s(sT1)))
    a.label("L_touch_e")
    a("s_mov_b64 exec, -1")
    a("s_add_u32 %s, %s, 1" % (s(sTC), s(sTC)))
    a.label("L_touch_r")
    a("s_setpc_b64 %s" % s(sRET, 2))
    a.label("L_issue")
    a("s_cmp_lg_u32 %s, 0" % s(sIG))
    a("s_cbranch_scc1 L_issue2")
    a("s_bitcmp1_b32 %s, 0" % s(sIC))
    a("s_cselect_b32 %s, %d, 0" % (s(sLB), BUF))
    a("s_add_u32 %s, %s, %s" % (s(sLB), s(sLB), s(sLBEG)))
    a("s_cmp_lt_u32 %s, %s" % (s(sIC), s(sNQ)))
    a("s_cbranch_scc1 L_issueq")
    a("s_sub_u32 %s, %s, %s" % (s(sT0), s(sIC), s(sNQ)))
    a("s_lshr_b32 %s, %s, 1" % (s(sT1), s(sT0)))
    pair_of(sT1)
    a("s_lshl_b32 %s, %s, 7" % (s(sCOL), s(sT1)))
    a("s_bitcmp1_b32 %s, 0" % s(sT0))
    a("s_cselect_b32 %s, %s, %s" % (s(rW), s(sWU), s(sWG)))
    a("s_cselect_b32 %s, %s, %s" % (s(rW + 1), s(sWU + 1), s(sWG + 1)))
    a("s_mov_b32 %s, %d" % (s(rW + 2), 576 * 4608 * 2))
    a("s_mov_b32 %s, %d" % (s(sP32), 32 * 9216))
    a("v_mov_b32 %s, %s" % (v(vD), v(vDG)))
    a("s_branch L_issue2")
    a.label("L_issueq")
    a("s_add_u32 %s, %s, %s" % (s(sT1), s(sIC), s(sQ0)))
    a("s_lshl_b32 %s, %s, 7" % (s(sCOL), s(sT1)))
    a.label("L_issue2")
    if opt.get("x_nodma", 0):
        a("s_cmp_ge_u32 %s, 6" % s(sG))
        a("s_cbranch_scc1 L_issue3")
    for kb in range(3):
        a("s_mul_i32 %s, %s, %s" % (s(sO0), s(sKB), s(sP32)))
        a("s_add_u32 %s, %s, %s" % (s(sO0), s(sO0), s(sCOL)))
        a("s_add_u32 m0, %s, %d" % (s(sLB), kb * 2048))
        a("s_add_u32 %s, %s, 2" % (s(sKB), s(sKB)))
        a("buffer_load_dwordx4 %s, %s, %s offen lds" % (v(vD), s(rW, 4), s(sO0)))
        a("s_add_u32 m0, %s, %d" % (s(sLB), kb * 2048 + 1024))
        a("s_add_u32 %s, %s, %s" % (s(sO0), s(sO0), s(sP32)))
        a("buffer_load_dwordx4 %s, %s, %s offen lds" % (v(vD), s(rW, 4), s(sO0)))
        a("s_cmp_eq_u32 %s, 18" % s(sKB))
        a("s_cselect_b32 %s, 0, %s" % (s(sKB), s(sKB)))
    a.label("L_issue3")
    a("s_add_u32 %s, %s, 6144" % (s(sLB), s(sLB)))
    a("s_add_u32 %s, %s, 1" % (s(sIG), s(sIG)))
    a("s_cmp_eq_u32 %s, 3" % s(sIG))
    a("s_cselect_b32 %s, 0, %s" % (s(sIG), s(sIG)))
    a("s_addc_u32 %s, %s, 0" % (s(sIC), s(sIC)))
    a("s_add_u32 %s, %s, 1" % (s(sG), s(sG)))
    a("s_setpc_b64 %s" % s(sRET, 2))

    a.label("L_loader")
    a("s_setprio 3")
    worklist()
    a("s_lshl_b32 %s, %s, 2" % (s(sT0), s(sRB)))
    a("s_add_u32 %s, %s, %s" % (s(sT0), s(sT0), s(sW4)))
    a("s_mul_i32 %s, %s, 9" % (s(sT0), s(sT0)))
    a("s_mov_b32 %s, %s" % (s(sTR), s(sT0)))
    a("s_mov_b32 %s, 0" % s(sTI))
    a("s_movk_i32 %s, 3456" % s(sTP))
    a("v_add_u32 %s, %s, %s" % (v(vTG), s(sT0), v(vLANE)))
    a("v_mul_u32_u24 %s, 3456, %s" % (v(vTQ), v(vTG)))
    a("v_mul_u32_u24 %s, 9216, %s" % (v(vTG), v(vTG)))
    a("s_mov_b32 %s, 0" % s(sTC))
    a("s_waitcnt lgkmcnt(0)")
    srd(a, rW, sWQ, 576 * 1728 * 2)
    srd(a, rX, sWQ, 576 * 1728 * 2)
    a("s_mov_b32 %s, %s" % (s(sTB), s(sWQ)))
    a("s_mov_b32 %s, %s" % (s(sTB + 1), s(sWQ + 1)))
    for i in range(opt.get("k1_t0", 2)):
        a("s_call_b64 %s, L_touch" % s(sRET, 2))
    if opt.get("tlb", 1):
        a("s_mov_b32 s88, %s" % s(sWS)); a("s_mov_b32 s89, %s" % s(sWS + 1))
        a("s_mov_b32 %s, %s" % (s(sT0), s(sSLOT)))
        for first, ptr in ((15, sWG), (18, sWU), (21, sWD), (24, sOUT), (26, sWO)):
            a("s_sub_u32 %s, %s, %d" % (s(sT1), s(sSLOT), first))
            a("s_cselect_b32 %s, %s, %s" % (s(sT0), s(sT0), s(sT1)))
            a("s_cselect_b32 s88, s88, %s" % s(ptr))
            a("s_cselect_b32 s89, s89, %s" % s(ptr + 1))
        a("s_cmp_ge_u32 %s, 26" % s(sSLOT))
        a("s_cselect_b32 %s, 0, %s" % (s(sT0), s(sT0)))
        a("s_lshl_b32 %s, %s, 21" % (s(sT0), s(sT0)))
        a("s_cmp_lg_u32 %s, 3" % s(sW4))
        a("s_cbranch_scc1 L_notlb")
        a("s_load_dword s90, s[88:89], %s" % s(sT0))
        a.label("L_notlb")
    a("s_lshl_b32 %s, s2, 2" % s(sT0))
    a("s_add_u32 %s, %s, %s" % (s(sT0), s(sT0), s(sW4)))
    a("s_cmp_lg_u32 %s, 0" % s(sT0))
    a("s_cbranch_scc1 L_notag")
    a("v_mov_b32 %s, 0" % v(vT[2]))
    a("s_or_b32 s88, s92, 1")
    a("v_mov_b32 %s, s88" % v(vT[3]))
    a("s_mov_b64 exec, 1")
    a("global_store_dword %s, %s, %s sc1" % (v(vT[2]), v(vT[3]), s(sDBG, 2)))
    a("s_mov_b64 exec, -1")
    a.label("L_notag")
    a("s_setprio %d" % opt.get("ld_prio", 0))
    a("v_mov_b32 %s, 0" % v(vT[2]))
    a("v_lshlrev_b32 %s, 2, %s" % (v(vT[3]), v(vLANE)))
    a("ds_write_b32 %s, %s offset:%d" % (v(vT[3]), v(vT[2]), CNT))
    srd(a, rWS, sWS, WS_BYTES)
    a("v_bfe_u32 %s, %s, 2, 3" % (v(vT[5]), v(vLANE)))
    a("s_lshl_b32 %s, %s, 3" % (s(sT0), s(sW4)))
    a("v_add_u32 %s, %s, %s" % (v(vT[5]), s(sT0), v(vT[5])))
    a("s_and_b32 %s, %s, 1" % (s(sT0), s(sW4)))
    a("s_lshl_b32 %s, %s, 1" % (s(sT0), s(sT0)))
    a("v_and_b32 %s, 3, %s" % (v(vT[6]), v(vLANE)))
    a("v_xor_b32 %s, %s, %s" % (v(vT[6]), s(sT0), v(vT[6])))
    a("v_lshlrev_b32 %s, 4, %s" % (v(vT[6]), v(vT[6])))
    a("v_lshrrev_b32 %s, 5, %s" % (v(vT[7]), v(vLANE)))
    a("v_lshl_add_u32 %s, %s, 6, %s" % (v(vT[6]), v(vT[7]), v(vT[6])))
    a("v_mul_u32_u24 %s, 3456, %s" % (v(vD), v(vT[5])))
    a("v_add_u32 %s, %s, %s" % (v(vD), v(vD), v(vT[6])))
    a("v_mul_u32_u24 %s, 9216, %s" % (v(vDG), v(vT[5])))
    a("v_add_u32 %s, %s, %s" % (v(vDG), v(vDG), v(vT[6])))
    a("s_mov_b32 %s, %d" % (s(sP32), 32 * 3456))
    a("s_mov_b32 %s, 0" % s(sIC))
    a("s_mov_b32 %s, 0" % s(sIG))
    a("s_mov_b32 %s, 0" % s(sG))
    a("s_lshl_b32 %s, %s, 1" % (s(sKB), s(sROT)))
    a("s_mul_i32 %s, %s, %d" % (s(sLBEG), s(sW4), QTR))
    a("s_add_u32 %s, %s, %d" % (s(sLBEG), s(sLBEG), LB0))
    PFM = opt.get("k1_pfm", 11)
    sPM, sPMO, sPMW = 72, 73, 74
    rPD = 28
    srd(a, rWO, sWO, 576 * 576 * 2)
    srd(a, rPD, sWD, 4608 * 576 * 2)
    a("v_lshlrev_b32 %s, 7, %s" % (v(vPX), v(vLANE)))
    a("s_lshl_b32 %s, s2, 2" % s(sT0))
    a("s_add_u32 %s, %s, %s" % (s(sT0), s(sT0), s(sW4)))
    a("s_mul_i32 %s, %s, %d" % (s(sPMO), s(sT0), 41 * 128))
    a("s_mul_i32 %s, %s, %d" % (s(sPMW), s(sT0), 6 * 128))
    TR0, TRP, TRN = opt.get("k1_tr", (0, 9, 0))
    a("s_mov_b32 %s, %d" % (s(sTN), TR0))
    a("v_mov_b32 v248, 0")
    a("v_mov_b32 v249, 0")
    def issue():
        a("s_call_b64 %s, L_issue" % s(sRET, 2))
    def publish(off):
        own_flag(sT0)
        a("v_mov_b32 %s, %s" % (v(vT[0]), s(sT0)))
        a("v_mov_b32 %s, %s" % (v(vT[1]), s(sTAG)))
        a("s_mov_b32 %s, %d" % (s(sT0), off))
        a("s_mov_b64 exec, 1")
        a("buffer_store_dword %s, %s, %s, %s offen sc1" % (v(vT[1]), v(vT[0]), s(rWS, 4), s(sT0)))
        a("s_mov_b64 exec, -1")
    a("s_waitcnt lgkmcnt(0)")
    ST0, STP = opt.get("k1_st", (0, 0))
    st.stamp()
    for i in range(ST0):
        a("s_call_b64 %s, L_stouch" % s(sRET, 2))
    a("s_barrier")
    issue(); issue()
    for i in range(opt.get("k1_st1", 0)):
        a("s_call_b64 %s, L_stouch" % s(sRET, 2))
    a("s_waitcnt vmcnt(6)")
    a("s_barrier")
    issue(); issue()
    a("s_waitcnt vmcnt(12)")
    a("s_barrier")
    issue(); issue()
    a.label("L_ld")
    a("s_waitcnt vmcnt(18)")
    if opt.get("diag_ld", 0): st.stamp()
    a("s_barrier")
    issue()
    for i in range(STP):
        a("s_call_b64 %s, L_stouch" % s(sRET, 2))
    if TRN:
        a("s_cmp_lg_u32 %s, %s" % (s(sG), s(sTN)))
        a("s_cbranch_scc1 L_notr")
        a("s_add_u32 %s, %s, %d" % (s(sTN), s(sTN), TRP))
        for i in range(TRN):
            a("s_call_b64 %s, L_touch" % s(sRET, 2))
        a.label("L_notr")
    a("s_cmp_lg_u32 %s, 8" % s(sG))
    a("s_cbranch_scc1 L_notg")
    a("global_load_dword v248, v249, %s" % s(sDBG, 2))
    a.label("L_notg")
    a("s_lshl_b32 %s, %s, 8" % (s(sT0), s(sW4)))
    a("s_add_u32 %s, %s, %s" % (s(sT0), s(sT0), s(sG)))
    a("s_mul_i32 %s, %s, 3" % (s(sT1), s(sNQ)))
    a("s_add_u32 %s, %s, 10" % (s(sT1), s(sT1)))
    a("s_cmp_lg_u32 %s, %s" % (s(sT0), s(sT1)))
    a("s_cbranch_scc1 L_noq")
    a("v_readfirstlane_b32 %s, v248" % s(sTAG))
    tag_check("L_tg4")
    publish(F_Q - F_E)
    a.label("L_noq")
    a("s_add_u32 %s, %s, %d" % (s(sT0), s(sG), opt.get("wd_back", 6)))
    a("s_cmp_lg_u32 %s, %s" % (s(sT0), s(sNG)))
    a("s_cbranch_scc1 L_nowd")
    a("s_mov_b32 exec_hi, 0x1ff")
    a("buffer_load_dword v252, %s, %s, %s offen" % (v(vPX), s(rPD, 4), s(sPMO)))
    a("s_mov_b64 exec, 63")
    a("buffer_load_dword v253, %s, %s, %s offen" % (v(vPX), s(rWO, 4), s(sPMW)))
    a("s_mov_b64 exec, -1")
    a.label("L_nowd")
    a("s_add_u32 %s, %s, 6" % (s(sT0), s(sG)))
    a("s_cmp_lg_u32 %s, %s" % (s(sT0), s(sNG)))
    a("s_cbranch_scc1 L_nol1")
    a("s_cmp_lg_u32 %s, 0" % s(sW4))
    a("s_cbranch_scc1 L_nol1")
    publish(0)
    a.label("L_nol1")
    a("s_cmp_lt_u32 %s, %s" % (s(sG), s(sNG)))
    a("s_cbranch_scc1 L_ld")
    a("v_readfirstlane_b32 %s, v248" % s(sTAG))
    tag_check("L_tg3")
    a("s_cmp_lg_u32 %s, 0" % s(sW4))
    a("s_cbranch_scc1 L_noe")
    publish(4096)
    a.label("L_noe")
    a("s_waitcnt vmcnt(18) lgkmcnt(0)")
    a("s_barrier")

    P = 3
    UNR = 6
    sHB, sBO, sHO, sWOFF, sRING, sCNT = 82, 83, 84, 85, 86, 87
    vDO = [4, 5, 7, 8]
    vG2TR = [9, 10]
    vH, vH3, vH4 = 6, 224, 225
    vAPO = 226
    vLP, vG1, vI4 = 227, 228, 229
    vLA, vGO = 230, 231
    T = [232, 233, 234, 235]
    XR = 236
    ACC0, HF0, WG0 = 16, 96, 176
    def GA(rt, nt): return ACC0 + rt * 16 + nt * 4
    def HF(i, rt): return HF0 + (i % P) * 20 + rt * 4
    def GW(i, nt): return WG0 + (i & 1) * 16 + nt * 4
    vG2PO, vG2PV = 2, 3
    sQA, sQZ, sNOT = 72, 73, 75
    tile_of()
    rb_lanes(vG2PO, vG2PV, F_E)
    poll(vG2PV, vG2PO)
    a("s_lshr_b32 %s, %s, 3" % (s(sQA), s(sT2)))
    a("s_lshr_b32 %s, %s, 3" % (s(sQZ), s(sT3)))
    a("s_cmp_lt_u32 %s, 2" % s(sXCD))
    a("s_cselect_b32 %s, 30, 29" % s(sNOT))
    a("v_lshlrev_b32 %s, 4, %s" % (v(vH), v(vLANE)))
    srd(a, rX, sX, 2048 * 576 * 2)
    a("v_mov_b32 %s, %s" % (v(vAPO), s(sQA)))
    a("s_mov_b32 exec_lo, 0")
    a("v_mov_b32 %s, %s" % (v(vAPO), s(sQZ)))
    a("s_mov_b64 exec, -1")
    a("v_lshlrev_b32 %s, 8, %s" % (v(vAPO), v(vAPO)))
    a("v_add_u32 %s, %d, %s" % (v(vAPO), F_A, v(vAPO)))
    srd(a, rW, sWD, 4608 * 576 * 2)
    srd(a, rOUT, sOUT, 2048 * 576 * 2)
    a("s_mul_i32 %s, %s, %d" % (s(sHB), s(sRT), NKS))
    a("s_add_u32 %s, %s, %s" % (s(sHB), s(sHB), s(sW4)))
    a("s_mul_i32 %s, %s, 5120" % (s(sHB), s(sHB)))
    if H_BASE: a("s_add_u32 %s, %s, %d" % (s(sHB), s(sHB), H_BASE))
    a("s_mul_i32 %s, %s, %d" % (s(sWOFF), s(sW4), 32 * 1152))
    a("s_lshl_b32 %s, %s, 7" % (s(sT0), s(sCT)))
    a("s_add_u32 %s, %s, %s" % (s(sWOFF), s(sWOFF), s(sT0)))
    a("s_mov_b32 %s, %s" % (s(sHO), s(sHB)))
    a("s_mul_i32 %s, %s, %d" % (s(sRING), s(sW4), QTR))
    a("s_bitcmp1_b32 %s, 0" % s(sNCH))
    a("s_cselect_b32 %s, %d, 0" % (s(sBO), BUF))
    a("s_add_u32 %s, %s, %d" % (s(sBO), s(sBO), LB0))
    a("s_add_u32 %s, %s, %s" % (s(sRING), s(sRING), s(sBO)))
    a("s_cmp_eq_u32 %s, %d" % (s(sRT), NRT - 1))
    a("s_cselect_b32 %s, 0x40000000, 0" % s(sT0))
    a("v_add_u32 %s, %s, %s" % (v(vH3), s(sT0), v(vH)))
    a("v_add_u32 %s, 4096, %s" % (v(vH4), v(vH3)))
    a("v_bfe_u32 %s, %s, 4, 1" % (v(vG1), v(vLANE)))
    a("v_bfe_u32 %s, %s, 2, 2" % (v(vI4), v(vLANE)))
    a("v_lshlrev_b32 %s, 1, %s" % (v(T[1]), v(vG1)))
    a("v_and_b32 %s, 3, %s" % (v(T[2]), v(vLANE)))
    a("v_xor_b32 %s, %s, %s" % (v(T[1]), v(T[1]), v(T[2])))
    a("v_lshlrev_b32 %s, 4, %s" % (v(T[1]), v(T[1])))
    a("v_lshrrev_b32 %s, 5, %s" % (v(T[3]), v(vLANE)))
    a("v_lshl_add_u32 %s, %s, 6, %s" % (v(vLP), v(T[3]), v(T[1])))
    a("v_bfe_u32 %s, %s, 2, 3" % (v(T[0]), v(vLANE)))
    a("v_mul_u32_u24 %s, 1152, %s" % (v(T[1]), v(T[0])))
    a("v_add_u32 %s, %s, %s" % (v(vDO[0]), v(T[1]), v(vLP)))
    for b in range(1, 4):
        a("v_add_u32 %s, %d, %s" % (v(vDO[b]), b * 9216, v(vDO[0])))
    a("v_lshlrev_b32 %s, 10, %s" % (v(T[3]), v(T[3])))
    a("v_lshl_add_u32 %s, %s, 6, %s" % (v(T[3]), v(T[0]), v(T[3])))
    a("v_lshl_add_u32 %s, %s, 5, %s" % (v(T[3]), v(vG1), v(T[3])))
    a("v_lshl_add_u32 %s, %s, 3, %s" % (v(T[3]), v(T[2]), v(T[3])))
    a("v_add_u32 %s, %s, %s" % (v(vG2TR[0]), s(sRING), v(T[3])))
    a("v_xor_b32 %s, 32, %s" % (v(T[3]), v(T[3])))
    a("v_add_u32 %s, %s, %s" % (v(vG2TR[1]), s(sRING), v(T[3])))
    for r in range(80):
        a("v_mov_b32 %s, 0" % v(ACC0 + r))
    a("s_waitcnt vmcnt(0)")
    a("s_barrier")
    a("s_cmp_ge_u32 %s, %s" % (s(sSLOT), s(sNOT)))
    a("s_cbranch_scc1 L_fin")
    a("s_setprio 2")
    st.stamp()
    flag_wait("L_fe", vG2PV, vG2PO)
    a("v_add_u32 %s, 4096, %s" % (v(vG2PO), v(vG2PO)))
    st.stamp()

    sHOp = [sHO, 74]
    def m0set(i, b):
        return "s_add_u32 m0, %s, %d" % (s(sRING), (i % P) * 4096 + b * 1024)
    def dma(b):
        return "buffer_load_dwordx4 %s, %s, %s offen lds" % (v(vDO[b]), s(rW, 4), s(sWOFF))
    def hld(i, rt, par):
        return "buffer_load_dwordx4 %s, %s, %s, %s offen offset:%d sc1" % (v(HF(i, rt), 4), v(vH4 if rt == 4 else vH3 if rt == 3 else vH), s(rWS, 4), s(sHOp[par]), (rt & 3) * 1024)
    def trd(i, nt, hf):
        return "ds_read_b64_tr_b16 %s, %s offset:%d" % (v(GW(i, nt) + 2 * hf, 2), v(vG2TR[nt & 1]), (i % P) * 4096 + (nt >> 1) * 512 + hf * 2048)
    def look(par):
        if opt.get("x_wsmall", 0) or opt.get("x_hsmall", 0):
            sg = 1 if par else -1
            return ["s_add_u32 %s, %s, %d" % (s(sWOFF), s(sWOFF), (sg if opt.get("x_wsmall", 0) else 1) * 4 * 32 * 1152),
                    "s_add_u32 %s, %s, %d" % (s(sHOp[par]), s(sHOp[1 - par]), (sg if opt.get("x_hsmall", 0) else 1) * 4 * 5120)]
        return ["s_add_u32 %s, %s, %d" % (s(sWOFF), s(sWOFF), 4 * 32 * 1152),
                "s_add_u32 %s, %s, %d" % (s(sHOp[par]), s(sHOp[1 - par]), 4 * 5120)]
    def gather(j, par):
        ops = ["s_add_u32 %s, %s, %d" % (s(sHOp[par]), s(sHB), (36 + j) * 4 * 5120),
               "s_lshl_b32 %s, %s, 7" % (s(sWOFF), s(sCT)),
               "s_lshl_b32 %s, %s, 2" % (s(sT0), s(sW4))]
        for b in range(2):
            U, Hh, Wr = T[0], T[1], T[2]
            ops += ["s_add_u32 %s, %s, %d" % (s(sT1), s(sT0), 16 * j + 2 * b),
                    "v_add_u32 %s, %s, %s" % (v(U), s(sT1), v(vG1)),
                    "v_mul_u32_u24 %s, 171, %s" % (v(Hh), v(U)),
                    "v_lshrrev_b32 %s, 9, %s" % (v(Hh), v(Hh)),
                    "v_mul_u32_u24 %s, 3, %s" % (v(Wr), v(Hh)),
                    "v_sub_u32 %s, %s, %s" % (v(U), v(U), v(Wr)),
                    "v_mul_u32_u24 %s, %s, %s" % (v(U), v(U), v(U)),
                    "v_mul_u32_u24 %s, 18, %s" % (v(Wr), v(Hh)),
                    "v_and_b32 %s, -4, %s" % (v(Wr), v(Wr)),
                    "v_lshl_add_u32 %s, %s, 2, %s" % (v(Wr), v(U), v(Wr)),
                    "v_add_u32 %s, %s, %s" % (v(Wr), v(Wr), v(vI4)),
                    "v_mul_u32_u24 %s, 1152, %s" % (v(Wr), v(Wr)),
                    "v_add_u32 %s, %s, %s" % (v(vDO[b]), v(Wr), v(vLP)),
                    "v_add_u32 %s, %d, %s" % (v(vDO[b + 2]), 8 * 1152, v(vDO[b]))]
        return ops
    def resid():
        return ["s_mul_i32 %s, %s, %d" % (s(sT2), s(sRT), 80 * 1152),
                "s_lshl_b32 %s, %s, 7" % (s(sT0), s(sCT)),
                "s_add_u32 %s, %s, %s" % (s(sT2), s(sT2), s(sT0)),
                "s_lshl_b32 %s, %s, 3" % (s(sT3), s(sW4)),
                "v_lshrrev_b32 %s, 3, %s" % (v(T[0]), v(vLANE)),
                "v_add_u32 %s, %s, %s" % (v(T[0]), s(sT3), v(T[0])),
                "v_and_b32 %s, 7, %s" % (v(T[1]), v(vLANE)),
                "v_lshrrev_b32 %s, 4, %s" % (v(T[2]), v(T[0])),
                "v_lshlrev_b32 %s, 12, %s" % (v(T[2]), v(T[2])),
                "v_lshl_add_u32 %s, %s, 9, %s" % (v(T[2]), v(T[1]), v(T[2])),
                "v_lshlrev_b32 %s, 1, %s" % (v(T[3]), v(T[1])),
                "v_xor_b32 %s, %s, %s" % (v(T[3]), v(T[3]), v(T[0])),
                "v_and_b32 %s, 15, %s" % (v(T[3]), v(T[3])),
                "v_lshl_add_u32 %s, %s, 4, %s" % (v(vLA), v(T[3]), v(T[2])),
                "v_mul_u32_u24 %s, 1152, %s" % (v(T[2]), v(T[0])),
                "v_lshl_add_u32 %s, %s, 4, %s" % (v(T[2]), v(T[1]), v(T[2])),
                "v_add_u32 %s, %s, %s" % (v(vGO), s(sT2), v(T[2])),
                "s_mov_b32 %s, %d" % (s(sT0), 32 * 1152),
                "s_mov_b32 %s, %d" % (s(sT1), 64 * 1152),
                "buffer_load_dwordx4 %s, %s, %s, 0 offen" % (v(XR, 4), v(vGO), s(rX, 4)),
                "buffer_load_dwordx4 %s, %s, %s, %s offen" % (v(XR + 4, 4), v(vGO), s(rX, 4), s(sT0)),
                "buffer_load_dwordx4 %s, %s, %s, %s offen" % (v(XR + 8, 4), v(vGO), s(rX, 4), s(sT1))]
    for i in range(P):
        for b in range(4):
            a(m0set(i, b)); a("s_nop 0"); a(dma(b))
        for rt in range(5):
            a(hld(i, rt, 0))
        a("s_add_u32 %s, %s, %d" % (s(sWOFF), s(sWOFF), 4 * 32 * 1152))
        a("s_add_u32 %s, %s, %d" % (s(sHO), s(sHO), 4 * 5120))
    a("s_waitcnt vmcnt(%d)" % (9 * P - 4))
    for nt in range(4):
        for hf in range(2):
            a(trd(0, nt, hf))
    st.stamp()
    VM = 5 + 9 * (P - 2)
    def iteration(i, pf, vm, nxt, reads=True):
        par = i & 1
        a("s_waitcnt vmcnt(%d) lgkmcnt(0)" % vm)
        rds = [trd(i + 1, nt, hf) for nt in range(4) for hf in range(2)] if reads else []
        nxt = list(nxt)
        per = (len(nxt) + 11) // 12
        for rt in range(5):
            for nt in range(4):
                if rt == 0 and pf: a(m0set(i, nt))
                a("v_mfma_f32_16x16x32_bf16 %s, %s, %s, %s" % (v(GA(rt, nt), 4), v(GW(i, nt), 4), v(HF(i, rt), 4), v(GA(rt, nt), 4)))
                if rt == 0 and pf: a(dma(nt))
                if rt >= 1 and rds:
                    a(rds.pop(0))
                if rt >= 1:
                    for k in range(per):
                        if nxt: a(nxt.pop(0))
            if pf: a(hld(i, rt, par))
        assert not nxt and not rds
    a("s_mov_b32 %s, 0" % s(sCNT))
    a.label("L_g2loop")
    st.stamp()
    for i in range(UNR):
        for at, trip, lab in ((0, 1, "p2"), (3, 1, "c2"), (2, 2, "p3"), (5, 2, "c3")):
            if i == at:
                a("s_cmp_eq_u32 %s, %d" % (s(sCNT), trip))
                a("s_cbranch_scc1 L_hk_%s" % lab)
                a.label("L_hk_%s_r" % lab)
        iteration(i, True, VM, look((i + 1) & 1))
    a("s_add_u32 %s, %s, 1" % (s(sCNT), s(sCNT)))
    a("s_cmp_lg_u32 %s, 5" % s(sCNT))
    a("s_cbranch_scc1 L_g2loop")
    st.stamp()
    for i in range(30, 42):
        t_next = i + 1 + P
        if t_next < 36: nxt = look((i + 1) & 1)
        elif t_next < 42: nxt = gather(t_next - 36, (i + 1) & 1)
        elif t_next == 42: nxt = []
        elif t_next == 43: nxt = resid()
        else: nxt = []
        if i == opt.get("a_poll", 30):
            poll(vG2PV, vAPO)
        if i + P == 36:
            flag_wait("L_fa", vG2PV, vAPO)
            srd(a, rW, sWO, 576 * 576 * 2)
            st.stamp()
        k = i + P - 42
        vm = VM if k <= 0 else (5 + 9 * (P - 2 - k) + 3 if k < P - 1 else 3)
        iteration(i, i + P < 42, vm, nxt, reads=i < 41)
    st.stamp()
    WA = [208, 209, 210, 211, 212, 213]
    a("v_and_b32 %s, 15, %s" % (v(T[0]), v(vLANE)))
    a("v_lshrrev_b32 %s, 5, %s" % (v(T[1]), v(vLANE)))
    a("v_lshlrev_b32 %s, 1, %s" % (v(T[1]), v(T[1])))
    a("v_xor_b32 %s, %s, %s" % (v(T[0]), v(T[0]), v(T[1])))
    a("v_lshrrev_b32 %s, 4, %s" % (v(T[1]), v(vLANE)))
    a("v_lshlrev_b32 %s, 8, %s" % (v(T[1]), v(T[1])))
    a("s_lshl_b32 %s, %s, 11" % (s(sT2), s(sW4)))
    a("s_add_u32 %s, %s, %d" % (s(sT2), s(sT2), SPARE - 2048))
    for nt in range(4):
        a("v_xor_b32 %s, %d, %s" % (v(T[2]), 4 * nt, v(T[0])))
        a("v_lshl_add_u32 %s, %s, 4, %s" % (v(T[2]), v(T[2]), v(T[1])))
        a("v_add_u32 %s, %s, %s" % (v(WA[nt]), s(sRING), v(T[2])))
        if nt >= 2:
            a("v_add_u32 %s, %s, %s" % (v(WA[nt + 2]), s(sT2), v(T[2])))
    for rt in range(5):
        for nt in range(4):
            if rt == 4 and nt >= 2:
                a("ds_write_b128 %s, %s offset:%d" % (v(WA[nt + 2]), v(GA(rt, nt), 4), nt * 1024))
            else:
                a("ds_write_b128 %s, %s offset:%d" % (v(WA[nt]), v(GA(rt, nt), 4), (rt * 4 + nt) * 1024))
    R2 = [214, 215, 216, 217]
    a("v_and_b32 %s, 0xfff, %s" % (v(T[2]), v(vLA)))
    a("v_add_u32 %s, %s, %s" % (v(vLA), s(sBO), v(vLA)))
    a("v_cmp_gt_u32 vcc, 2048, %s" % v(T[2]))
    a("s_add_u32 %s, %s, 16384" % (s(sT2), s(sBO)))
    a("v_mov_b32 %s, %d" % (v(T[0]), SPARE - 2048))
    a("v_mov_b32 %s, %s" % (v(T[1]), s(sT2)))
    a("v_cndmask_b32 %s, %s, %s, vcc" % (v(T[0]), v(T[0]), v(T[1])))
    a("v_add_u32 %s, %s, %s" % (v(R2[0]), v(T[0]), v(T[2])))
    a("v_mov_b32 %s, 2048" % v(T[0]))
    a("v_mov_b32 %s, %d" % (v(T[1]), QTR))
    a("v_cndmask_b32 %s, %s, %s, vcc" % (v(T[0]), v(T[0]), v(T[1])))
    for w in range(1, 4):
        a("v_add_u32 %s, %s, %s" % (v(R2[w]), v(R2[w - 1]), v(T[0])))
    a("s_mov_b32 %s, %d" % (s(sT0), 32 * 1152))
    a("s_mov_b32 %s, %d" % (s(sT1), 64 * 1152))
    a("s_waitcnt vmcnt(0) lgkmcnt(0)")
    st.stamp()
    a("s_barrier")
    st.stamp()
    def red_rd(r):
        B = 96 + 32 * r
        for w in range(4):
            for hh in range(2):
                if r < 2:
                    a("ds_read_b128 %s, %s offset:%d" % (v(B + 8 * w + 4 * hh, 4), v(vLA), w * QTR + r * 8192 + hh * 256))
                else:
                    a("ds_read_b128 %s, %s offset:%d" % (v(B + 8 * w + 4 * hh, 4), v(R2[w]), hh * 256))
    def red_fin(r, lg):
        B = 96 + 32 * r
        xr = XR + 4 * r
        U = 16
        for d in range(4):
            a("v_lshlrev_b32 %s, 16, %s" % (v(U + 2 * d), v(xr + d)))
            a("v_and_b32 %s, 0xffff0000, %s" % (v(U + 2 * d + 1), v(xr + d)))
        a("s_waitcnt lgkmcnt(%d)" % lg)
        for e in range(0, 8, 2):
            a("v_pk_add_f32 %s, %s, %s" % (v(B + e, 2), v(B + e, 2), v(B + 8 + e, 2)))
            a("v_pk_add_f32 %s, %s, %s" % (v(B + 16 + e, 2), v(B + 16 + e, 2), v(B + 24 + e, 2)))
        for e in range(0, 8, 2):
            a("v_pk_add_f32 %s, %s, %s" % (v(B + e, 2), v(B + e, 2), v(U + e, 2)))
        for e in range(0, 8, 2):
            a("v_pk_add_f32 %s, %s, %s" % (v(B + e, 2), v(B + e, 2), v(B + 16 + e, 2)))
        for d in range(4):
            a("v_cvt_pk_bf16_f32 %s, %s, %s" % (v(B + d), v(B + 2 * d), v(B + 2 * d + 1)))
        a("buffer_store_dwordx4 %s, %s, %s, %s offen %s" % (v(B, 4), v(vGO), s(rOUT, 4), ("0", s(sT0), s(sT1))[r], opt.get("out_flag", "sc1")))
    red_rd(0); red_rd(1)
    red_fin(0, 8)
    a("s_cmp_ge_u32 %s, 2" % s(sW4))
    a("s_cbranch_scc1 L_red2")
    red_rd(2)
    red_fin(1, 8)
    red_fin(2, 0)
    a("s_branch L_fin")
    a.label("L_red2")
    red_fin(1, 0)
    a("s_branch L_fin")

    for lab in ("p2", "p3"):
        a.label("L_hk_%s" % lab)
        poll(vG2PV, vG2PO)
        a("s_branch L_hk_%s_r" % lab)
    a.label("L_hk_c2")
    flag_wait("L_f2", vG2PV, vG2PO)
    a("v_add_u32 %s, 4096, %s" % (v(vG2PO), v(vG2PO)))
    a("s_branch L_hk_c2_r")
    a.label("L_hk_c3")
    flag_wait("L_f3", vG2PV, vG2PO)
    a("s_branch L_hk_c3_r")

    a.label("L_fin")
    if opt.get("x_hold", 0):
        a("s_cmp_ge_u32 %s, 4" % s(sWAVE))
        a("s_cbranch_scc1 L_hold_e")
        a.label("L_hold")
        a("s_memrealtime s[100:101]")
        a("s_waitcnt lgkmcnt(0)")
        a("s_sub_u32 s100, s100, %s" % s(sTAG))
        a("s_cmp_lt_u32 s100, %d" % opt["x_hold"])
        a("s_cbranch_scc1 L_hold")
        a.label("L_hold_e")
    if st.on:
        a("s_mov_b64 exec, -1")
        a("v_mov_b32 v0, %s" % v(vLANE))
        a("s_waitcnt vmcnt(0)")
    st.stamp(); st.stamp(True); st.dump(sWAVE, sWS, 254)
    a.label("L_end")
    a("s_endpgm")
    a.label("L_code_end")
    return a.text(), kdesc(F_NAME, 256, 102)
```

```python
import sys, json
from common import *
from f2 import *
HEADER = open("parallel_sum__sliding_block__glu_gated_bilinear__prompt.s.ref").read().split("; Override launch geometry")[0]
def generate(opt):
    t, d = gen_f2(opt)
    out = HEADER
    if opt.get("as_list", 0):
        out += "; @launch kernel=%s grid=(256,1,1) block=(512,1,1) lds=%d\n" % (F_NAME, F_LDS)
    else:
        out += "; @launch grid=(256,1,1) block=(512,1,1) lds=%d\n" % F_LDS
    out += '.amdgcn_target "amdgcn-amd-amdhsa--gfx950"\n'
    return out + t + d
if __name__ == "__main__":
    path = sys.argv[1] if len(sys.argv) > 1 else "parallel_sum__sliding_block__glu_gated_bilinear__prompt.s"
    opt = json.loads(sys.argv[2]) if len(sys.argv) > 2 else {}
    open(path, "w").write(generate(opt))
    print("wrote", path)
```

```python
from common import *
import math, struct

F_NAME = "parallel_sum__sliding_block__glu_gated_bilinear__prompt_kernel"
BUF = 73728
QTR = 18432
CNT = 0
LB0 = 4096
C_E, C_L, C_A0, C_A1, C_GO, C_TAG = CNT + 32, CNT + 36, CNT + 40, CNT + 44, CNT + 48, CNT + 52
C_PROD = CNT + 256
C_CONS = CNT + 64
SPARE = LB0 + 2 * BUF
F_LDS = SPARE + 8192
PART = 21760
F_E, F_A, F_Q = FL_BASE, FL_BASE + 16384, FL_BASE + 12288
SPIN = 100000

def fbits(x):
    return struct.unpack("<I", struct.pack("<f", x))[0]

def gen_f2(opt):
    global BUF, QTR
    if opt.get("x_oldlayout", 0):
        BUF, QTR = 18432, 36864
    a = Asm()
    a.raw(khead(F_NAME))
    sX, sWQ, sWG, sWU, sDBG, sWS, sWO, sWD, sOUT = 4, 6, 8, 10, 12, 14, 44, 48, 50
    rX, rW, rWO, rOUT, rWS = 16, 20, 24, 28, 32
    sWAVE, sW4, sXCD, sSLOT = 36, 37, 38, 39
    sT0, sT1, sT2, sT3 = 40, 41, 42, 43
    sSPIN = 47
    sRET = 98
    sRB, sCG, sROT, sNQ, sNP, sQ0, sP0, sNCH, sNG = 52, 53, 54, 55, 56, 57, 58, 60, 71
    vLANE = 1

    a("s_cmp_ge_u32 s2, 256")
    a("s_cbranch_scc1 L_end")
    a("s_load_dwordx4 s[4:7], s[0:1], %d" % KA_X)
    a("s_load_dwordx4 s[8:11], s[0:1], %d" % KA_WG)
    a("s_load_dwordx4 s[12:15], s[0:1], %d" % KA_DBG)
    a("s_load_dwordx2 s[44:45], s[0:1], %d" % KA_WO)
    a("s_load_dwordx4 s[48:51], s[0:1], %d" % KA_WD)
    a("s_memrealtime s[92:93]")
    if opt.get("code_pf", 1):
        a("s_getpc_b64 s[96:97]")
        a("s_lshr_b32 s3, s2, 3")
        a("s_lshl_b32 s3, s3, 11")
        a("v_lshl_add_u32 v14, v0, 7, s3")
        a("v_min_u32 v14, L_code_end-%s-192, v14" % F_NAME)
        a("v_cmp_gt_u32 vcc, 16, v0")
        a("s_and_saveexec_b64 s[88:89], vcc")
        a("s_cbranch_execz L_nocpf")
        a("global_load_dword v255, v14, s[96:97]")
        a.label("L_nocpf")
        a("s_mov_b64 exec, s[88:89]")
    st = Stamper(a, opt.get("diag", 0), 15, 100, 0, scnt=46)
    st.init(); st.stamp(True); st.stamp()
    vT = list(range(236, 252))
    a("v_and_b32 %s, 63, v0" % v(vLANE))
    a("v_lshrrev_b32 %s, 6, v0" % v(vT[0]))
    a("s_and_b32 %s, s2, 7" % s(sXCD))
    a("s_lshr_b32 %s, s2, 3" % s(sSLOT))
    a("v_readfirstlane_b32 %s, %s" % (s(sWAVE), v(vT[0])))
    LR = opt.get("k1_lrb", 3)
    RBX, CGX = 1 << LR, 32 >> LR
    sRBL = 79
    a("s_and_b32 %s, %s, %d" % (s(sRBL), s(sSLOT), RBX - 1))
    a("s_lshr_b32 %s, %s, %d" % (s(sT1), s(sSLOT), LR))
    a("s_and_b32 %s, %s, %d" % (s(sT2), s(sXCD), 16 // RBX - 1))
    a("s_lshr_b32 %s, %s, %d" % (s(sT0), s(sXCD), 4 - LR))
    a("s_lshl_b32 %s, %s, %d" % (s(sRB), s(sT2), LR))
    a("s_add_u32 %s, %s, %s" % (s(sRB), s(sRB), s(sRBL)))
    a("s_lshl_b32 %s, %s, %d" % (s(sCG), s(sT0), 5 - LR))
    a("s_add_u32 %s, %s, %s" % (s(sCG), s(sCG), s(sT1)))
    mr, mc, mx = opt.get("k1_rot", {4: (1, 4, 1), 3: (1, 2, 1), 2: (2, 1, 0)}[LR])
    a("s_mul_i32 %s, %s, %d" % (s(sT3), s(sRBL), mr))
    a("s_mul_i32 %s, %s, %d" % (s(sT1), s(sT1), mc))
    a("s_mul_i32 %s, %s, %d" % (s(sT0), s(sT0), mx))
    a("s_add_u32 %s, %s, %s" % (s(sROT), s(sT3), s(sT1)))
    a("s_add_u32 %s, %s, %s" % (s(sROT), s(sROT), s(sT0)))
    a("s_mul_i32 %s, %s, 57" % (s(sT0), s(sROT)))
    a("s_lshr_b32 %s, %s, 9" % (s(sT0), s(sT0)))
    a("s_mul_i32 %s, %s, 9" % (s(sT0), s(sT0)))
    a("s_sub_u32 %s, %s, %s" % (s(sROT), s(sROT), s(sT0)))
    a("s_and_b32 %s, %s, 3" % (s(sW4), s(sWAVE)))
    sNE = 94
    def worklist():
        a("s_lshr_b32 %s, %s, 1" % (s(sT0), s(sCG)))
        a("s_bitcmp1_b32 0x15, %s" % s(sT0))
        a("s_cselect_b32 %s, 3, 2" % s(sNQ))
        a("s_add_u32 %s, %s, 1" % (s(sQ0), s(sT0)))
        a("s_lshr_b32 %s, %s, 1" % (s(sQ0), s(sQ0)))
        a("s_min_u32 %s, %s, 3" % (s(sQ0), s(sQ0)))
        a("s_lshl_b32 %s, %s, 1" % (s(sT1), s(sT0)))
        a("s_add_u32 %s, %s, %s" % (s(sQ0), s(sQ0), s(sT1)))
        a("s_add_u32 %s, %s, 8" % (s(sQ0), s(sQ0)))
        a("s_add_u32 %s, %s, 16" % (s(sP0), s(sT0)))
        a("s_bitcmp0_b32 %s, 0" % s(sCG))
        a("s_cselect_b32 %s, 1, %s" % (s(sNQ), s(sNQ)))
        a("s_cselect_b32 %s, %s, %s" % (s(sQ0), s(sT0), s(sQ0)))
        a("s_cselect_b32 %s, %s, %s" % (s(sP0), s(sT1), s(sP0)))
        a("s_cselect_b32 %s, 2, 1" % s(sNE))
        a("s_lshl_b32 %s, %s, 1" % (s(sNCH), s(sNE)))
        a("s_add_u32 %s, %s, 6" % (s(sNCH), s(sNCH)))
        a("s_add_u32 %s, %s, %s" % (s(sNCH), s(sNCH), s(sNQ)))
        a("s_mul_i32 %s, %s, 3" % (s(sNG), s(sNCH)))
    def pair_ops(sj):
        return ["s_sub_u32 %s, %s, %s" % (s(sT2), s(sj), s(sNE)),
                "s_lshl_b32 %s, %s, 1" % (s(sT3), s(sCG)),
                "s_add_u32 %s, %s, %s" % (s(sT3), s(sT3), s(sT2)),
                "s_add_u32 %s, %s, 39" % (s(sT3), s(sT3)),
                "s_add_u32 %s, %s, 24" % (s(sT2), s(sCG)),
                "s_cmp_eq_u32 %s, %s" % (s(sj), s(sNE)),
                "s_cselect_b32 %s, %s, %s" % (s(sT3), s(sT2), s(sT3)),
                "s_add_u32 %s, %s, %s" % (s(sT2), s(sj), s(sP0)),
                "s_cmp_lt_u32 %s, %s" % (s(sj), s(sNE)),
                "s_cselect_b32 %s, %s, %s" % (s(sj), s(sT2), s(sT3))]
    def pair_of(sj):
        for l in pair_ops(sj): a(l)
    sRT, sCT, sNOT = 80, 81, 75
    def tile_of():
        if opt.get("g2_map", 0) == 0:
            a("s_mul_i32 %s, %s, 29" % (s(sT0), s(sXCD)))
            a("s_cmp_eq_u32 %s, 7" % s(sXCD))
            a("s_addc_u32 %s, %s, 0" % (s(sT0), s(sT0)))
            a("s_add_u32 %s, %s, %s" % (s(sT0), s(sT0), s(sSLOT)))
            a("s_min_u32 %s, %s, 233" % (s(sT0), s(sT0)))
            a("s_mul_i32 %s, %s, 7282" % (s(sRT), s(sT0)))
            a("s_lshr_b32 %s, %s, 16" % (s(sRT), s(sRT)))
            a("s_mul_i32 %s, %s, 9" % (s(sT1), s(sRT)))
            a("s_sub_u32 %s, %s, %s" % (s(sCT), s(sT0), s(sT1)))
            a("s_cmp_ge_u32 %s, 6" % s(sXCD))
            a("s_cselect_b32 %s, 30, 29" % s(sNOT))
        else:
            a("s_sub_u32 %s, %s, 20" % (s(sT0), s(sSLOT)))
            a("s_mul_i32 %s, %s, 6" % (s(sT1), s(sXCD)))
            a("s_cmp_eq_u32 %s, 7" % s(sXCD))
            a("s_cselect_b32 %s, %s, %s" % (s(sT0), s(sT0), s(sSLOT)))
            a("s_cselect_b32 %s, 24, %s" % (s(sT1), s(sT1)))
            a("s_cselect_b32 %s, 20, 32" % s(sT3))
            a("s_mul_i32 %s, %s, 205" % (s(sT2), s(sT0)))
            a("s_lshr_b32 %s, %s, 10" % (s(sT2), s(sT2)))
            a("s_add_u32 %s, %s, %s" % (s(sRT), s(sT1), s(sT2)))
            a("s_mul_i32 %s, %s, 5" % (s(sT2), s(sT2)))
            a("s_sub_u32 %s, %s, %s" % (s(sCT), s(sT0), s(sT2)))
            a("s_cmp_lt_u32 %s, 4" % s(sXCD))
            a("s_cselect_b32 %s, 0, %s" % (s(sT3), s(sT3)))
            a("s_sub_u32 %s, %s, 4" % (s(sT0), s(sXCD)))
            a("s_mul_i32 %s, %s, 7" % (s(sT0), s(sT0)))
            a("s_lshr_b32 %s, %s, 2" % (s(sT1), s(sSLOT)))
            a("s_add_u32 %s, %s, %s" % (s(sT0), s(sT0), s(sT1)))
            a("s_and_b32 %s, %s, 3" % (s(sT1), s(sSLOT)))
            a("s_add_u32 %s, %s, 5" % (s(sT1), s(sT1)))
            a("s_cmp_lt_u32 %s, %s" % (s(sSLOT), s(sT3)))
            a("s_cselect_b32 %s, %s, %s" % (s(sRT), s(sT0), s(sRT)))
            a("s_cselect_b32 %s, %s, %s" % (s(sCT), s(sT1), s(sCT)))
            a("s_min_u32 %s, %s, %d" % (s(sRT), s(sRT), NRT - 1))
            a("s_cmp_eq_u32 %s, 32" % s(sT3))
            a("s_cselect_b32 %s, 28, 30" % s(sNOT))
        a("s_mul_i32 %s, %s, 80" % (s(sT0), s(sRT)))
        a("s_add_u32 %s, %s, 79" % (s(sT1), s(sT0)))
        a("s_min_u32 %s, %s, 2047" % (s(sT1), s(sT1)))
        a("s_lshr_b32 %s, %s, 7" % (s(sT2), s(sT0)))
        a("s_lshr_b32 %s, %s, 7" % (s(sT3), s(sT1)))
        a("s_lshl_b32 %s, %s, 2" % (s(sT2), s(sT2)))
        a("s_lshl_b32 %s, %s, 2" % (s(sT3), s(sT3)))
    def lds_wait(name, vaddr, vtmp, sneed, sleep=1):
        a.label(name)
        a("ds_read_b32 %s, %s" % (v(vtmp), v(vaddr)))
        a("s_waitcnt lgkmcnt(0)")
        a("v_cmp_gt_u32 vcc, %s, %s" % (sneed, v(vtmp)))
        a("s_cbranch_vccz %s_ok" % name)
        if sleep: a("s_sleep %d" % sleep)
        a("s_branch %s" % name)
        a.label(name + "_ok")
    sTAG = 3
    def poll(vval, voff):
        a("buffer_load_dword %s, %s, %s, 0 offen sc1" % (v(vval), v(voff), s(rWS, 4)))
    def flag_wait(name, vval, voff, sleep=None):
        a("s_mov_b32 %s, %d" % (s(sSPIN), SPIN))
        a.label(name)
        a("v_cmp_ne_u32 vcc, %s, %s" % (s(sTAG), v(vval)))
        a("s_cbranch_vccz %s_ok" % name)
        a("s_sub_u32 %s, %s, 1" % (s(sSPIN), s(sSPIN)))
        a("s_cbranch_scc1 %s_ok" % name)
        a("s_sleep %d" % (sleep or opt.get("poll_sleep", 16)))
        poll(vval, voff)
        a("s_waitcnt vmcnt(0)")
        a("s_branch %s" % name)
        a.label(name + "_ok")
    def tag_issue():
        a("s_load_dword %s, %s, 0" % (s(sTAG), s(sDBG, 2)))
    def tag_check(name):
        a("s_mov_b32 %s, %d" % (s(sSPIN), SPIN))
        a("s_sub_u32 %s, s92, %s" % (s(sT0), s(sTAG)))
        a("s_cmp_gt_i32 %s, 2000" % s(sT0))
        a("s_cselect_b32 %s, 0, %s" % (s(sTAG), s(sTAG)))
        a.label(name)
        a("s_cmp_lg_u32 %s, 0" % s(sTAG))
        a("s_cbranch_scc1 %s_ok" % name)
        a("s_sub_u32 %s, %s, 1" % (s(sSPIN), s(sSPIN)))
        a("s_cbranch_scc1 %s_ok" % name)
        a("s_load_dword %s, %s, 0 glc" % (s(sTAG), s(sDBG, 2)))
        a("s_waitcnt lgkmcnt(0)")
        a("s_sleep 8")
        a("s_branch %s" % name)
        a.label(name + "_ok")
    def own_flag(sd):
        a("s_lshl_b32 %s, %s, 6" % (s(sd), s(sRB)))
        a("s_add_u32 %s, %s, %s" % (s(sd), s(sd), s(sCG)))
        a("s_lshl_b32 %s, %s, 2" % (s(sd), s(sd)))
        a("s_add_u32 %s, %s, %d" % (s(sd), s(sd), F_E))
    def rb_lanes(vd, vt, base):
        a("v_mov_b32 %s, %s" % (v(vd), s(sT2)))
        a("v_mov_b32 %s, %s" % (v(vt), s(sT3)))
        a("s_mov_b32 vcc_lo, 0xffff0000")
        a("s_mov_b32 vcc_hi, 0xffff0000")
        a("v_cndmask_b32 %s, %s, %s, vcc" % (v(vd), v(vd), v(vt)))
        a("v_and_b32 %s, 15, %s" % (v(vt), v(vLANE)))
        a("v_lshl_add_u32 %s, %s, 4, %s" % (v(vd), v(vd), v(vt)))
        a("v_lshlrev_b32 %s, 2, %s" % (v(vd), v(vd)))
        a("v_add_u32 %s, %d, %s" % (v(vd), base, v(vd)))
    a("s_cmp_ge_u32 %s, 4" % s(sWAVE))
    a("s_cbranch_scc1 L_loader")

    sI, sEP0, sEP1, sHB0, sHB1, sQB, sE2, sXO, sXC, sXL, sNEED = 59, 61, 62, 63, 64, 65, 66, 67, 68, 69, 70
    vTR = [[2, 3], [4, 5]]
    vL16 = 6
    vR, vR2 = [7, 8], [9, 10]
    vPA, vPV, vCA, vCV = 11, 12, 13, 14
    X0 = 16
    ACC = [160, 192]
    WF0 = 224
    NF, PD = 8, 7
    def X(m, ks): return X0 + 8 * ks + 4 * m
    def WF(q): return WF0 + 4 * (q % NF)
    def TL(A, nt, m): return A + (m * 4 + nt) * 4
    a("s_lshl_b32 %s, %s, 7" % (s(sT0), s(sRB)))
    a("s_lshl_b32 %s, %s, 5" % (s(sT1), s(sWAVE)))
    a("s_add_u32 %s, %s, %s" % (s(sT0), s(sT0), s(sT1)))
    a("s_mul_i32 %s, %s, 1152" % (s(sXO), s(sT0)))
    a("s_lshl_b32 %s, %s, 7" % (s(sXC), s(sROT)))
    a("s_mul_i32 %s, %s, %d" % (s(sXL), s(sWAVE), QTR))
    a("s_add_u32 %s, %s, %d" % (s(sXL), s(sXL), LB0 + BUF))
    vXO = [vT[0], vT[3]]
    a("v_lshrrev_b32 %s, 3, %s" % (v(vT[1]), v(vLANE)))
    a("v_and_b32 %s, 7, %s" % (v(vT[2]), v(vLANE)))
    a("v_mul_u32_u24 %s, 1152, %s" % (v(vT[4]), v(vT[1])))
    a("v_lshrrev_b32 %s, 4, %s" % (v(vT[5]), v(vLANE)))
    a("v_xor_b32 %s, %s, %s" % (v(vT[6]), v(vT[2]), v(vT[5])))
    a("v_lshl_add_u32 %s, %s, 4, %s" % (v(vXO[0]), v(vT[6]), v(vT[4])))
    a("v_xor_b32 %s, 4, %s" % (v(vT[6]), v(vT[6])))
    a("v_lshl_add_u32 %s, %s, 4, %s" % (v(vXO[1]), v(vT[6]), v(vT[4])))
    a("v_add_u32 %s, %d, %s" % (v(vXO[1]), 8 * 1152, v(vXO[1])))
    a("s_waitcnt lgkmcnt(0)")
    srd(a, rX, sX, 2048 * 576 * 2)
    def xdma(i):
        sl = (i % 4) * 4096
        a("s_add_u32 %s, %s, %s" % (s(sT2), s(sXO), s(sXC)))
        a("s_add_u32 m0, %s, %d" % (s(sXL), sl))
        a("s_add_u32 %s, %s, %d" % (s(sT3), s(sT2), 16 * 1152))
        a("buffer_load_dwordx4 %s, %s, %s offen lds" % (v(vXO[0]), s(rX, 4), s(sT2)))
        a("s_add_u32 m0, %s, %d" % (s(sXL), sl + 1024))
        a("s_add_u32 %s, %s, 128" % (s(sXC), s(sXC)))
        a("buffer_load_dwordx4 %s, %s, %s offen lds" % (v(vXO[1]), s(rX, 4), s(sT2)))
        a("s_add_u32 m0, %s, %d" % (s(sXL), sl + 2048))
        a("s_cmp_eq_u32 %s, 1152" % s(sXC))
        a("buffer_load_dwordx4 %s, %s, %s offen lds" % (v(vXO[0]), s(rX, 4), s(sT3)))
        a("s_cselect_b32 %s, 0, %s" % (s(sXC), s(sXC)))
        a("s_add_u32 m0, %s, %d" % (s(sXL), sl + 3072))
        a("s_nop 0")
        a("buffer_load_dwordx4 %s, %s, %s offen lds" % (v(vXO[1]), s(rX, 4), s(sT3)))
    xdma(0); xdma(1)
    AQ = opt.get("a_q", 2)
    a("s_and_b32 %s, %s, %d" % (s(sT0), s(sXCD), (8 >> AQ) - 1))
    a("s_lshl_b32 %s, %s, %d" % (s(sT0), s(sT0), AQ))
    a("s_and_b32 %s, %s, %d" % (s(sT1), s(sSLOT), (1 << AQ) - 1))
    a("s_add_u32 %s, %s, %s" % (s(sT0), s(sT0), s(sT1)))
    a("s_lshr_b32 %s, %s, %d" % (s(sT1), s(sXCD), 3 - AQ))
    a("s_lshl_b32 %s, %s, %d" % (s(sT1), s(sT1), 5 - AQ))
    a("s_lshr_b32 %s, %s, %d" % (s(sSLOT), s(sSLOT), AQ))
    a("s_add_u32 %s, %s, %s" % (s(sSLOT), s(sSLOT), s(sT1)))
    a("s_mov_b32 %s, %s" % (s(sXCD), s(sT0)))
    srd(a, rWS, sWS, WS_BYTES)
    worklist()
    a("v_lshlrev_b32 %s, 4, %s" % (v(vL16), v(vLANE)))
    vRA = [vT[7], vT[8]]
    a("v_and_b32 %s, 15, %s" % (v(vT[6]), v(vLANE)))
    a("v_lshrrev_b32 %s, 1, %s" % (v(vT[9]), v(vT[6])))
    a("v_xor_b32 %s, %s, %s" % (v(vT[9]), v(vT[9]), v(vT[5])))
    a("v_lshlrev_b32 %s, 4, %s" % (v(vT[9]), v(vT[9])))
    a("v_lshl_add_u32 %s, %s, 7, %s" % (v(vT[9]), v(vT[6]), v(vT[9])))
    a("v_add_u32 %s, %s, %s" % (v(vRA[0]), s(sXL), v(vT[9])))
    a("v_xor_b32 %s, 64, %s" % (v(vT[9]), v(vT[9])))
    a("v_add_u32 %s, %s, %s" % (v(vRA[1]), s(sXL), v(vT[9])))
    SEL, ONE = 224, 232
    a("v_lshrrev_b32 %s, 2, %s" % (v(vT[9]), v(vT[6])))
    a("v_cmp_eq_u32 vcc, %s, %s" % (v(vT[9]), v(vT[5])))
    a("v_and_b32 %s, 1, %s" % (v(vT[9]), v(vLANE)))
    a("v_lshlrev_b32 %s, 4, %s" % (v(vT[9]), v(vT[9])))
    a("v_mov_b32 %s, 0x3f80" % v(vT[1]))
    a("v_lshlrev_b32 %s, %s, %s" % (v(vT[9]), v(vT[9]), v(vT[1])))
    a("v_cndmask_b32 %s, 0, %s, vcc" % (v(vT[9]), v(vT[9])))
    for r, c in ((72, 0xcccccccc), (73, 0xcccccccc), (74, 0xaaaaaaaa), (75, 0xaaaaaaaa), (76, 0x00f0000f), (77, 0xf0000f00)):
        a("s_mov_b32 s%d, 0x%x" % (r, c))
    a("v_cndmask_b32 %s, %s, 0, s[72:73]" % (v(SEL + 2), v(vT[9])))
    a("v_cndmask_b32 %s, 0, %s, s[72:73]" % (v(SEL + 3), v(vT[9])))
    for r in (0, 1, 4, 5):
        a("v_mov_b32 %s, 0" % v(SEL + r))
    for r in range(4):
        a("v_mov_b32 %s, 0x3f803f80" % v(ONE + r))
    a("v_mul_u32_u24 %s, %d, %s" % (v(vT[9]), QTR, v(vT[5])))
    a("v_add_u32 %s, %d, %s" % (v(vT[9]), LB0, v(vT[9])))
    a("v_bfe_u32 %s, %s, 2, 2" % (v(vT[6]), v(vLANE)))
    a("v_lshl_add_u32 %s, %s, 6, %s" % (v(vT[9]), v(vT[6]), v(vT[9])))
    a("v_and_b32 %s, 3, %s" % (v(vT[6]), v(vLANE)))
    a("v_lshl_add_u32 %s, %s, 3, %s" % (v(vT[9]), v(vT[6]), v(vT[9])))
    a("v_and_b32 %s, 1, %s" % (v(vT[6]), v(vT[5])))
    a("v_lshl_add_u32 %s, %s, 5, %s" % (v(vTR[0][0]), v(vT[6]), v(vT[9])))
    a("v_xor_b32 %s, 32, %s" % (v(vTR[0][1]), v(vTR[0][0])))
    a("v_add_u32 %s, %d, %s" % (v(vTR[1][0]), BUF, v(vTR[0][0])))
    a("v_add_u32 %s, %d, %s" % (v(vTR[1][1]), BUF, v(vTR[0][1])))

    xdma(2); xdma(3)
    if opt.get("diag", 0) == 1: st.stamp()
    for m, sH in ((0, sHB0), (1, sHB1)):
        a("s_lshl_b32 %s, %s, 3" % (s(sT0), s(sRB)))
        a("s_lshl_b32 %s, %s, 1" % (s(sT1), s(sWAVE)))
        a("s_add_u32 %s, %s, %s" % (s(sT0), s(sT0), s(sT1)))
        a("s_add_u32 %s, %s, %d" % (s(sT0), s(sT0), m))
        a("s_mul_i32 %s, %s, 205" % (s(sT1), s(sT0)))
        a("s_lshr_b32 %s, %s, 10" % (s(sT1), s(sT1)))
        a("s_mul_i32 %s, %s, %d" % (s(sT1), s(sT1), NKS * 5 - 5))
        a("s_add_u32 %s, %s, %s" % (s(sT0), s(sT0), s(sT1)))
        a("s_lshl_b32 %s, %s, 10" % (s(sH), s(sT0)))
        if H_BASE: a("s_add_u32 %s, %s, %d" % (s(sH), s(sH), H_BASE))
    sFO = 91
    own_flag(sFO)
    sPJ = 78
    a("s_mov_b32 %s, 0" % s(sPJ))
    a("s_lshl_b32 %s, %s, 2" % (s(sT0), s(sRB)))
    a("s_add_u32 %s, %s, %s" % (s(sT0), s(sT0), s(sWAVE)))
    a("s_mul_i32 %s, %s, 108" % (s(sT0), s(sT0)))
    a("s_lshl_b32 %s, %s, 2" % (s(sT1), s(sQ0)))
    a("s_add_u32 %s, %s, %s" % (s(sT0), s(sT0), s(sT1)))
    a("s_lshl_b32 %s, %s, 10" % (s(sQB), s(sT0)))
    a("s_add_u32 %s, %s, %d" % (s(sQB), s(sQB), QKV_BASE))
    SUM, GRM = [160, 164], [208, 212]
    def cstat(i):
        for e in range(2):
            for m in range(2):
                x = v(X(m, 2 * i + e), 4)
                first = i == 0 and e == 0
                a("v_mfma_f32_16x16x32_bf16 %s, %s, %s, %s" % (v(SUM[m], 4), v(ONE, 4), x, "0" if first else v(SUM[m], 4)))
                a("v_mfma_f32_16x16x32_bf16 %s, %s, %s, %s" % (v(GRM[m], 4), x, x, "0" if first else v(GRM[m], 4)))
    for i in range(9):
        issued = min(9, max(4, i + 3))
        a("s_waitcnt vmcnt(%d)" % (4 * (issued - i - 1)))
        for e in range(2):
            for m in range(2):
                a("ds_read_b128 %s, %s offset:%d" % (v(X(m, 2 * i + e), 4), v(vRA[e]), (i % 4) * 4096 + m * 2048))
        if i > 0:
            a("s_waitcnt lgkmcnt(4)")
            if i + 3 < 9:
                xdma(i + 3)
            cstat(i - 1)
    a("s_waitcnt lgkmcnt(0)")
    a("s_barrier")
    cstat(8)
    st.stamp()
    a("s_nop 6")
    inv = 0x3ae38e39
    MEAN = [168, 169]
    for m in range(2):
        a("v_mul_f32 %s, 0x%x, %s" % (v(MEAN[m]), inv, v(SUM[m])))
    a("v_cvt_pk_bf16_f32 v170, %s, %s" % (v(MEAN[0]), v(MEAN[1])))
    a("v_xor_b32 v170, 0x80008000, v170")
    for r in range(4):
        a("v_lshlrev_b32 %s, 16, v170" % v(SUM[0] + r))
    for r in range(4):
        a("v_and_b32 %s, 0xffff0000, v170" % v(SUM[1] + r))
    vc = []
    for m in range(2):
        G = GRM[m]
        vc.append("v_cndmask_b32 %s, %s, %s, s[74:75]" % (v(G), v(G), v(G + 1)))
        vc.append("v_cndmask_b32 %s, %s, %s, s[74:75]" % (v(G + 2), v(G + 2), v(G + 3)))
    def both(f):
        for m in range(2): vc.append(f(GRM[m], m))
    both(lambda G, m: "v_cndmask_b32 %s, %s, %s, s[72:73]" % (v(G), v(G), v(G + 2)))
    both(lambda G, m: "v_cndmask_b32 %s, 0, %s, s[76:77]" % (v(G), v(G)))
    for sw in ("v_permlane16_swap_b32", "v_permlane32_swap_b32"):
        both(lambda G, m: "v_mov_b32 %s, %s" % (v(G + 1), v(G)))
        both(lambda G, m: "%s %s, %s" % (sw, v(G), v(G + 1)))
        both(lambda G, m: "v_add_f32 %s, %s, %s" % (v(G), v(G), v(G + 1)))
    both(lambda G, m: "v_mul_f32 %s, 0x%x, %s" % (v(G), inv, v(G)))
    both(lambda G, m: "v_fma_f32 %s, -%s, %s, %s" % (v(G), v(MEAN[m]), v(MEAN[m]), v(G)))
    both(lambda G, m: "v_max_f32 %s, 0, %s" % (v(G), v(G)))
    for op in ("add", "sqrt", "rcp"):
        both(lambda G, m: "v_cvt_pk_bf16_f32 %s, %s, %s" % (v(G), v(G), v(G)))
        both(lambda G, m: "v_and_b32 %s, 0xffff0000, %s" % (v(G), v(G)))
        if op == "add": both(lambda G, m: "v_add_f32 %s, 0x3727c5ac, %s" % (v(G), v(G)))
        elif op == "sqrt": both(lambda G, m: "v_sqrt_f32 %s, %s" % (v(G), v(G)))
        else: both(lambda G, m: "v_rcp_f32 %s, %s" % (v(vR[m]), v(G)))
    both(lambda G, m: "v_mul_f32 %s, %s, %s" % (v(vR2[m]), v(vR[m]), v(vR[m])))
    frs = [(m, ks) for ks in range(18) for m in range(2)]
    def DT(n): return 176 + 8 * (n % 4)
    def app_m(n, h):
        m, ks = frs[n]
        a("v_mfma_f32_16x16x32_bf16 %s, %s, %s, %s" % (v(DT(n) + 4 * h, 4), v(SEL + 2 - 2 * h, 4), v(X(m, ks), 4), v(SUM[m], 4)))
    def app_c(n, h):
        m, ks = frs[n]
        for d in (2 * h, 2 * h + 1):
            a("v_cvt_pk_bf16_f32 %s, %s, %s" % (v(X(m, ks) + d), v(DT(n) + 2 * d), v(DT(n) + 2 * d + 1)))
    for n in range(3):
        app_m(n, 0); app_m(n, 1)
    a("s_nop 3")
    for n in range(36):
        for h in range(2):
            app_c(n, h)
            if n + 3 < 36:
                app_m(n + 3, h)
            if vc and n >= 10:
                a(vc.pop(0))
    assert not vc

    def rd(q, bf):
        ks, nt = q >> 2, q & 3
        off = ks * 1024 + (nt >> 1) * 512
        return ["ds_read_b64_tr_b16 %s, %s offset:%d" % (v(WF(q), 2), v(vTR[bf][nt & 1]), off),
                "ds_read_b64_tr_b16 %s, %s offset:%d" % (v(WF(q) + 2, 2), v(vTR[bf][nt & 1]), off + 256)]

    def epi_tail(B, typ):
        ops = []
        if typ == "u":
            for m, sE in ((0, sEP0), (1, sEP1)):
                for kk in range(2):
                    R = TL(B, 2 * kk, m)
                    for j in range(4):
                        ops.append("v_cvt_pk_bf16_f32 %s, %s, %s" % (v(R + j), v(R + 2 * j), v(R + 2 * j + 1)))
                    if kk == 0:
                        ops.append("buffer_store_dwordx4 %s, %s, %s, %s offen sc1" % (v(R, 4), v(vL16), s(rWS, 4), s(sE)))
                    else:
                        ops.append("s_add_u32 %s, %s, 5120" % (s(sE2), s(sE)))
                        ops.append("buffer_store_dwordx4 %s, %s, %s, %s offen sc1" % (v(R, 4), v(vL16), s(rWS, 4), s(sE2)))
        elif typ == "n":
            ops.append("s_mov_b32 %s, %s" % (s(sT1), s(sPJ)))
            ops += pair_ops(sT1)
            ops.append("s_mul_i32 %s, %s, 10240" % (s(sT1), s(sT1)))
            ops.append("s_add_u32 %s, %s, %s" % (s(sEP0), s(sHB0), s(sT1)))
            ops.append("s_add_u32 %s, %s, %s" % (s(sEP1), s(sHB1), s(sT1)))
            for m in range(2):
                for r in range(16):
                    R = TL(B, 0, m) + r
                    ops.append("v_mul_f32 %s, %s, %s" % (v(R), v(vR2[m]), v(R)))
        elif typ == "q":
            for nt in range(4):
                P, Q = TL(B, nt, 0), TL(B, nt, 1)
                for r in range(4):
                    ops.append("v_mul_f32 %s, %s, %s" % (v(P + r), v(vR[0]), v(P + r)))
                    ops.append("v_mul_f32 %s, %s, %s" % (v(Q + r), v(vR[1]), v(Q + r)))
                ops.append("v_cvt_pk_bf16_f32 %s, %s, %s" % (v(P), v(P), v(P + 1)))
                ops.append("v_cvt_pk_bf16_f32 %s, %s, %s" % (v(P + 1), v(P + 2), v(P + 3)))
                ops.append("v_cvt_pk_bf16_f32 %s, %s, %s" % (v(P + 2), v(Q), v(Q + 1)))
                ops.append("v_cvt_pk_bf16_f32 %s, %s, %s" % (v(P + 3), v(Q + 2), v(Q + 3)))
                ops.append("s_nop 1")
                ops.append("v_permlane16_swap_b32 %s, %s" % (v(P), v(P + 2)))
                ops.append("v_permlane16_swap_b32 %s, %s" % (v(P + 1), v(P + 3)))
                ops.append("buffer_store_dwordx4 %s, %s, %s, %s offen offset:%d sc1" % (v(P, 4), v(vL16), s(rWS, 4), s(sEP0), nt * 1024))
        return ops

    def body(bf, ptyp):
        last = ptyp == "l"
        A, B = ACC[bf], ACC[1 - bf]
        ep = epi_tail(B, "n" if last else ptyp)
        for q in range(72):
            ks, nt = q >> 2, q & 3
            nq = q + PD
            nbf = bf if nq < 72 else 1 - bf
            r2 = rd(nq % 72, nbf)
            extra = {0: [], 1: []}
            if last and nq >= 72:
                r2 = [None, None]
            if last and nq == 71:
                extra[1].append("ds_append %s offset:%d" % (v(vCV), C_CONS))
            if nq % 24 == 0 and not last:
                a("s_barrier")
            if q % 2 == 0:
                a("s_waitcnt lgkmcnt(%d)" % (min(2 * PD - 4, 2 * (70 - q) + 1) if last and q >= 64 else 2 * PD - 4))
            for m in range(2):
                T = TL(A, nt, m)
                if ks == 0 and ptyp == "u":
                    U = TL(B, nt, m)
                    if opt.get("u_pk", 1):
                        for r in (0, 2):
                            a("v_pk_mul_f32 %s, %s, %s" % (v(U + r, 2), v(T + r, 2), v(U + r, 2)))
                    else:
                        for r in range(4):
                            a("v_mul_f32 %s, %s, %s" % (v(U + r), v(T + r), v(U + r)))
                c = "0" if ks == 0 else v(T, 4)
                a("v_mfma_f32_16x16x32_bf16 %s, %s, %s, %s" % (v(T, 4), v(WF(q), 4), v(X(m, ks), 4), c))
                if opt.get("x_halfrd", 0) and (q // opt["x_halfrd"]) % 2 == 1 and not last: r2[m] = None
                if r2[m]: a(r2[m])
                if extra[m]:
                    for l in extra[m]: a(l)
                elif q >= 6 and ep and not (m == 1 and q % 2 == 1):
                    a(ep.pop(0))
        assert not ep

    st.stamp()
    a("s_barrier")
    st.stamp()
    for q in range(PD):
        for l in rd(q, 0):
            a(l)
    a("s_mov_b32 %s, 0" % s(sI))
    a("s_mov_b32 m0, 0")
    order = [(0, "n"), (1, "u"), (1, "q"), (0, "q"), (1, "n"), (0, "u")]
    def after(bf, typ):
        st.stamp()
        if st.on: a("s_mov_b32 m0, 0")
        a("s_add_u32 %s, %s, 1" % (s(sI), s(sI)))
        if typ != "u":
            a("s_cmp_le_u32 %s, %s" % (s(sI), s(sNQ)))
            a("s_cbranch_scc1 L_wasq%d" % bf)
            a("s_waitcnt vmcnt(0)")
        if typ == "n":
            a("s_add_u32 %s, %s, 1" % (s(sPJ), s(sPJ)))
        else:
            a("s_cmp_eq_u32 %s, %s" % (s(sI), s(sNEED)))
            a("s_cbranch_scc1 L_b%dl" % (1 - bf))
            a("s_branch L_b%dn" % (1 - bf))
    a("s_sub_u32 %s, %s, 1" % (s(sNEED), s(sNCH)))
    for idx, (bf, typ) in enumerate(order):
        a.label("L_b%d%s" % (bf, typ))
        body(bf, typ)
        after(bf, typ)
        if typ == "n" and not (idx + 1 < len(order) and order[idx + 1] == (1 - bf, "u")):
            a("s_branch L_b%du" % (1 - bf))
    for bf in range(2):
        a.label("L_wasq%d" % bf)
        a("s_mov_b32 %s, %s" % (s(sEP0), s(sQB)))
        a("s_add_u32 %s, %s, 4096" % (s(sQB), s(sQB)))
        a("s_branch L_b%dq" % (1 - bf))
    AT = [10, 11, 12, 13, 14, 9]
    for bf in (1, 0):
        a.label("L_b%dl" % bf)
        body(bf, "l")
        st.stamp()
        tag_issue()
        a("v_lshrrev_b32 v2, 4, %s" % v(vLANE))
        a("s_lshl_b32 %s, %s, 1" % (s(sT0), s(sXCD)))
        a("s_sub_u32 %s, %s, 2" % (s(sT0), s(sT0)))
        a("v_add_u32 v2, %s, v2" % s(sT0))
        a("v_max_i32 v2, 0, v2")
        a("v_and_b32 v3, 15, %s" % v(vLANE))
        a("v_lshl_add_u32 v2, v2, 6, v3")
        a("v_lshlrev_b32 v2, 2, v2")
        a("v_add_u32 v2, %d, v2" % F_Q)
        a("s_setprio 3")
        poll(3, 2)
        for r in range(32):
            a("v_mul_f32 %s, %s, %s" % (v(ACC[bf] + r), v(ACC[1 - bf] + r), v(ACC[bf] + r)))
        for l in epi_tail(ACC[bf], "u"):
            a(l)
        a("s_mov_b32 %s, %d" % (s(sXL), LB0 + bf * BUF))
        a("s_branch L_attn")

    a.label("L_attn")
    st.stamp()
    sA, sCG0, sSFT, sMIN, sOB, sAB, sQT, sRT16, sFO2 = sW4, 4, 5, 6, 7, 8, 9, 10, 11
    T = AT
    a("s_mov_b32 %s, %s" % (s(sAB), s(sXL)))
    a("s_add_u32 %s, %s, 8192" % (s(sFO2), s(sFO)))
    a("s_waitcnt lgkmcnt(0)")
    tag_check("L_tg2")
    a("v_mov_b32 %s, %d" % (v(T[0]), C_CONS))
    a("s_movk_i32 %s, 256" % s(sT1))
    lds_wait("L_w1", T[0], T[1], s(sT1), 0)
    a("s_waitcnt vmcnt(4)")
    flag_wait("L_fq", 3, 2)
    st.stamp()
    sM = [52 + 2 * r for r in range(16)]
    sK = [84 + 2 * i for i in range(8)]
    vL16, vKB, vVB, vOOFF, vNINF, vOL = 2, 3, 4, 5, 6, 7
    vMX, vMX2, vC = 224, 226, 228
    S0, O0, Q0, KF0, VF0 = 16, 160, 176, 192, 208
    def SR(t): return S0 + 16 * t
    a("s_mul_i32 %s, %s, 18" % (s(sT0), s(sSLOT)))
    a("s_lshr_b32 %s, %s, 4" % (s(sCG0), s(sT0)))
    a("s_and_b32 %s, %s, 15" % (s(sSFT), s(sT0)))
    a("v_lshlrev_b32 %s, 4, %s" % (v(vL16), v(vLANE)))
    U3 = opt.get("a_u3", 1)
    a("s_lshr_b32 %s, %s, 3" % (s(sOB), s(sSFT)))
    a("s_lshl_b32 %s, %s, %d" % (s(sOB), s(sOB), 9)) if U3 else a("s_mov_b32 %s, 0" % s(sOB))
    a("s_add_u32 %s, %s, %s" % (s(sMIN), s(sAB), s(sOB)))
    for j in range(4):
        a("s_lshl_b32 %s, %s, 3" % (s(sT0), s(sXCD)))
        a("s_lshl_b32 %s, %s, 2" % (s(sT1), s(sA)))
        a("s_add_u32 %s, %s, %d" % (s(sT1), s(sT1), j))
        a("s_add_u32 %s, %s, %s" % (s(sT0), s(sT0), s(sT1)))
        a("s_sub_i32 %s, %s, 8" % (s(sT0), s(sT0)))
        a("s_max_i32 %s, %s, 0" % (s(sT0), s(sT0)))
        a("s_mul_i32 %s, %s, 108" % (s(sT0), s(sT0)))
        a("s_add_u32 %s, %s, %s" % (s(sT0), s(sT0), s(sCG0)))
        a("s_lshl_b32 %s, %s, 10" % (s(sT0), s(sT0)))
        a("s_add_u32 %s, %s, %s" % (s(sT0), s(sT0), s(sOB)))
        a("s_add_u32 %s, %s, %d" % (s(sT2), s(sT0), QKV_BASE + 36 * 1024))
        a("s_add_u32 %s, %s, %d" % (s(sT3), s(sT0), QKV_BASE + 72 * 1024))
        a("s_lshl_b32 %s, %s, 12" % (s(sT1), s(sT1)))
        a("s_add_u32 m0, %s, %s" % (s(sT1), s(sMIN)))
        a("s_add_u32 %s, %s, 2048" % (s(sT1), s(sT1)))
        a("buffer_load_dwordx4 %s, %s, %s offen sc1 lds" % (v(vL16), s(rWS, 4), s(sT2)))
        if U3: a("s_mov_b32 exec_hi, 0")
        a("buffer_load_dwordx4 %s, %s, %s offen offset:1024 sc1 lds" % (v(vL16), s(rWS, 4), s(sT2)))
        a("s_add_u32 m0, %s, %s" % (s(sT1), s(sMIN)))
        a("s_nop 0")
        a("buffer_load_dwordx4 %s, %s, %s offen offset:1024 sc1 lds" % (v(vL16), s(rWS, 4), s(sT3)))
        if U3: a("s_mov_b32 exec_hi, -1")
        a("buffer_load_dwordx4 %s, %s, %s offen sc1 lds" % (v(vL16), s(rWS, 4), s(sT3)))
    a("s_lshl_b32 %s, %s, 3" % (s(sT0), s(sXCD)))
    a("s_lshl_b32 %s, %s, 1" % (s(sT1), s(sA)))
    a("s_add_u32 %s, %s, %s" % (s(sT0), s(sT0), s(sT1)))
    a("s_lshl_b32 %s, %s, 1" % (s(sRT16), s(sT0)))
    a("s_mul_i32 %s, %s, 108" % (s(sT0), s(sT0)))
    a("s_add_u32 %s, %s, %s" % (s(sT0), s(sT0), s(sCG0)))
    a("s_lshl_b32 %s, %s, 10" % (s(sT0), s(sT0)))
    a("s_add_u32 %s, %s, %d" % (s(sT0), s(sT0), QKV_BASE))
    a("s_add_u32 %s, %s, %d" % (s(sT1), s(sT0), 108 * 1024))
    for qt in range(2):
        for p in range(2):
            a("buffer_load_dwordx4 %s, %s, %s, %s offen offset:%d sc1" % (v(Q0 + 8 * qt + 4 * p, 4), v(vL16), s(rWS, 4), s(sT0 + qt), 1024 * p))
    a("v_lshrrev_b32 %s, 5, %s" % (v(T[0]), v(vLANE)))
    a("v_lshlrev_b32 %s, 2, %s" % (v(T[0]), v(T[0])))
    a("v_and_b32 %s, 31, %s" % (v(T[1]), v(vLANE)))
    a("v_sub_u32 %s, %s, %s" % (v(T[2]), v(T[1]), v(T[0])))
    for r in range(16):
        a("v_cmp_le_i32 %s, %d, %s" % (s(sM[r], 2), (r & 3) + 8 * (r >> 2), v(T[2])))
    a("v_lshlrev_b32 %s, 1, %s" % (v(T[2]), v(T[0])))
    a("v_subrev_u32 %s, %s, %s" % (v(T[2]), s(sSFT), v(T[2])))
    for p in range(2):
        for dw in range(4):
            a("v_add_u32 %s, %d, %s" % (v(T[3]), 16 * p + 2 * dw, v(T[2])))
            a("v_cmp_gt_u32 %s, 18, %s" % (s(sK[4 * p + dw], 2), v(T[3])))
    a("s_lshl_b32 %s, %s, 13" % (s(sT2), s(sA)))
    a("s_add_u32 %s, %s, %s" % (s(sT2), s(sT2), s(sAB)))
    a("v_add_u32 %s, %s, %s" % (v(vKB), s(sT2), v(vL16)))
    a("s_lshr_b32 %s, %s, 2" % (s(sT3), s(sSFT)))
    a("v_bfe_u32 %s, %s, 4, 1" % (v(T[3]), v(vLANE)))
    a("v_and_b32 %s, 3, %s" % (v(T[4]), v(vLANE)))
    a("v_lshl_add_u32 %s, %s, 2, %s" % (v(T[3]), v(T[3]), v(T[4])))
    a("v_min_u32 %s, 5, %s" % (v(T[3]), v(T[3])))
    a("v_add_u32 %s, %s, %s" % (v(T[3]), s(sT3), v(T[3])))
    a("v_bfe_u32 %s, %s, 1, 2" % (v(T[4]), v(T[3])))
    a("v_lshlrev_b32 %s, 9, %s" % (v(T[4]), v(T[4])))
    a("v_and_b32 %s, 1, %s" % (v(T[3]), v(T[3])))
    a("v_lshl_add_u32 %s, %s, 3, %s" % (v(T[3]), v(T[3]), v(T[4])))
    a("v_bfe_u32 %s, %s, 2, 2" % (v(T[4]), v(vLANE)))
    a("v_add_u32 %s, %s, %s" % (v(T[4]), v(T[4]), v(T[0])))
    a("v_lshl_add_u32 %s, %s, 4, %s" % (v(T[3]), v(T[4]), v(T[3])))
    a("v_add_u32 %s, %s, %s" % (v(vVB), s(sT2), v(T[3])))
    a("s_mul_i32 %s, %s, 3" % (s(sT0), s(sSLOT)))
    a("v_lshrrev_b32 %s, 5, %s" % (v(T[3]), v(vLANE)))
    a("v_add_u32 %s, %s, %s" % (v(T[3]), s(sT0), v(T[3])))
    a("v_lshrrev_b32 %s, 2, %s" % (v(T[4]), v(T[3])))
    a("v_mul_u32_u24 %s, 5120, %s" % (v(T[4]), v(T[4])))
    a("v_and_b32 %s, 3, %s" % (v(T[3]), v(T[3])))
    a("v_lshl_add_u32 %s, %s, 8, %s" % (v(T[3]), v(T[3]), v(T[4])))
    a("v_and_b32 %s, 15, %s" % (v(T[4]), v(vLANE)))
    a("v_lshl_add_u32 %s, %s, 4, %s" % (v(vOL), v(T[4]), v(T[3])))
    a("s_add_u32 %s, %s, 2" % (s(sT1), s(sT0)))
    a("s_lshr_b32 %s, %s, 2" % (s(sOB), s(sT1)))
    a("s_lshr_b32 %s, %s, 2" % (s(sMIN), s(sT0)))
    a("s_sub_u32 %s, %s, %s" % (s(sOB), s(sOB), s(sMIN)))
    a("s_mul_i32 %s, %s, %d" % (s(sOB), s(sOB), 5120 - 1024))
    a("s_add_u32 %s, %s, %d" % (s(sOB), s(sOB), H_BASE + 144 * 5120 + 512))
    a("v_mov_b32 %s, 0xff800000" % v(vNINF))
    a("v_mov_b32 %s, 0x%x" % (v(vC), fbits(18 ** -0.5 * math.log2(math.e))))
    a("s_add_u32 %s, %s, 5" % (s(sT3), s(sT3)))
    a("s_bfe_u32 %s, %s, 0x20001" % (s(sT0), s(sT3)))
    a("s_lshl_b32 %s, %s, 9" % (s(sT0), s(sT0)))
    a("s_and_b32 %s, %s, 1" % (s(sT1), s(sT3)))
    a("s_lshl_b32 %s, %s, 3" % (s(sT1), s(sT1)))
    a("s_add_u32 %s, %s, %s" % (s(sT0), s(sT0), s(sT1)))
    a("s_lshl_b32 %s, %s, 14" % (s(sT1), s(sA)))
    a("s_add_u32 %s, %s, %s" % (s(sT0), s(sT0), s(sT1)))
    a("s_add_u32 %s, %s, %s" % (s(sT0), s(sT0), s(sAB)))
    a("s_add_u32 %s, %s, 2048" % (s(sT0), s(sT0)))
    a("v_lshlrev_b32 %s, 4, %s" % (v(T[3]), v(T[1])))
    a("v_add3_u32 %s, %s, %s, %s" % (v(T[3]), v(T[3]), v(T[0]), s(sT0)))
    a("v_mov_b32 %s, 0x3f803f80" % v(T[4]))
    a("v_mov_b32 %s, %d" % (v(T[5]), C_A0))
    a("v_mov_b32 %s, 1" % v(vMX))
    a("s_lshl_b32 %s, %s, 1" % (s(sMIN), s(sA)))
    a("s_sub_u32 %s, 8, %s" % (s(sMIN), s(sMIN)))
    a("s_cmp_lg_u32 %s, 0" % s(sXCD))
    a("s_cselect_b32 %s, 0, %s" % (s(sMIN), s(sMIN)))
    a("s_waitcnt vmcnt(0)")
    for j in range(4):
        a("ds_write_b32 %s, %s offset:%d" % (v(T[3]), v(T[4]), j * 4096))
    a("v_mov_b32 %s, %s" % (v(T[3]), s(sFO2)))
    a("v_mov_b32 %s, %s" % (v(T[2]), s(sTAG)))
    a("s_mov_b64 exec, 1")
    a("ds_add_rtn_u32 %s, %s, %s" % (v(vMX2), v(T[5]), v(vMX)))
    a("s_waitcnt lgkmcnt(0)")
    a("v_readfirstlane_b32 %s, %s" % (s(sT0), v(vMX2)))
    a("s_cmp_lg_u32 %s, 3" % s(sT0))
    a("s_cbranch_scc1 L_nol3")
    a("buffer_store_dword %s, %s, %s, 0 offen sc1" % (v(T[2]), v(T[3]), s(rWS, 4)))
    a.label("L_nol3")
    a("s_mov_b64 exec, -1")
    for qt in range(2):
        for i in range(8):
            a("v_cndmask_b32 %s, 0, %s, %s" % (v(Q0 + 8 * qt + i), v(Q0 + 8 * qt + i), s(sK[i], 2)))
    a("s_bitcmp1_b32 %s, 0" % s(sSLOT))
    a("s_cselect_b32 %s, 0, -1" % s(sK[0]))
    a("s_mov_b32 %s, -1" % s(sK[0] + 1))
    a("s_cselect_b64 %s, -1, 0" % s(sK[1], 2))
    a("s_mov_b32 %s, 0" % s(sQT))
    lds_wait("L_wa", T[5], vMX, "4", 1)
    a("s_setprio %d" % opt.get("a_prio", 3))
    if opt.get("x_noattn", 0): a("s_branch L_apub")
    a.label("L_aq")
    st.stamp()
    Q = Q0
    KB3 = [KF0, KF0 + 8, 232]
    def krd(t):
        for p in range(2):
            a("ds_read_b128 %s, %s offset:%d" % (v(KB3[t % 3] + 4 * p, 4), v(vKB), t * 4096 + 1024 * p))
    def vrd(t):
        for hf in range(2):
            for aa in range(2):
                a("ds_read_b64_tr_b16 %s, %s offset:%d" % (v(VF0 + 8 * (t & 1) + 4 * hf + 2 * aa, 2), v(vVB), t * 4096 + 2048 + hf * 256 + aa * 128))
    def mx(t, first=False):
        R = SR(t)
        for i in range(0, 16, 4):
            if first and i == 0:
                a("v_max_f32 %s, %s, %s" % (v(vMX), v(R), v(R + 1)))
                a("v_max_f32 %s, %s, %s" % (v(vMX2), v(R + 2), v(R + 3)))
            else:
                a("v_max3_f32 %s, %s, %s, %s" % (v(vMX), v(R + i), v(R + i + 1), v(vMX)))
                a("v_max3_f32 %s, %s, %s, %s" % (v(vMX2), v(R + i + 2), v(R + i + 3), v(vMX2)))
    def fix(t):
        if t == 0:
            for r in range(16):
                a("v_cndmask_b32 %s, %s, %s, %s" % (v(SR(0) + r), v(SR(0) + r), v(vNINF), s(sM[r], 2)))
        if t == 8:
            for r in range(16):
                a("v_cndmask_b32 %s, %s, %s, %s" % (v(SR(8) + r), v(vNINF), v(SR(8) + r), s(sM[r], 2)))
        else:
            l = a.newlabel("inv")
            a("s_cmp_le_u32 %s, %d" % (s(sMIN), t))
            a("s_cbranch_scc1 %s" % l)
            for r in range(16):
                a("v_mov_b32 %s, %s" % (v(SR(t) + r), v(vNINF)))
            a.label(l)
        mx(t, t == 0)
    krd(0)
    krd(1)
    for t in range(9):
        if t < 7:
            krd(t + 2)
        a("s_waitcnt lgkmcnt(%d)" % (4 if t < 7 else 2 if t == 7 else 0))
        kf = KB3[t % 3]
        a("v_mfma_f32_32x32x16_bf16 %s, %s, %s, 0" % (v(SR(t), 16), v(kf, 4), v(Q, 4)))
        a("v_mfma_f32_32x32x16_bf16 %s, %s, %s, %s" % (v(SR(t), 16), v(kf + 4, 4), v(Q + 4, 4), v(SR(t), 16)))
        if t == 2:
            a("s_nop 1")
        if t >= 2:
            fix(t - 2)
    if opt.get("diag_a", 0): st.stamp()
    vrd(0)
    vrd(1)
    fix(7)
    fix(8)
    a("v_max_f32 %s, %s, %s" % (v(vMX), v(vMX), v(vMX2)))
    a("v_mov_b32 %s, %s" % (v(vMX2), v(vMX)))
    a("s_nop 1")
    a("v_permlane32_swap_b32 %s, %s" % (v(vMX), v(vMX2)))
    a("s_nop 1")
    a("v_max_f32 %s, %s, %s" % (v(vMX), v(vMX), v(vMX2)))
    a("v_mul_f32 %s, -%s, %s" % (v(vMX), v(vC), v(vMX)))
    if opt.get("diag_a", 0): st.stamp()
    def pv(t, hf):
        vf = VF0 + 8 * (t & 1) + 4 * hf
        c = "0" if t == 0 and hf == 0 else v(O0, 16)
        a("v_mfma_f32_32x32x16_bf16 %s, %s, %s, %s" % (v(O0, 16), v(vf, 4), v(SR(t) + 4 * hf, 4), c))
    for t in range(9):
        R = SR(t)
        for r in range(0, 16, 2):
            if opt.get("a_nopk", 1):
                a("v_fma_f32 %s, %s, %s, %s" % (v(R + r), v(R + r), v(vC), v(vMX)))
                a("v_fma_f32 %s, %s, %s, %s" % (v(R + r + 1), v(R + r + 1), v(vC), v(vMX)))
            else:
                a("v_pk_fma_f32 %s, %s, %s, %s op_sel_hi:[1,0,0]" % (v(R + r, 2), v(R + r, 2), v(vC, 2), v(vMX, 2)))
            if r == 10 and t > 0:
                pv(t - 1, 1)
        for r in range(16):
            a("v_exp_f32 %s, %s" % (v(R + r), v(R + r)))
            if r == 1 and 0 < t < 8:
                vrd(t + 1)
        for j in range(8):
            a("v_cvt_pk_bf16_f32 %s, %s, %s" % (v(R + j), v(R + 2 * j), v(R + 2 * j + 1)))
        a("s_waitcnt lgkmcnt(%d)" % (4 if t < 8 else 0))
        pv(t, 0)
    pv(8, 1)
    if opt.get("diag_a", 0): st.stamp()
    a("v_bfe_u32 %s, %s, 4, 1" % (v(T[1]), v(vLANE)))
    a("v_add_u32 %s, %s, %s" % (v(T[1]), s(sRT16), v(T[1])))
    a("v_mul_u32_u24 %s, 205, %s" % (v(T[2]), v(T[1])))
    a("v_lshrrev_b32 %s, 10, %s" % (v(T[2]), v(T[2])))
    a("v_mul_u32_u24 %s, %d, %s" % (v(T[2]), NKS * 5 - 5, v(T[2])))
    a("v_add_u32 %s, %s, %s" % (v(T[1]), v(T[1]), v(T[2])))
    a("v_lshl_add_u32 %s, %s, 10, %s" % (v(vOOFF), v(T[1]), v(vOL)))
    for i in range(8):
        a("v_mov_b32 %s, %s" % (v(Q0 + i), v(Q0 + 8 + i)))
    a("v_add_u32 %s, 4096, %s" % (v(vKB), v(vKB)))
    a("v_add_u32 %s, 4096, %s" % (v(vVB), v(vVB)))
    a("s_add_u32 %s, %s, 2" % (s(sRT16), s(sRT16)))
    a("s_sub_u32 %s, %s, 1" % (s(sMIN), s(sMIN)))
    a("s_cselect_b32 %s, 0, %s" % (s(sMIN), s(sMIN)))
    a("v_rcp_f32 %s, %s" % (v(T[0]), v(O0 + 12)))
    a("s_nop 0")
    for r in range(12):
        a("v_mul_f32 %s, %s, %s" % (v(O0 + r), v(O0 + r), v(T[0])))
    for j in range(6):
        a("v_cvt_pk_bf16_f32 %s, %s, %s" % (v(O0 + j), v(O0 + 2 * j), v(O0 + 2 * j + 1)))
    a("v_cndmask_b32 %s, 0, %s, %s" % (v(O0), v(O0), s(sK[0], 2)))
    a("v_cndmask_b32 %s, 0, %s, %s" % (v(O0 + 5), v(O0 + 5), s(sK[1], 2)))
    a("v_mov_b32 %s, 0" % v(O0 + 6))
    a("v_mov_b32 %s, 0" % v(O0 + 7))
    a("s_setprio 3")
    a("s_mov_b32 %s, %d" % (s(sT0), H_BASE + 144 * 5120))
    a("buffer_store_dwordx4 %s, %s, %s, %s offen sc1" % (v(O0, 4), v(vOOFF), s(rWS, 4), s(sT0)))
    a("s_mov_b32 exec_hi, 0")
    a("buffer_store_dwordx4 %s, %s, %s, %s offen sc1" % (v(O0 + 4, 4), v(vOOFF), s(rWS, 4), s(sOB)))
    a("s_mov_b64 exec, -1")
    a("s_setprio %d" % opt.get("a_prio", 3))
    a("s_add_u32 %s, %s, 1" % (s(sQT), s(sQT)))
    a("s_cmp_lt_u32 %s, 2" % s(sQT))
    a("s_cbranch_scc1 L_aq")
    a.label("L_apub")
    a("s_setprio 3")
    st.stamp()
    a("s_waitcnt vmcnt(0)")
    st.stamp()
    a("v_mov_b32 %s, %d" % (v(T[0]), C_A1))
    a("v_mov_b32 %s, 1" % v(T[1]))
    a("s_lshl_b32 %s, %s, 8" % (s(sT1), s(sXCD)))
    a("s_add_u32 %s, %s, %d" % (s(sT1), s(sT1), F_A))
    a("v_mov_b32 %s, %s" % (v(T[3]), s(sT1)))
    a("v_mov_b32 %s, %s" % (v(T[4]), s(sTAG)))
    a("s_lshl_b32 %s, %s, 2" % (s(sT1), s(sXCD)))
    a("v_mov_b32 %s, %s" % (v(T[5]), s(sT1)))
    a("s_mov_b64 exec, 1")
    a("ds_add_rtn_u32 %s, %s, %s" % (v(T[2]), v(T[0]), v(T[1])))
    a("s_waitcnt lgkmcnt(0)")
    a("v_readfirstlane_b32 %s, %s" % (s(sT0), v(T[2])))
    a("s_cmp_lg_u32 %s, 3" % s(sT0))
    a("s_cbranch_scc1 L_fin")
    a("global_atomic_add %s, %s, %s, %s offset:128 sc0 sc1" % (v(T[2]), v(T[5]), v(T[1]), s(sDBG, 2)))
    a("s_waitcnt vmcnt(0)")
    a("v_readfirstlane_b32 %s, %s" % (s(sT0), v(T[2])))
    a("s_and_b32 %s, %s, 31" % (s(sT0), s(sT0)))
    a("s_cmp_lg_u32 %s, 31" % s(sT0))
    a("s_cbranch_scc1 L_fin")
    a("buffer_store_dword %s, %s, %s, 0 offen sc1" % (v(T[4]), v(T[3]), s(rWS, 4)))
    a("s_branch L_fin")

    sIC, sIG, sLB, sLBEG, sG, sO0, sKB, sP32, sCOL, sFREE = 59, 61, 62, 63, 64, 65, 66, 67, 68, 69
    vDG, vD, vCP, vCT, vPW, vPX, vTQ, vTG = 2, 3, 4, 5, 6, 7, 8, 9
    sTC, sTN = 75, 76
    sTI, sTR, sTB, sTP, sTO = 82, 83, 84, 86, 87
    a.label("L_stouch")
    a("s_cmp_ge_u32 %s, %s" % (s(sTC), s(sNCH)))
    a("s_cbranch_scc1 L_stouch_r")
    a("s_cmp_lg_u32 %s, 0" % s(sTI))
    a("s_cbranch_scc1 L_stouch2")
    a("s_cmp_lt_u32 %s, %s" % (s(sTC), s(sNQ)))
    a("s_cbranch_scc1 L_stouch_q")
    a("s_sub_u32 %s, %s, %s" % (s(sT0), s(sTC), s(sNQ)))
    a("s_lshr_b32 %s, %s, 1" % (s(sT1), s(sT0)))
    pair_of(sT1)
    a("s_bitcmp1_b32 %s, 0" % s(sT0))
    a("s_cselect_b32 %s, %s, %s" % (s(sTB), s(sWU), s(sWG)))
    a("s_cselect_b32 %s, %s, %s" % (s(sTB + 1), s(sWU + 1), s(sWG + 1)))
    a("s_movk_i32 %s, 9216" % s(sTP))
    a("s_branch L_stouch1")
    a.label("L_stouch_q")
    a("s_add_u32 %s, %s, %s" % (s(sT1), s(sTC), s(sQ0)))
    a.label("L_stouch1")
    a("s_lshl_b32 %s, %s, 7" % (s(sT1), s(sT1)))
    a("s_mul_i32 %s, %s, %s" % (s(sTO), s(sTR), s(sTP)))
    a("s_add_u32 %s, %s, %s" % (s(sTO), s(sTO), s(sT1)))
    a("s_add_u32 %s, %s, 60" % (s(sTO), s(sTO)))
    a.label("L_stouch2")
    for i in range(3):
        a("s_load_dwordx2 s[90:91], %s, %s" % (s(sTB, 2), s(sTO)))
        a("s_add_u32 %s, %s, %s" % (s(sTO), s(sTO), s(sTP)))
    a("s_add_u32 %s, %s, 1" % (s(sTI), s(sTI)))
    a("s_cmp_eq_u32 %s, 3" % s(sTI))
    a("s_cselect_b32 %s, 0, %s" % (s(sTI), s(sTI)))
    a("s_addc_u32 %s, %s, 0" % (s(sTC), s(sTC)))
    a.label("L_stouch_r")
    a("s_setpc_b64 %s" % s(sRET, 2))
    a.label("L_touch")
    a("s_cmp_ge_u32 %s, %s" % (s(sTC), s(sNCH)))
    a("s_cbranch_scc1 L_touch_r")
    a("s_mov_b64 exec, 0x1ff")
    a("s_cmp_lt_u32 %s, %s" % (s(sTC), s(sNQ)))
    a("s_cbranch_scc1 L_touch_q")
    a("s_sub_u32 %s, %s, %s" % (s(sT0), s(sTC), s(sNQ)))
    a("s_lshr_b32 %s, %s, 1" % (s(sT1), s(sT0)))
    pair_of(sT1)
    a("s_lshl_b32 %s, %s, 7" % (s(sT1), s(sT1)))
    a("s_bitcmp1_b32 %s, 0" % s(sT0))
    a("s_cselect_b32 %s, %s, %s" % (s(rX), s(sWU), s(sWG)))
    a("s_cselect_b32 %s, %s, %s" % (s(rX + 1), s(sWU + 1), s(sWG + 1)))
    a("s_mov_b32 %s, %d" % (s(rX + 2), 576 * 4608 * 2))
    a("buffer_load_dword v252, %s, %s, %s offen" % (v(vTG), s(rX, 4), s(sT1)))
    a("s_branch L_touch_e")
    a.label("L_touch_q")
    a("s_add_u32 %s, %s, %s" % (s(sT1), s(sTC), s(sQ0)))
    a("s_lshl_b32 %s, %s, 7" % (s(sT1), s(sT1)))
    a("buffer_load_dword v252, %s, %s, %s offen" % (v(vTQ), s(rX, 4), s(sT1)))
    a.label("L_touch_e")
    a("s_mov_b64 exec, -1")
    a("s_add_u32 %s, %s, 1" % (s(sTC), s(sTC)))
    a.label("L_touch_r")
    a("s_setpc_b64 %s" % s(sRET, 2))
    a.label("L_issue")
    a("s_cmp_lg_u32 %s, 0" % s(sIG))
    a("s_cbranch_scc1 L_issue2")
    a("s_bitcmp1_b32 %s, 0" % s(sIC))
    a("s_cselect_b32 %s, %d, 0" % (s(sLB), BUF))
    a("s_add_u32 %s, %s, %s" % (s(sLB), s(sLB), s(sLBEG)))
    a("s_cmp_lt_u32 %s, %s" % (s(sIC), s(sNQ)))
    a("s_cbranch_scc1 L_issueq")
    a("s_sub_u32 %s, %s, %s" % (s(sT0), s(sIC), s(sNQ)))
    a("s_lshr_b32 %s, %s, 1" % (s(sT1), s(sT0)))
    pair_of(sT1)
    a("s_lshl_b32 %s, %s, 7" % (s(sCOL), s(sT1)))
    a("s_bitcmp1_b32 %s, 0" % s(sT0))
    a("s_cselect_b32 %s, %s, %s" % (s(rW), s(sWU), s(sWG)))
    a("s_cselect_b32 %s, %s, %s" % (s(rW + 1), s(sWU + 1), s(sWG + 1)))
    a("s_mov_b32 %s, %d" % (s(rW + 2), 576 * 4608 * 2))
    a("s_mov_b32 %s, %d" % (s(sP32), 32 * 9216))
    a("v_mov_b32 %s, %s" % (v(vD), v(vDG)))
    a("s_branch L_issue2")
    a.label("L_issueq")
    a("s_add_u32 %s, %s, %s" % (s(sT1), s(sIC), s(sQ0)))
    a("s_lshl_b32 %s, %s, 7" % (s(sCOL), s(sT1)))
    a.label("L_issue2")
    if opt.get("x_nodma", 0):
        a("s_cmp_ge_u32 %s, 6" % s(sG))
        a("s_cbranch_scc1 L_issue3")
    for kb in range(3):
        a("s_mul_i32 %s, %s, %s" % (s(sO0), s(sKB), s(sP32)))
        a("s_add_u32 %s, %s, %s" % (s(sO0), s(sO0), s(sCOL)))
        a("s_add_u32 m0, %s, %d" % (s(sLB), kb * 2048))
        a("s_add_u32 %s, %s, 2" % (s(sKB), s(sKB)))
        a("buffer_load_dwordx4 %s, %s, %s offen %s lds" % (v(vD), s(rW, 4), s(sO0), opt.get("w1_flag", "")))
        a("s_add_u32 m0, %s, %d" % (s(sLB), kb * 2048 + 1024))
        a("s_add_u32 %s, %s, %s" % (s(sO0), s(sO0), s(sP32)))
        a("buffer_load_dwordx4 %s, %s, %s offen %s lds" % (v(vD), s(rW, 4), s(sO0), opt.get("w1_flag", "")))
        a("s_cmp_eq_u32 %s, 18" % s(sKB))
        a("s_cselect_b32 %s, 0, %s" % (s(sKB), s(sKB)))
    a.label("L_issue3")
    a("s_add_u32 %s, %s, 6144" % (s(sLB), s(sLB)))
    a("s_add_u32 %s, %s, 1" % (s(sIG), s(sIG)))
    a("s_cmp_eq_u32 %s, 3" % s(sIG))
    a("s_cselect_b32 %s, 0, %s" % (s(sIG), s(sIG)))
    a("s_addc_u32 %s, %s, 0" % (s(sIC), s(sIC)))
    a("s_add_u32 %s, %s, 1" % (s(sG), s(sG)))
    a("s_setpc_b64 %s" % s(sRET, 2))

    a.label("L_loader")
    a("s_setprio 3")
    worklist()
    a("s_lshl_b32 %s, %s, 2" % (s(sT0), s(sRB)))
    a("s_add_u32 %s, %s, %s" % (s(sT0), s(sT0), s(sW4)))
    a("s_mul_i32 %s, %s, 9" % (s(sT0), s(sT0)))
    a("s_mov_b32 %s, %s" % (s(sTR), s(sT0)))
    a("s_mov_b32 %s, 0" % s(sTI))
    a("s_movk_i32 %s, 3456" % s(sTP))
    a("v_add_u32 %s, %s, %s" % (v(vTG), s(sT0), v(vLANE)))
    a("v_mul_u32_u24 %s, 3456, %s" % (v(vTQ), v(vTG)))
    a("v_mul_u32_u24 %s, 9216, %s" % (v(vTG), v(vTG)))
    a("s_mov_b32 %s, 0" % s(sTC))
    a("s_waitcnt lgkmcnt(0)")
    srd(a, rW, sWQ, 576 * 1728 * 2)
    srd(a, rX, sWQ, 576 * 1728 * 2)
    a("s_mov_b32 %s, %s" % (s(sTB), s(sWQ)))
    a("s_mov_b32 %s, %s" % (s(sTB + 1), s(sWQ + 1)))
    for i in range(opt.get("k1_t0", 2)):
        a("s_call_b64 %s, L_touch" % s(sRET, 2))
    if opt.get("tlb", 1):
        a("s_mov_b32 s88, %s" % s(sWS)); a("s_mov_b32 s89, %s" % s(sWS + 1))
        a("s_mov_b32 %s, %s" % (s(sT0), s(sSLOT)))
        for first, ptr in ((15, sWG), (18, sWU), (21, sWD), (24, sOUT), (26, sWO)):
            a("s_sub_u32 %s, %s, %d" % (s(sT1), s(sSLOT), first))
            a("s_cselect_b32 %s, %s, %s" % (s(sT0), s(sT0), s(sT1)))
            a("s_cselect_b32 s88, s88, %s" % s(ptr))
            a("s_cselect_b32 s89, s89, %s" % s(ptr + 1))
        a("s_cmp_ge_u32 %s, 26" % s(sSLOT))
        a("s_cselect_b32 %s, 0, %s" % (s(sT0), s(sT0)))
        a("s_lshl_b32 %s, %s, 21" % (s(sT0), s(sT0)))
        a("s_cmp_lg_u32 %s, 3" % s(sW4))
        a("s_cbranch_scc1 L_notlb")
        a("s_load_dword s90, s[88:89], %s" % s(sT0))
        a.label("L_notlb")
    a("s_lshl_b32 %s, s2, 2" % s(sT0))
    a("s_add_u32 %s, %s, %s" % (s(sT0), s(sT0), s(sW4)))
    a("s_cmp_lg_u32 %s, 0" % s(sT0))
    a("s_cbranch_scc1 L_notag")
    a("v_mov_b32 %s, 0" % v(vT[2]))
    a("s_or_b32 s88, s92, 1")
    a("v_mov_b32 %s, s88" % v(vT[3]))
    a("s_mov_b64 exec, 1")
    a("global_store_dword %s, %s, %s sc1" % (v(vT[2]), v(vT[3]), s(sDBG, 2)))
    a("s_mov_b64 exec, -1")
    a.label("L_notag")
    a("s_setprio %d" % opt.get("ld_prio", 0))
    a("v_mov_b32 %s, 0" % v(vT[2]))
    a("v_lshlrev_b32 %s, 2, %s" % (v(vT[3]), v(vLANE)))
    a("ds_write_b32 %s, %s offset:%d" % (v(vT[3]), v(vT[2]), CNT))
    srd(a, rWS, sWS, WS_BYTES)
    a("v_bfe_u32 %s, %s, 2, 3" % (v(vT[5]), v(vLANE)))
    a("s_lshl_b32 %s, %s, 3" % (s(sT0), s(sW4)))
    a("v_add_u32 %s, %s, %s" % (v(vT[5]), s(sT0), v(vT[5])))
    a("s_and_b32 %s, %s, 1" % (s(sT0), s(sW4)))
    a("s_lshl_b32 %s, %s, 1" % (s(sT0), s(sT0)))
    a("v_and_b32 %s, 3, %s" % (v(vT[6]), v(vLANE)))
    a("v_xor_b32 %s, %s, %s" % (v(vT[6]), s(sT0), v(vT[6])))
    a("v_lshlrev_b32 %s, 4, %s" % (v(vT[6]), v(vT[6])))
    a("v_lshrrev_b32 %s, 5, %s" % (v(vT[7]), v(vLANE)))
    a("v_lshl_add_u32 %s, %s, 6, %s" % (v(vT[6]), v(vT[7]), v(vT[6])))
    a("v_mul_u32_u24 %s, 3456, %s" % (v(vD), v(vT[5])))
    a("v_add_u32 %s, %s, %s" % (v(vD), v(vD), v(vT[6])))
    a("v_mul_u32_u24 %s, 9216, %s" % (v(vDG), v(vT[5])))
    a("v_add_u32 %s, %s, %s" % (v(vDG), v(vDG), v(vT[6])))
    a("s_mov_b32 %s, %d" % (s(sP32), 32 * 3456))
    a("s_mov_b32 %s, 0" % s(sIC))
    a("s_mov_b32 %s, 0" % s(sIG))
    a("s_mov_b32 %s, 0" % s(sG))
    a("s_lshl_b32 %s, %s, 1" % (s(sKB), s(sROT)))
    a("s_mul_i32 %s, %s, %d" % (s(sLBEG), s(sW4), QTR))
    a("s_add_u32 %s, %s, %d" % (s(sLBEG), s(sLBEG), LB0))
    PFM = opt.get("k1_pfm", 11)
    sPM, sPMO, sPMW = 72, 73, 74
    rPD = 28
    srd(a, rWO, sWO, 576 * 576 * 2)
    srd(a, rPD, sWD, 4608 * 576 * 2)
    a("v_lshlrev_b32 %s, 7, %s" % (v(vPX), v(vLANE)))
    a("s_lshl_b32 %s, s2, 2" % s(sT0))
    a("s_add_u32 %s, %s, %s" % (s(sT0), s(sT0), s(sW4)))
    a("s_mul_i32 %s, %s, %d" % (s(sPMO), s(sT0), 41 * 128))
    a("s_mul_i32 %s, %s, %d" % (s(sPMW), s(sT0), 6 * 128))
    TR0, TRP, TRN = opt.get("k1_tr", (0, 9, 0))
    a("s_mov_b32 %s, %d" % (s(sTN), TR0))
    a("v_mov_b32 v248, 0")
    a("v_mov_b32 v249, 0")
    def issue():
        a("s_call_b64 %s, L_issue" % s(sRET, 2))
    def publish(off):
        own_flag(sT0)
        a("v_mov_b32 %s, %s" % (v(vT[0]), s(sT0)))
        a("v_mov_b32 %s, %s" % (v(vT[1]), s(sTAG)))
        a("s_mov_b32 %s, %d" % (s(sT0), off))
        a("s_mov_b64 exec, 1")
        a("buffer_store_dword %s, %s, %s, %s offen sc1" % (v(vT[1]), v(vT[0]), s(rWS, 4), s(sT0)))
        a("s_mov_b64 exec, -1")
    a("s_waitcnt lgkmcnt(0)")
    ST0, STP = opt.get("k1_st", (0, 0))
    st.stamp()
    for i in range(ST0):
        a("s_call_b64 %s, L_stouch" % s(sRET, 2))
    a("s_barrier")
    issue(); issue()
    for i in range(opt.get("k1_st1", 0)):
        a("s_call_b64 %s, L_stouch" % s(sRET, 2))
    a("s_waitcnt vmcnt(6)")
    a("s_barrier")
    issue(); issue()
    a("s_waitcnt vmcnt(12)")
    a("s_barrier")
    issue(); issue()
    a.label("L_ld")
    a("s_waitcnt vmcnt(18)")
    if opt.get("diag_ld", 0): st.stamp()
    a("s_barrier")
    issue()
    for i in range(STP):
        a("s_call_b64 %s, L_stouch" % s(sRET, 2))
    if TRN:
        a("s_cmp_lg_u32 %s, %s" % (s(sG), s(sTN)))
        a("s_cbranch_scc1 L_notr")
        a("s_add_u32 %s, %s, %d" % (s(sTN), s(sTN), TRP))
        for i in range(TRN):
            a("s_call_b64 %s, L_touch" % s(sRET, 2))
        a.label("L_notr")
    a("s_cmp_lg_u32 %s, 8" % s(sG))
    a("s_cbranch_scc1 L_notg")
    a("global_load_dword v248, v249, %s" % s(sDBG, 2))
    a.label("L_notg")
    a("s_lshl_b32 %s, %s, 8" % (s(sT0), s(sW4)))
    a("s_add_u32 %s, %s, %s" % (s(sT0), s(sT0), s(sG)))
    a("s_mul_i32 %s, %s, 3" % (s(sT1), s(sNQ)))
    a("s_add_u32 %s, %s, 10" % (s(sT1), s(sT1)))
    a("s_cmp_lg_u32 %s, %s" % (s(sT0), s(sT1)))
    a("s_cbranch_scc1 L_noq")
    a("v_readfirstlane_b32 %s, v248" % s(sTAG))
    tag_check("L_tg4")
    publish(F_Q - F_E)
    a.label("L_noq")
    a("s_add_u32 %s, %s, %d" % (s(sT0), s(sG), opt.get("wd_back", 6)))
    a("s_cmp_lg_u32 %s, %s" % (s(sT0), s(sNG)))
    a("s_cbranch_scc1 L_nowd")
    a("s_mov_b32 exec_hi, 0x1ff")
    a("buffer_load_dword v252, %s, %s, %s offen" % (v(vPX), s(rPD, 4), s(sPMO)))
    a("s_mov_b64 exec, 63")
    a("buffer_load_dword v253, %s, %s, %s offen" % (v(vPX), s(rWO, 4), s(sPMW)))
    a("s_mov_b64 exec, -1")
    a.label("L_nowd")
    a("s_add_u32 %s, %s, 6" % (s(sT0), s(sG)))
    a("s_cmp_lg_u32 %s, %s" % (s(sT0), s(sNG)))
    a("s_cbranch_scc1 L_nol1")
    a("s_cmp_lg_u32 %s, 0" % s(sW4))
    a("s_cbranch_scc1 L_nol1")
    publish(0)
    a.label("L_nol1")
    a("s_cmp_lt_u32 %s, %s" % (s(sG), s(sNG)))
    a("s_cbranch_scc1 L_ld")
    a("v_readfirstlane_b32 %s, v248" % s(sTAG))
    tag_check("L_tg3")
    a("s_cmp_lg_u32 %s, 0" % s(sW4))
    a("s_cbranch_scc1 L_noe")
    publish(4096)
    a.label("L_noe")
    a("s_waitcnt vmcnt(18) lgkmcnt(0)")
    a("s_barrier")

    P = 3
    UNR = 6
    sHB, sBO, sHO, sWOFF, sRING, sCNT = 82, 83, 84, 85, 86, 87
    vDO = [4, 5, 7, 8]
    vG2TR = [9, 10]
    vH, vH3, vH4 = 6, 224, 225
    vAPO = 226
    vLP, vG1, vI4 = 227, 228, 229
    vLA, vGO = 230, 231
    T = [232, 233, 234, 235]
    XR = 236
    ACC0, HF0, WG0 = 16, 96, 176
    def GA(rt, nt): return ACC0 + rt * 16 + nt * 4
    def HF(i, rt): return HF0 + (i % P) * 20 + rt * 4
    def GW(i, nt): return WG0 + (i & 1) * 16 + nt * 4
    vG2PO, vG2PV = 2, 3
    sQA, sQZ = 72, 73
    tile_of()
    rb_lanes(vG2PO, vG2PV, F_E)
    poll(vG2PV, vG2PO)
    a("s_lshr_b32 %s, %s, 3" % (s(sQA), s(sT2)))
    a("s_lshr_b32 %s, %s, 3" % (s(sQZ), s(sT3)))
    a("v_lshlrev_b32 %s, 4, %s" % (v(vH), v(vLANE)))
    srd(a, rX, sX, 2048 * 576 * 2)
    a("v_mov_b32 %s, %s" % (v(vAPO), s(sQA)))
    a("s_mov_b32 exec_lo, 0")
    a("v_mov_b32 %s, %s" % (v(vAPO), s(sQZ)))
    a("s_mov_b64 exec, -1")
    a("v_lshlrev_b32 %s, 8, %s" % (v(vAPO), v(vAPO)))
    a("v_add_u32 %s, %d, %s" % (v(vAPO), F_A, v(vAPO)))
    srd(a, rW, sWD, 4608 * 576 * 2)
    srd(a, rOUT, sOUT, 2048 * 576 * 2)
    a("s_mul_i32 %s, %s, %d" % (s(sHB), s(sRT), NKS))
    a("s_add_u32 %s, %s, %s" % (s(sHB), s(sHB), s(sW4)))
    a("s_mul_i32 %s, %s, 5120" % (s(sHB), s(sHB)))
    if H_BASE: a("s_add_u32 %s, %s, %d" % (s(sHB), s(sHB), H_BASE))
    a("s_mul_i32 %s, %s, %d" % (s(sWOFF), s(sW4), 32 * 1152))
    a("s_lshl_b32 %s, %s, 7" % (s(sT0), s(sCT)))
    a("s_add_u32 %s, %s, %s" % (s(sWOFF), s(sWOFF), s(sT0)))
    a("s_mov_b32 %s, %s" % (s(sHO), s(sHB)))
    a("s_mul_i32 %s, %s, %d" % (s(sRING), s(sW4), QTR))
    a("s_bitcmp1_b32 %s, 0" % s(sNCH))
    a("s_cselect_b32 %s, %d, 0" % (s(sBO), BUF))
    a("s_add_u32 %s, %s, %d" % (s(sBO), s(sBO), LB0))
    a("s_add_u32 %s, %s, %s" % (s(sRING), s(sRING), s(sBO)))
    a("s_cmp_eq_u32 %s, %d" % (s(sRT), NRT - 1))
    a("s_cselect_b32 %s, 0x40000000, 0" % s(sT0))
    a("v_add_u32 %s, %s, %s" % (v(vH3), s(sT0), v(vH)))
    a("v_add_u32 %s, 4096, %s" % (v(vH4), v(vH3)))
    a("v_bfe_u32 %s, %s, 4, 1" % (v(vG1), v(vLANE)))
    a("v_bfe_u32 %s, %s, 2, 2" % (v(vI4), v(vLANE)))
    a("v_lshlrev_b32 %s, 1, %s" % (v(T[1]), v(vG1)))
    a("v_and_b32 %s, 3, %s" % (v(T[2]), v(vLANE)))
    a("v_xor_b32 %s, %s, %s" % (v(T[1]), v(T[1]), v(T[2])))
    a("v_lshlrev_b32 %s, 4, %s" % (v(T[1]), v(T[1])))
    a("v_lshrrev_b32 %s, 5, %s" % (v(T[3]), v(vLANE)))
    a("v_lshl_add_u32 %s, %s, 6, %s" % (v(vLP), v(T[3]), v(T[1])))
    a("v_bfe_u32 %s, %s, 2, 3" % (v(T[0]), v(vLANE)))
    a("v_mul_u32_u24 %s, 1152, %s" % (v(T[1]), v(T[0])))
    a("v_add_u32 %s, %s, %s" % (v(vDO[0]), v(T[1]), v(vLP)))
    for b in range(1, 4):
        a("v_add_u32 %s, %d, %s" % (v(vDO[b]), b * 9216, v(vDO[0])))
    a("v_lshlrev_b32 %s, 10, %s" % (v(T[3]), v(T[3])))
    a("v_lshl_add_u32 %s, %s, 6, %s" % (v(T[3]), v(T[0]), v(T[3])))
    a("v_lshl_add_u32 %s, %s, 5, %s" % (v(T[3]), v(vG1), v(T[3])))
    a("v_lshl_add_u32 %s, %s, 3, %s" % (v(T[3]), v(T[2]), v(T[3])))
    a("v_add_u32 %s, %s, %s" % (v(vG2TR[0]), s(sRING), v(T[3])))
    a("v_xor_b32 %s, 32, %s" % (v(T[3]), v(T[3])))
    a("v_add_u32 %s, %s, %s" % (v(vG2TR[1]), s(sRING), v(T[3])))
    for r in range(80):
        a("v_mov_b32 %s, 0" % v(ACC0 + r))
    a("s_waitcnt vmcnt(0)")
    a("s_barrier")
    a("s_cmp_ge_u32 %s, %s" % (s(sSLOT), s(sNOT)))
    a("s_cbranch_scc1 %s" % ("L_pf" if opt.get("pf_blocks", 0) else "L_fin"))
    a("s_setprio 2")
    st.stamp()
    flag_wait("L_fe", vG2PV, vG2PO)
    a("v_add_u32 %s, 4096, %s" % (v(vG2PO), v(vG2PO)))
    st.stamp()

    sHOp = [sHO, 74]
    def m0set(i, b):
        return "s_add_u32 m0, %s, %d" % (s(sRING), (i % P) * 4096 + b * 1024)
    def dma(b):
        return "buffer_load_dwordx4 %s, %s, %s offen %s lds" % (v(vDO[b]), s(rW, 4), s(sWOFF), opt.get("w2_flag", ""))
    def hld(i, rt, par):
        return "buffer_load_dwordx4 %s, %s, %s, %s offen offset:%d sc1" % (v(HF(i, rt), 4), v(vH4 if rt == 4 else vH3 if rt == 3 else vH), s(rWS, 4), s(sHOp[par]), (rt & 3) * 1024)
    def trd(i, nt, hf):
        return "ds_read_b64_tr_b16 %s, %s offset:%d" % (v(GW(i, nt) + 2 * hf, 2), v(vG2TR[nt & 1]), (i % P) * 4096 + (nt >> 1) * 512 + hf * 2048)
    def look(par, i=0):
        if opt.get("x_pat", 0):
            d = opt["x_pat"][i % len(opt["x_pat"])]
            return ["s_add_u32 %s, %s, %d" % (s(sWOFF), s(sWOFF), d * 4 * 32 * 1152),
                    "s_add_u32 %s, %s, %d" % (s(sHOp[par]), s(sHOp[1 - par]), d * 4 * 5120)]
        if opt.get("x_wsmall", 0) or opt.get("x_hsmall", 0):
            sg = 1 if par else -1
            return ["s_add_u32 %s, %s, %d" % (s(sWOFF), s(sWOFF), (sg if opt.get("x_wsmall", 0) else 1) * 4 * 32 * 1152),
                    "s_add_u32 %s, %s, %d" % (s(sHOp[par]), s(sHOp[1 - par]), (sg if opt.get("x_hsmall", 0) else 1) * 4 * 5120)]
        return ["s_add_u32 %s, %s, %d" % (s(sWOFF), s(sWOFF), 4 * 32 * 1152),
                "s_add_u32 %s, %s, %d" % (s(sHOp[par]), s(sHOp[1 - par]), 4 * 5120)]
    def gather(j, par):
        ops = ["s_add_u32 %s, %s, %d" % (s(sHOp[par]), s(sHB), (36 + j) * 4 * 5120),
               "s_lshl_b32 %s, %s, 7" % (s(sWOFF), s(sCT)),
               "s_lshl_b32 %s, %s, 2" % (s(sT0), s(sW4))]
        for b in range(2):
            U, Hh, Wr = T[0], T[1], T[2]
            ops += ["s_add_u32 %s, %s, %d" % (s(sT1), s(sT0), 16 * j + 2 * b),
                    "v_add_u32 %s, %s, %s" % (v(U), s(sT1), v(vG1)),
                    "v_mul_u32_u24 %s, 171, %s" % (v(Hh), v(U)),
                    "v_lshrrev_b32 %s, 9, %s" % (v(Hh), v(Hh)),
                    "v_mul_u32_u24 %s, 3, %s" % (v(Wr), v(Hh)),
                    "v_sub_u32 %s, %s, %s" % (v(U), v(U), v(Wr)),
                    "v_mul_u32_u24 %s, %s, %s" % (v(U), v(U), v(U)),
                    "v_mul_u32_u24 %s, 18, %s" % (v(Wr), v(Hh)),
                    "v_and_b32 %s, -4, %s" % (v(Wr), v(Wr)),
                    "v_lshl_add_u32 %s, %s, 2, %s" % (v(Wr), v(U), v(Wr)),
                    "v_add_u32 %s, %s, %s" % (v(Wr), v(Wr), v(vI4)),
                    "v_mul_u32_u24 %s, 1152, %s" % (v(Wr), v(Wr)),
                    "v_add_u32 %s, %s, %s" % (v(vDO[b]), v(Wr), v(vLP)),
                    "v_add_u32 %s, %d, %s" % (v(vDO[b + 2]), 8 * 1152, v(vDO[b]))]
        return ops
    def resid():
        return ["s_mul_i32 %s, %s, %d" % (s(sT2), s(sRT), 80 * 1152),
                "s_lshl_b32 %s, %s, 7" % (s(sT0), s(sCT)),
                "s_add_u32 %s, %s, %s" % (s(sT2), s(sT2), s(sT0)),
                "s_lshl_b32 %s, %s, 3" % (s(sT3), s(sW4)),
                "v_lshrrev_b32 %s, 3, %s" % (v(T[0]), v(vLANE)),
                "v_add_u32 %s, %s, %s" % (v(T[0]), s(sT3), v(T[0])),
                "v_and_b32 %s, 7, %s" % (v(T[1]), v(vLANE)),
                "v_lshrrev_b32 %s, 4, %s" % (v(T[2]), v(T[0])),
                "v_lshlrev_b32 %s, 12, %s" % (v(T[2]), v(T[2])),
                "v_lshl_add_u32 %s, %s, 9, %s" % (v(T[2]), v(T[1]), v(T[2])),
                "v_lshlrev_b32 %s, 1, %s" % (v(T[3]), v(T[1])),
                "v_xor_b32 %s, %s, %s" % (v(T[3]), v(T[3]), v(T[0])),
                "v_and_b32 %s, 15, %s" % (v(T[3]), v(T[3])),
                "v_lshl_add_u32 %s, %s, 4, %s" % (v(vLA), v(T[3]), v(T[2])),
                "v_mul_u32_u24 %s, 1152, %s" % (v(T[2]), v(T[0])),
                "v_lshl_add_u32 %s, %s, 4, %s" % (v(T[2]), v(T[1]), v(T[2])),
                "v_add_u32 %s, %s, %s" % (v(vGO), s(sT2), v(T[2])),
                "s_mov_b32 %s, %d" % (s(sT0), 32 * 1152),
                "s_mov_b32 %s, %d" % (s(sT1), 64 * 1152),
                "buffer_load_dwordx4 %s, %s, %s, 0 offen" % (v(XR, 4), v(vGO), s(rX, 4)),
                "buffer_load_dwordx4 %s, %s, %s, %s offen" % (v(XR + 4, 4), v(vGO), s(rX, 4), s(sT0)),
                "buffer_load_dwordx4 %s, %s, %s, %s offen" % (v(XR + 8, 4), v(vGO), s(rX, 4), s(sT1))]
    for i in range(P):
        for b in range(4):
            a(m0set(i, b)); a("s_nop 0"); a(dma(b))
        for rt in range(5):
            a(hld(i, rt, 0))
        a("s_add_u32 %s, %s, %d" % (s(sWOFF), s(sWOFF), 4 * 32 * 1152))
        a("s_add_u32 %s, %s, %d" % (s(sHO), s(sHO), 4 * 5120))
    a("s_waitcnt vmcnt(%d)" % (9 * P - 4))
    for nt in range(4):
        for hf in range(2):
            a(trd(0, nt, hf))
    st.stamp()
    VM = 5 + 9 * (P - 2)
    def iteration(i, pf, vm, nxt, reads=True):
        par = i & 1
        a("s_waitcnt vmcnt(%d) lgkmcnt(0)" % vm)
        rds = [trd(i + 1, nt, hf) for nt in range(4) for hf in range(2)] if reads and not opt.get("x_g2nord", 0) else []
        if opt.get("x_g2nold", 0): pf = False
        nxt = list(nxt)
        per = (len(nxt) + 11) // 12
        for rt in range(5):
            for nt in range(4):
                if rt == 0 and pf: a(m0set(i, nt))
                if opt.get("x_g2nomfma", 0): a("s_nop 0")
                else: a("v_mfma_f32_16x16x32_bf16 %s, %s, %s, %s" % (v(GA(rt, nt), 4), v(GW(i, nt), 4), v(HF(i, rt), 4), v(GA(rt, nt), 4)))
                if rt == 0 and pf: a(dma(nt))
                if rt >= 1 and rds:
                    a(rds.pop(0))
                if rt >= 1:
                    for k in range(per):
                        if nxt: a(nxt.pop(0))
            if pf: a(hld(i, rt, par))
        assert not nxt and not rds
    a("s_mov_b32 %s, 0" % s(sCNT))
    a.label("L_g2loop")
    st.stamp()
    for i in range(UNR):
        for at, trip, lab in ((0, 1, "p2"), (3, 1, "c2"), (2, 2, "p3"), (5, 2, "c3")):
            if i == at:
                a("s_cmp_eq_u32 %s, %d" % (s(sCNT), trip))
                a("s_cbranch_scc1 L_hk_%s" % lab)
                a.label("L_hk_%s_r" % lab)
        iteration(i, True, VM, look((i + 1) & 1, i))
    a("s_add_u32 %s, %s, 1" % (s(sCNT), s(sCNT)))
    a("s_cmp_lg_u32 %s, 5" % s(sCNT))
    a("s_cbranch_scc1 L_g2loop")
    st.stamp()
    for i in range(30, 42):
        t_next = i + 1 + P
        if t_next < 36: nxt = look((i + 1) & 1)
        elif t_next < 42: nxt = gather(t_next - 36, (i + 1) & 1)
        elif t_next == 42: nxt = []
        elif t_next == 43: nxt = resid()
        else: nxt = []
        if i == opt.get("a_poll", 30):
            poll(vG2PV, vAPO)
        if i + P == 36:
            flag_wait("L_fa", vG2PV, vAPO)
            srd(a, rW, sWO, 576 * 576 * 2)
            st.stamp()
        k = i + P - 42
        vm = VM if k <= 0 else (5 + 9 * (P - 2 - k) + 3 if k < P - 1 else 3)
        iteration(i, i + P < 42, vm, nxt, reads=i < 41)
    st.stamp()
    WA = [208, 209, 210, 211, 212, 213]
    a("v_and_b32 %s, 15, %s" % (v(T[0]), v(vLANE)))
    a("v_lshrrev_b32 %s, 5, %s" % (v(T[1]), v(vLANE)))
    a("v_lshlrev_b32 %s, 1, %s" % (v(T[1]), v(T[1])))
    a("v_xor_b32 %s, %s, %s" % (v(T[0]), v(T[0]), v(T[1])))
    a("v_lshrrev_b32 %s, 4, %s" % (v(T[1]), v(vLANE)))
    a("v_lshlrev_b32 %s, 8, %s" % (v(T[1]), v(T[1])))
    a("s_lshl_b32 %s, %s, 11" % (s(sT2), s(sW4)))
    a("s_add_u32 %s, %s, %d" % (s(sT2), s(sT2), SPARE - 2048))
    for nt in range(4):
        a("v_xor_b32 %s, %d, %s" % (v(T[2]), 4 * nt, v(T[0])))
        a("v_lshl_add_u32 %s, %s, 4, %s" % (v(T[2]), v(T[2]), v(T[1])))
        a("v_add_u32 %s, %s, %s" % (v(WA[nt]), s(sRING), v(T[2])))
        if nt >= 2:
            a("v_add_u32 %s, %s, %s" % (v(WA[nt + 2]), s(sT2), v(T[2])))
    for rt in range(5):
        for nt in range(4):
            if rt == 4 and nt >= 2:
                a("ds_write_b128 %s, %s offset:%d" % (v(WA[nt + 2]), v(GA(rt, nt), 4), nt * 1024))
            else:
                a("ds_write_b128 %s, %s offset:%d" % (v(WA[nt]), v(GA(rt, nt), 4), (rt * 4 + nt) * 1024))
    R2 = [214, 215, 216, 217]
    a("v_and_b32 %s, 0xfff, %s" % (v(T[2]), v(vLA)))
    a("v_add_u32 %s, %s, %s" % (v(vLA), s(sBO), v(vLA)))
    a("v_cmp_gt_u32 vcc, 2048, %s" % v(T[2]))
    a("s_add_u32 %s, %s, 16384" % (s(sT2), s(sBO)))
    a("v_mov_b32 %s, %d" % (v(T[0]), SPARE - 2048))
    a("v_mov_b32 %s, %s" % (v(T[1]), s(sT2)))
    a("v_cndmask_b32 %s, %s, %s, vcc" % (v(T[0]), v(T[0]), v(T[1])))
    a("v_add_u32 %s, %s, %s" % (v(R2[0]), v(T[0]), v(T[2])))
    a("v_mov_b32 %s, 2048" % v(T[0]))
    a("v_mov_b32 %s, %d" % (v(T[1]), QTR))
    a("v_cndmask_b32 %s, %s, %s, vcc" % (v(T[0]), v(T[0]), v(T[1])))
    for w in range(1, 4):
        a("v_add_u32 %s, %s, %s" % (v(R2[w]), v(R2[w - 1]), v(T[0])))
    a("s_mov_b32 %s, %d" % (s(sT0), 32 * 1152))
    a("s_mov_b32 %s, %d" % (s(sT1), 64 * 1152))
    a("s_waitcnt vmcnt(0) lgkmcnt(0)")
    st.stamp()
    a("s_barrier")
    st.stamp()
    def red_rd(r):
        B = 96 + 32 * r
        for w in range(4):
            for hh in range(2):
                if r < 2:
                    a("ds_read_b128 %s, %s offset:%d" % (v(B + 8 * w + 4 * hh, 4), v(vLA), w * QTR + r * 8192 + hh * 256))
                else:
                    a("ds_read_b128 %s, %s offset:%d" % (v(B + 8 * w + 4 * hh, 4), v(R2[w]), hh * 256))
    def red_fin(r, lg):
        B = 96 + 32 * r
        xr = XR + 4 * r
        U = 16
        for d in range(4):
            a("v_lshlrev_b32 %s, 16, %s" % (v(U + 2 * d), v(xr + d)))
            a("v_and_b32 %s, 0xffff0000, %s" % (v(U + 2 * d + 1), v(xr + d)))
        a("s_waitcnt lgkmcnt(%d)" % lg)
        for e in range(0, 8, 2):
            a("v_pk_add_f32 %s, %s, %s" % (v(B + e, 2), v(B + e, 2), v(B + 8 + e, 2)))
            a("v_pk_add_f32 %s, %s, %s" % (v(B + 16 + e, 2), v(B + 16 + e, 2), v(B + 24 + e, 2)))
        for e in range(0, 8, 2):
            a("v_pk_add_f32 %s, %s, %s" % (v(B + e, 2), v(B + e, 2), v(U + e, 2)))
        for e in range(0, 8, 2):
            a("v_pk_add_f32 %s, %s, %s" % (v(B + e, 2), v(B + e, 2), v(B + 16 + e, 2)))
        for d in range(4):
            a("v_cvt_pk_bf16_f32 %s, %s, %s" % (v(B + d), v(B + 2 * d), v(B + 2 * d + 1)))
        a("buffer_store_dwordx4 %s, %s, %s, %s offen %s" % (v(B, 4), v(vGO), s(rOUT, 4), ("0", s(sT0), s(sT1))[r], opt.get("out_flag", "sc1")))
    red_rd(0); red_rd(1)
    red_fin(0, 8)
    a("s_cmp_ge_u32 %s, 2" % s(sW4))
    a("s_cbranch_scc1 L_red2")
    red_rd(2)
    red_fin(1, 8)
    red_fin(2, 0)
    a("s_branch L_fin")
    a.label("L_red2")
    red_fin(1, 0)
    a("s_branch L_fin")

    for lab in ("p2", "p3"):
        a.label("L_hk_%s" % lab)
        poll(vG2PV, vG2PO)
        a("s_branch L_hk_%s_r" % lab)
    a.label("L_hk_c2")
    flag_wait("L_f2", vG2PV, vG2PO)
    a("v_add_u32 %s, 4096, %s" % (v(vG2PO), v(vG2PO)))
    a("s_branch L_hk_c2_r")
    a.label("L_hk_c3")
    flag_wait("L_f3", vG2PV, vG2PO)
    a("s_branch L_hk_c3_r")

    if opt.get("pf_blocks", 0):
        a.label("L_pf")
        sPI, sPN, sRL, sNU, sU, sPW, sPH = 59, 61, 62, 63, 64, 65, 66
        a("s_sub_u32 %s, %s, %s" % (s(sPI), s(sSLOT), s(sNOT)))
        a("s_lshl_b32 %s, %s, 2" % (s(sPI), s(sPI)))
        a("s_add_u32 %s, %s, %s" % (s(sPI), s(sPI), s(sW4)))
        a("s_sub_u32 %s, 32, %s" % (s(sPN), s(sNOT)))
        a("s_lshl_b32 %s, %s, 2" % (s(sPN), s(sPN)))
        a("s_mul_i32 %s, %s, 29" % (s(sT0), s(sXCD)))
        a("s_cmp_eq_u32 %s, 7" % s(sXCD))
        a("s_addc_u32 %s, %s, 0" % (s(sT0), s(sT0)))
        a("s_add_u32 %s, %s, %s" % (s(sT1), s(sT0), s(sNOT)))
        a("s_sub_u32 %s, %s, 1" % (s(sT1), s(sT1)))
        a("s_mul_i32 %s, %s, 7282" % (s(sRL), s(sT0)))
        a("s_lshr_b32 %s, %s, 16" % (s(sRL), s(sRL)))
        a("s_mul_i32 %s, %s, 7282" % (s(sT1), s(sT1)))
        a("s_lshr_b32 %s, %s, 16" % (s(sT1), s(sT1)))
        a("s_min_u32 %s, %s, %d" % (s(sT2), s(sT1), NRT - 2))
        a("s_sub_u32 %s, %s, %s" % (s(sNU), s(sT2), s(sRL)))
        a("s_mul_i32 %s, %s, 5" % (s(sNU), s(sNU)))
        a("s_add_u32 %s, %s, 41" % (s(sNU), s(sNU)))
        a("s_mul_i32 %s, %s, 80" % (s(sT0), s(sRL)))
        a("s_lshr_b32 %s, %s, 7" % (s(sT0), s(sT0)))
        a("s_mul_i32 %s, %s, 80" % (s(sT2), s(sT2)))
        a("s_add_u32 %s, %s, 79" % (s(sT2), s(sT2)))
        a("s_lshr_b32 %s, %s, 7" % (s(sT2), s(sT2)))
        a("v_lshrrev_b32 v2, 4, %s" % v(vLANE))
        a("v_add_u32 v2, %s, v2" % s(sT0))
        a("v_min_u32 v2, %s, v2" % s(sT2))
        a("v_and_b32 v3, 15, %s" % v(vLANE))
        a("v_lshl_add_u32 v2, v2, 6, v3")
        a("v_lshlrev_b32 v2, 2, v2")
        a("v_lshlrev_b32 v4, 7, %s" % v(vLANE))
        a("s_mul_i32 %s, %s, %d" % (s(sRL), s(sRL), NKS * 5120))
        prev = None
        for bi, (k0, k1) in enumerate(opt.get("pf_list", ((6, 12), (22, 28), (32, 36)))):
            lvl = 0 if k1 <= 12 else 1 if k1 <= 20 else 2
            if lvl != prev:
                a("v_add_u32 v5, %d, v2" % (F_E + 4096 * lvl))
                poll(3, 5)
                a("s_waitcnt vmcnt(0)")
                flag_wait("L_pff%d" % bi, 3, 5, 40)
                prev = lvl
            a("s_mov_b32 %s, %d" % (s(sPW), k0 * 4 * 32 * 1152))
            a("s_add_u32 %s, %s, %d" % (s(sPH), s(sRL), H_BASE + k0 * 4 * 5120))
            a("s_mov_b32 %s, %s" % (s(sU), s(sPI)))
            a.label("L_pfl%d" % bi)
            a("s_cmp_lt_u32 %s, 36" % s(sU))
            a("s_cbranch_scc0 L_pfh%d" % bi)
            a("s_lshl_b32 %s, %s, 13" % (s(sT0), s(sU)))
            a("s_add_u32 %s, %s, %s" % (s(sT0), s(sT0), s(sPW)))
            a("buffer_load_dword v252, v4, %s, %s offen" % (s(rW, 4), s(sT0)))
            a("s_branch L_pfn%d" % bi)
            a.label("L_pfh%d" % bi)
            a("s_sub_u32 %s, %s, 36" % (s(sT0), s(sU)))
            a("s_mul_i32 %s, %s, 205" % (s(sT1), s(sT0)))
            a("s_lshr_b32 %s, %s, 10" % (s(sT1), s(sT1)))
            a("s_mul_i32 %s, %s, %d" % (s(sT1), s(sT1), NKS * 5120 - 5 * 8192))
            a("s_lshl_b32 %s, %s, 13" % (s(sT0), s(sT0)))
            a("s_add_u32 %s, %s, %s" % (s(sT0), s(sT0), s(sT1)))
            a("s_add_u32 %s, %s, %s" % (s(sT0), s(sT0), s(sPH)))
            a("buffer_load_dword v252, v4, %s, %s offen sc1" % (s(rWS, 4), s(sT0)))
            a.label("L_pfn%d" % bi)
            a("s_waitcnt vmcnt(4)")
            a("s_add_u32 %s, %s, %s" % (s(sU), s(sU), s(sPN)))
            a("s_cmp_lt_u32 %s, %s" % (s(sU), s(sNU)))
            a("s_cbranch_scc1 L_pfl%d" % bi)
            a("s_sub_u32 %s, %s, %s" % (s(sU), s(sU), s(sNU)))
            a("s_add_u32 %s, %s, %d" % (s(sPW), s(sPW), 2 * 4 * 32 * 1152))
            a("s_add_u32 %s, %s, %d" % (s(sPH), s(sPH), 2 * 4 * 5120))
            a("s_cmp_lt_u32 %s, %d" % (s(sPW), k1 * 4 * 32 * 1152))
            a("s_cbranch_scc1 L_pfl%d" % bi)
            st.stamp()
    a.label("L_fin")
    if opt.get("x_hold", 0):
        a("s_cmp_ge_u32 %s, 4" % s(sWAVE))
        a("s_cbranch_scc1 L_hold_e")
        a.label("L_hold")
        a("s_memrealtime s[100:101]")
        a("s_waitcnt lgkmcnt(0)")
        a("s_sub_u32 s100, s100, %s" % s(sTAG))
        a("s_cmp_lt_u32 s100, %d" % opt["x_hold"])
        a("s_cbranch_scc1 L_hold")
        a.label("L_hold_e")
    if st.on:
        a("s_mov_b64 exec, -1")
        a("v_mov_b32 v0, %s" % v(vLANE))
        a("s_waitcnt vmcnt(0)")
    st.stamp(); st.stamp(True); st.dump(sWAVE, sWS, 254)
    a.label("L_end")
    a("s_endpgm")
    a.label("L_code_end")
    return a.text(), kdesc(F_NAME, 256, 102)
```
